```python
import torch

def _softmax(x, axis=-1):
    return torch.softmax(x, dim=axis)
def _gelu(x):
    return torch.nn.functional.gelu(x, approximate="tanh")
def _silu(x):
    return torch.nn.functional.silu(x)
def _sigmoid(x):
    return torch.sigmoid(x)
def _layernorm(x, axis=-1, eps=1e-5):
    m = x.mean(dim=axis, keepdim=True)
    v = x.var(dim=axis, keepdim=True, unbiased=False)
    return (x - m) / torch.sqrt(v + eps)
def _scatter_add(tgt, idx, src, axis=0):
    return tgt.clone().index_add_(axis, idx, src)
def _segment_sum(src, seg, n):
    out = torch.zeros((n,) + src.shape[1:], dtype=src.dtype)
    return out.index_add_(0, seg, src)
def _pad(x, pw):
    flat = tuple(v for pair in reversed(pw) for v in pair)
    return torch.nn.functional.pad(x, flat)

kernel_name = 'interleave_layers__sliding_block__swiglu_ffn__prompt'

def setup_inputs():

    _w = (lambda a: (lambda t: t.to(torch.bfloat16) if t.is_floating_point() else t)(torch.as_tensor(a)))
    def _A_setup():
        B, S, D = 1, 2048, 512
        return {
            "x": _w((lambda *s: torch.randn(*s, dtype=torch.bfloat16) * 0.05)(B, S, D)),
            "wqkv": _w((lambda *s: torch.randn(*s, dtype=torch.bfloat16) * 0.05)(D, 3 * D)),
            "wo": _w((lambda *s: torch.randn(*s, dtype=torch.bfloat16) * 0.05)(D, D)),
        }
    _A_in = _A_setup()

    def _B_setup():
        B, S, D, F = 1, 2048, 512, 1792
        return {
            "x": _w((lambda *s: torch.randn(*s, dtype=torch.bfloat16) * 0.05)(B, S, D)),
            "w_gate": _w((lambda *s: torch.randn(*s, dtype=torch.bfloat16) * 0.05)(D, F)),
            "w_up": _w((lambda *s: torch.randn(*s, dtype=torch.bfloat16) * 0.05)(D, F)),
            "w_down": _w((lambda *s: torch.randn(*s, dtype=torch.bfloat16) * 0.05)(F, D)),
        }
    _B_in = _B_setup()

    return {
        "A_x": _A_in["x"],
        "A_wqkv": _A_in["wqkv"],
        "A_wo": _A_in["wo"],
        "B_x": _B_in["x"],
        "B_w_gate": _B_in["w_gate"],
        "B_w_up": _B_in["w_up"],
        "B_w_down": _B_in["w_down"],
    }

def reference(A_x, A_wqkv, A_wo, B_x, B_w_gate, B_w_up, B_w_down):
    def _A_ref(x, wqkv, wo):
        B, S, D = x.shape
        H = 32; Dh = D // H; W = 256
        qkv = (lambda x, *d: x.permute(*d))((x @ wqkv).reshape(B, S, 3, H, Dh), 2, 0, 3, 1, 4)
        q, k, v = qkv[0], qkv[1], qkv[2]
        scores = torch.einsum("bhqd,bhkd->bhqk", q, k) * (Dh ** -0.5)
        idx = torch.arange(S)
        mask = (idx[:, None] - idx[None, :] >= 0) & (idx[:, None] - idx[None, :] < W)
        scores = torch.where(mask[None, None], scores, -1e9)
        p = _softmax(scores, axis=-1)
        o = torch.einsum("bhqk,bhkd->bhqd", p, v)
        return (lambda x, *d: x.permute(*d))(o, 0, 2, 1, 3).reshape(B, S, D) @ wo

    def _B_ref(x, w_gate, w_up, w_down):
        g = _silu(x @ w_gate)
        u = x @ w_up
        return (g * u) @ w_down

    x = A_x
    x = x + _A_ref(_layernorm(x, axis=-1), A_wqkv, A_wo)
    x = x + _B_ref(_layernorm(x, axis=-1), B_w_gate, B_w_up, B_w_down)
    x = x + _A_ref(_layernorm(x, axis=-1), A_wqkv, A_wo)
    x = x + _B_ref(_layernorm(x, axis=-1), B_w_gate, B_w_up, B_w_down)
    return x
```

```python
import sys, struct

WQKV_F = 0x000000
WO_F   = 0x180000
WGU_F  = 0x200000
WD_F   = 0x580000
CS_QKV = 0x740000
CS_GU  = 0x750000
CS_DUM = 0x770000
XT     = 0x800000
STATS  = 0xA00000
QF     = 0xB00000
KF     = 0xD00000
VF     = 0xF00000
OT     = 0x1100000
HT     = 0x1300000
WS_SIZE = 0x10000000

def f32bits(x):
    return struct.unpack("<I", struct.pack("<f", x))[0]

class Kern:
    def __init__(self, name):
        self.name = name
        self.lines = []
        self.vm = []
        self.lg = []
        self.nlabel = 0
    def e(self, s):
        self.lines.append("  " + s)
    def label(self, l):
        self.lines.append(l + ":")
    def newlabel(self, p="L"):
        self.nlabel += 1
        return "%s_%s_%d" % (p, self.name, self.nlabel)
    def vmem(self, s, tag=None):
        self.e(s); self.vm.append(tag)
    def lds(self, s, tag=None):
        self.e(s); self.lg.append(tag)
    def _need(self, lst, tag):
        idx = -1
        for i, t in enumerate(lst):
            if t == tag: idx = i
        return idx
    def wait_vm(self, tag):
        idx = self._need(self.vm, tag)
        if idx < 0: return
        n = len(self.vm) - 1 - idx
        self.e("s_waitcnt vmcnt(%d)" % min(n, 63))
        if n > 63:
            self.vm = self.vm[len(self.vm)-63:]
        else:
            self.vm = self.vm[idx+1:]
    def wait_lg(self, tag):
        idx = self._need(self.lg, tag)
        if idx < 0: return
        n = len(self.lg) - 1 - idx
        self.e("s_waitcnt lgkmcnt(%d)" % min(n, 15))
        if n > 15:
            self.lg = self.lg[len(self.lg)-15:]
        else:
            self.lg = self.lg[idx+1:]
    def wait_all(self):
        self.e("s_waitcnt vmcnt(0) lgkmcnt(0)"); self.vm = []; self.lg = []
    def wait_lg_all(self):
        self.e("s_waitcnt lgkmcnt(0)"); self.lg = []
    def wait_vm_all(self):
        self.e("s_waitcnt vmcnt(0)"); self.vm = []
    def text(self, vgpr, agpr, sgpr=102):
        acc_off = (vgpr + 3) // 4 * 4
        nfv = acc_off + agpr if agpr else vgpr
        hdr = [".text", ".globl %s" % self.name, ".p2align 8", ".type %s,@function" % self.name, "%s:" % self.name]
        kd = [".section .rodata,\"a\"", ".p2align 6", ".amdhsa_kernel %s" % self.name,
              "  .amdhsa_next_free_vgpr %d" % nfv, "  .amdhsa_next_free_sgpr %d" % sgpr,
              "  .amdhsa_accum_offset %d" % acc_off, "  .amdhsa_group_segment_fixed_size 0",
              "  .amdhsa_kernarg_size 80", "  .amdhsa_user_sgpr_count 2",
              "  .amdhsa_user_sgpr_kernarg_segment_ptr 1", "  .amdhsa_system_sgpr_workgroup_id_x 1",
              ".end_amdhsa_kernel"]
        return "\n".join(hdr + self.lines + kd) + "\n"

def ws_srd(k, s_ptr, s_srd):
    k.e("s_mov_b32 s%d, s%d" % (s_srd, s_ptr))
    k.e("s_mov_b32 s%d, s%d" % (s_srd+1, s_ptr+1))
    k.e("s_mov_b32 s%d, 0x%x" % (s_srd+2, WS_SIZE))
    k.e("s_mov_b32 s%d, 0x20000" % (s_srd+3))

ONES_BF16 = 0x3f803f80

N_STRIP_WG = 240
N_X_WG = 256
def gen_prep():
    k = Kern("prep_kernel")
    e = k.e
    e("s_cmp_ge_u32 s2, %d" % (N_STRIP_WG + N_X_WG))
    e("s_cbranch_scc1 L_prep_end")
    e("s_load_dwordx16 s[16:31], s[0:1], 0")
    e("s_load_dwordx2 s[32:33], s[0:1], 72")
    e("v_lshrrev_b32 v1, 6, v0")
    e("v_and_b32 v2, 63, v0")
    e("v_and_b32 v3, 31, v0")
    e("v_readfirstlane_b32 s3, v1")
    e("v_bfe_u32 v4, v0, 5, 1")
    e("s_mov_b32 s53, 0x%x" % ONES_BF16)
    e("s_waitcnt lgkmcnt(0)")
    ws_srd(k, 32, 36)
    e("s_mov_b32 s43, 0x20000")
    e("s_cmp_ge_u32 s2, %d" % N_STRIP_WG)
    e("s_cbranch_scc1 L_prep_x")
    e("s_mov_b32 s47, 256")
    e("s_mov_b32 s48, 0")
    e("s_mov_b32 s50, 256")
    e("s_lshl_b32 s52, s3, 3")
    e("s_cmp_lt_u32 s2, 48")
    e("s_cbranch_scc0 L_prep_n1")
    e("s_mov_b32 s40, s18"); e("s_mov_b32 s41, s19"); e("s_mov_b32 s42, %d" % (512*1536*2))
    e("s_mov_b32 s44, 3072")
    e("s_lshl_b32 s45, s2, 6")
    e("s_lshr_b32 s54, s2, 4")
    e("s_and_b32 s55, s2, 15")
    e("s_mul_i32 s55, s55, 3")
    e("s_add_u32 s55, s55, s54")
    e("s_lshl_b32 s46, s55, 15")
    e("s_add_u32 s46, s46, 0x%x" % WQKV_F)
    e("s_lshl_b32 s49, s55, 10")
    e("s_add_u32 s49, s49, 0x%x" % CS_QKV)
    e("s_branch L_prep_strip")
    k.label("L_prep_n1")
    e("s_cmp_lt_u32 s2, 160")
    e("s_cbranch_scc0 L_prep_n2")
    e("s_mov_b32 s42, %d" % (512*1792*2))
    e("s_mov_b32 s44, 3584")
    e("s_mov_b32 s47, 32768")
    e("s_mov_b32 s50, 1024")
    e("s_sub_u32 s54, s2, 48")
    e("s_mov_b32 s40, s24"); e("s_mov_b32 s41, s25")
    e("s_cmp_lt_u32 s2, 104")
    e("s_cbranch_scc1 L_prep_gu")
    e("s_sub_u32 s54, s2, 104")
    e("s_mov_b32 s40, s26"); e("s_mov_b32 s41, s27")
    e("s_mov_b32 s48, 256")
    k.label("L_prep_gu")
    e("s_lshl_b32 s45, s54, 6")
    e("s_lshl_b32 s46, s54, 16")
    e("s_add_u32 s46, s46, 0x%x" % WGU_F)
    e("s_lshl_b32 s49, s54, 11")
    e("s_add_u32 s49, s49, 0x%x" % CS_GU)
    e("s_branch L_prep_strip")
    k.label("L_prep_n2")
    e("s_mov_b32 s44, 1024")
    e("s_mov_b32 s49, 0x%x" % CS_DUM)
    e("s_cmp_lt_u32 s2, 176")
    e("s_cbranch_scc0 L_prep_n3")
    e("s_mov_b32 s40, s20"); e("s_mov_b32 s41, s21"); e("s_mov_b32 s42, %d" % (512*512*2))
    e("s_sub_u32 s54, s2, 160")
    e("s_lshl_b32 s45, s54, 6")
    e("s_lshl_b32 s46, s54, 15")
    e("s_add_u32 s46, s46, 0x%x" % WO_F)
    e("s_branch L_prep_strip")
    k.label("L_prep_n3")
    e("s_mov_b32 s40, s28"); e("s_mov_b32 s41, s29"); e("s_mov_b32 s42, %d" % (1792*512*2))
    e("s_sub_u32 s54, s2, 176")
    e("s_and_b32 s55, s54, 3")
    e("s_lshr_b32 s54, s54, 2")
    e("s_lshl_b32 s45, s54, 6")
    e("s_mul_i32 s46, s54, %d" % (112*1024))
    e("s_add_u32 s46, s46, 0x%x" % WD_F)
    e("s_lshl_b32 s55, s55, 5")
    e("s_add_u32 s52, s52, s55")
    k.label("L_prep_strip")
    e("s_lshl_b32 s54, s44, 2")
    e("v_mul_lo_u32 v5, v4, s54")
    e("v_lshl_add_u32 v5, v3, 1, v5")
    e("v_add_u32 v5, s45, v5")
    e("v_lshrrev_b32 v7, 4, v3")
    e("v_and_b32 v8, 15, v3")
    e("v_lshlrev_b32 v8, 4, v8")
    e("v_lshl_add_u32 v8, v4, 9, v8")
    e("v_mul_lo_u32 v6, v7, s47")
    e("v_add_u32 v6, v6, v8")
    e("s_add_u32 s54, s46, s48")
    e("v_add_u32 v6, s54, v6")
    e("v_mul_lo_u32 v9, v7, s50")
    e("v_add_u32 v9, v9, v8")
    e("s_add_u32 s54, s49, s48")
    e("v_add_u32 v9, s54, v9")
    e("v_mov_b32 v10, 0")
    e("s_cmp_ge_u32 s52, 112")
    e("s_cbranch_scc1 L_prep_cs")
    e("s_lshl_b32 s54, s52, 4")
    e("s_mul_i32 s54, s54, s44")
    pat = [0, 1, 2, 3, 8, 9, 10, 11]
    for j in range(8):
        e("s_mul_i32 s55, s44, %d" % pat[j])
        e("s_add_u32 s%d, s54, s55" % (60 + j))
    e("s_lshl_b32 s56, s44, 4")
    e("s_lshl_b32 s57, s52, 10")
    for ks in range(8):
        for j in range(8):
            k.vmem("buffer_load_ushort v%d, v5, s[40:43], s%d offen" % (64 + 8*ks + j, 60 + j), ("ld", ks))
        if ks < 7:
            e("v_add_u32 v5, s56, v5")
        if ks == 6:
            k.wait_vm(("ld", 0))
    for ks in range(8):
        k.wait_vm(("ld", ks))
        for j in range(4):
            e("v_lshl_or_b32 v%d, v%d, 16, v%d" % (16 + 4*ks + j, 64 + 8*ks + 2*j + 1, 64 + 8*ks + 2*j))
        for j in range(4):
            e("v_dot2_f32_bf16 v10, v%d, s53, v10" % (16 + 4*ks + j))
        if ks == 4: e("s_add_u32 s57, s57, 4096")
        k.vmem("buffer_store_dwordx4 v[%d:%d], v6, s[36:39], s57 offen offset:%d" % (16+4*ks, 19+4*ks, (ks % 4)*1024), "st")
    k.label("L_prep_cs")
    e("s_nop 3")
    e("v_lshlrev_b32 v11, 2, v0")
    e("ds_write_b32 v11, v10")
    e("s_waitcnt lgkmcnt(0)")
    e("s_barrier")
    e("s_cmp_lg_u32 s3, 0")
    e("s_cbranch_scc1 L_prep_end")
    e("v_lshlrev_b32 v11, 2, v3")
    for w in range(4):
        e("ds_read2_b32 v[%d:%d], v11 offset0:%d offset1:%d" % (48+2*w, 49+2*w, w*64, w*64+32))
    e("s_waitcnt lgkmcnt(0)")
    e("v_add_f32 v48, v48, v49"); e("v_add_f32 v50, v50, v51"); e("v_add_f32 v52, v52, v53"); e("v_add_f32 v54, v54, v55")
    e("v_add_f32 v48, v48, v50"); e("v_add_f32 v52, v52, v54"); e("v_add_f32 v48, v48, v52")
    e("v_cvt_pk_bf16_f32 v49, v48, v48")
    e("v_lshlrev_b32 v49, 16, v49")
    e("v_sub_f32 v49, v48, v49")
    e("v_cvt_pk_bf16_f32 v52, v48, v49")
    e("v_cmp_eq_u32 vcc, 0, v4")
    e("v_mov_b32 v54, 0")
    e("v_mov_b32 v55, 0")
    e("v_cndmask_b32 v52, 0, v52, vcc")
    e("v_mov_b32 v53, v52")
    e("buffer_store_dwordx4 v[52:55], v9, s[36:39], 0 offen")
    e("s_endpgm")
    k.label("L_prep_x")
    e("s_mov_b32 s40, s16"); e("s_mov_b32 s41, s17"); e("s_mov_b32 s42, %d" % (2048*512*2))
    e("s_sub_u32 s54, s2, %d" % N_STRIP_WG)
    e("s_lshl_b32 s54, s54, 2")
    e("s_add_u32 s54, s54, s3")
    e("s_lshr_b32 s55, s54, 4")
    e("s_and_b32 s56, s54, 15")
    e("s_lshl_b32 s57, s55, 15")
    e("s_lshl_b32 s58, s56, 6")
    e("s_add_u32 s58, s58, s57")
    e("v_lshlrev_b32 v5, 10, v3")
    e("v_lshl_add_u32 v5, v4, 3, v5")
    for q in range(4):
        e("buffer_load_dwordx2 v[%d:%d], v5, s[40:43], s58 offen offset:%d" % (16+2*q, 17+2*q, 16*q))
    e("v_lshlrev_b32 v6, 4, v2")
    e("s_lshl_b32 s59, s56, 11")
    e("s_add_u32 s59, s59, s57")
    e("s_add_u32 s59, s59, 0x%x" % XT)
    e("s_lshl_b32 s60, s55, 13")
    e("s_lshr_b32 s61, s56, 1")
    e("s_lshl_b32 s61, s61, 10")
    e("s_add_u32 s60, s60, s61")
    e("s_and_b32 s61, s56, 1")
    e("s_lshl_b32 s61, s61, 3")
    e("s_add_u32 s60, s60, s61")
    e("s_add_u32 s60, s60, 0x%x" % STATS)
    e("v_mov_b32 v10, 0"); e("v_mov_b32 v11, 0")
    e("s_waitcnt vmcnt(0)")
    e("buffer_store_dwordx4 v[16:19], v6, s[36:39], s59 offen")
    e("buffer_store_dwordx4 v[20:23], v6, s[36:39], s59 offen offset:1024")
    for q in range(8):
        e("v_dot2_f32_bf16 v10, v%d, s53, v10" % (16+q))
        e("v_dot2_f32_bf16 v11, v%d, v%d, v11" % (16+q, 16+q))
    e("s_nop 3")
    e("buffer_store_dwordx2 v[10:11], v6, s[36:39], s60 offen")
    k.label("L_prep_end")
    e("s_endpgm")
    return k.text(128, 0)

def stats_issue(k, s_srd, s_off, v_l16, vb):
    for cq in range(8):
        if cq == 4:
            k.e("s_add_u32 s%d, s%d, 4096" % (s_off, s_off))
        k.vmem("buffer_load_dwordx4 v[%d:%d], v%d, s[%d:%d], s%d offen offset:%d" %
               (vb+4*cq, vb+4*cq+3, v_l16, s_srd, s_srd+3, s_off, (cq % 4)*1024), "stats")

def stats_reduce_ops(vb, v_mean, v_rstd, v_t0, v_t1, v_var, v_mfrag):
    ops = []
    step = 1
    while step < 16:
        for c in range(0, 16, 2*step):
            ops.append("v_add_f32 v%d, v%d, v%d" % (vb+2*c, vb+2*c, vb+2*(c+step)))
            ops.append("v_add_f32 v%d, v%d, v%d" % (vb+2*c+1, vb+2*c+1, vb+2*(c+step)+1))
        step *= 2
    ops.append("v_mov_b32 v%d, v%d" % (v_t0, vb))
    ops.append("v_mov_b32 v%d, v%d" % (v_t1, vb+1))
    ops.append("s_nop 1")
    ops.append("v_permlane32_swap_b32 v%d, v%d" % (vb, v_t0))
    ops.append("v_permlane32_swap_b32 v%d, v%d" % (vb+1, v_t1))
    ops.append("s_nop 1")
    ops.append("v_add_f32 v%d, v%d, v%d" % (vb, vb, v_t0))
    ops.append("v_add_f32 v%d, v%d, v%d" % (vb+1, vb+1, v_t1))
    ops.append("v_mul_f32 v%d, 0x%x, v%d" % (v_mean, f32bits(-1.0/512), vb))
    ops.append("v_mul_f32 v%d, 0x%x, v%d" % (v_t0, f32bits(1.0/512), vb+1))
    ops.append("v_fma_f32 v%d, -v%d, v%d, v%d" % (v_t0, v_mean, v_mean, v_t0))
    ops.append("v_max_f32 v%d, 0, v%d" % (v_t0, v_t0))
    ops.append("v_add_f32 v%d, 0x%x, v%d" % (v_var, f32bits(1e-5), v_t0))
    ops.append("v_rsq_f32 v%d, v%d" % (v_rstd, v_var))
    ops.append("v_cvt_pk_bf16_f32 v%d, v%d, v%d" % (v_mfrag, v_mean, v_mean))
    ops.append("v_lshlrev_b32 v%d, 16, v%d" % (v_t0, v_mfrag))
    ops.append("v_sub_f32 v%d, v%d, v%d" % (v_t0, v_mean, v_t0))
    ops.append("v_cvt_pk_bf16_f32 v%d, v%d, v%d" % (v_mfrag+1, v_t0, v_t0))
    ops.append("v_mov_b32 v%d, 0" % (v_mfrag+2))
    ops.append("v_mov_b32 v%d, 0" % (v_mfrag+3))
    return ops

LOG2E = 1.4426950408889634
QSCALE = 0.25 * LOG2E

def gen_rowgemm(kind):
    qkv = kind == "qkv"
    k = Kern("qkv_kernel" if qkv else "gateup_kernel")
    e = k.e
    NT = 3 if qkv else 7
    NSLOT = 12 if qkv else 20
    WBASE = WQKV_F if qkv else WGU_F
    CSB = CS_QKV if qkv else CS_GU
    Lend = "L_%s_end" % kind
    e("s_cmp_ge_u32 s2, 256")
    e("s_cbranch_scc1 %s" % Lend)
    e("s_load_dwordx2 s[32:33], s[0:1], 72")
    e("v_lshrrev_b32 v1, 6, v0")
    e("v_and_b32 v2, 63, v0")
    e("v_and_b32 v3, 31, v0")
    e("v_readfirstlane_b32 s3, v1")
    e("v_bfe_u32 v4, v0, 5, 1")
    e("v_lshlrev_b32 v5, 4, v2")
    e("v_add_u32 v6, 0x10000, v5")
    e("v_add_u32 v7, 0x20000, v5")
    e("s_and_b32 s4, s2, 7")
    e("s_lshr_b32 s5, s2, 3")
    if qkv:
        e("s_and_b32 s6, s4, 3"); e("s_lshr_b32 s7, s4, 2")
        e("s_and_b32 s8, s5, 3"); e("s_lshl_b32 s6, s6, 2"); e("s_add_u32 s6, s6, s8")
        e("s_lshr_b32 s8, s5, 2"); e("s_lshl_b32 s7, s7, 3"); e("s_add_u32 s7, s7, s8")
    else:
        e("s_and_b32 s6, s4, 1"); e("s_lshr_b32 s7, s4, 1")
        e("s_and_b32 s8, s5, 7"); e("s_lshl_b32 s6, s6, 3"); e("s_add_u32 s6, s6, s8")
        e("s_lshr_b32 s8, s5, 3"); e("s_lshl_b32 s7, s7, 2"); e("s_add_u32 s7, s7, s8")
    e("s_lshl_b32 s6, s6, 2")
    e("s_add_u32 s6, s6, s3")
    e("s_lshl_b32 s8, s6, 15")
    e("s_add_u32 s8, s8, 0x%x" % XT)
    e("s_mul_i32 s9, s7, %d" % (NT*32768))
    e("s_lshl_b32 s10, s3, 11")
    e("s_add_u32 s9, s9, s10")
    e("s_add_u32 s9, s9, 0x%x" % WBASE)
    e("s_lshl_b32 s11, s6, 13")
    e("s_add_u32 s11, s11, 0x%x" % STATS)
    e("s_mul_i32 s12, s7, %d" % (NT*1024))
    e("s_add_u32 s12, s12, 0x%x" % CSB)
    e("s_waitcnt lgkmcnt(0)")
    ws_srd(k, 32, 36)
    NCH = NT*4
    state = {"next": 0}
    def issue_w():
        c = state["next"]; state["next"] += 1
        e("s_add_u32 m0, s10, %d" % ((c % NSLOT)*8192))
        if c > 0: e("s_add_u32 s9, s9, 8192")
        else: e("s_nop 0")
        k.vmem("buffer_load_dwordx4 v5, s[36:39], s9 offen lds", ("w", c))
        k.vmem("buffer_load_dwordx4 v5, s[36:39], s9 offen offset:1024 lds", ("w", c))
    WF = 16
    ACC = [32, 48]
    ST = 64
    CSF = 96
    MFR = 124
    PK = 128
    MEAN, RSTD, T0, T1, SC1, VAR = 8, 9, 10, 11, 12, 13
    for c in range(4):
        for s in range(8*c, 8*c+8):
            if s % 4 == 0 and s > 0: e("s_add_u32 s8, s8, 4096")
            k.vmem("buffer_load_dwordx4 a[%d:%d], v5, s[36:39], s8 offen offset:%d" % (4*s, 4*s+3, (s % 4)*1024), ("x", s))
        issue_w()
    stats_issue(k, 36, 11, 5, ST)
    for t in range(NT):
        if t == 4: e("s_add_u32 s12, s12, 4096")
        k.vmem("buffer_load_dwordx4 v[%d:%d], v5, s[36:39], s12 offen offset:%d" % (CSF+4*t, CSF+4*t+3, (t % 4)*1024), "cs")
    PF = 3
    total = NT*32
    side = []
    freed = {"c": -1}
    def rd(g):
        c = g // 8
        if g % 8 == 0:
            k.wait_vm(("w", c))
            e("s_barrier")
            freed["c"] = c - 2
        slot = c % NSLOT
        a = slot*8192 + (g % 8)*1024
        va, off = 5 + a // 65536, a % 65536
        k.lds("ds_read_b128 v[%d:%d], v%d offset:%d" % (WF+4*(g % 4), WF+4*(g % 4)+3, va, off), ("wf", g))
    def run_side(n):
        for _ in range(n):
            if not side: return
            x = side.pop(0)
            if callable(x): x()
            else: e(x)
    def try_issue():
        c = state["next"]
        if c >= NCH: return
        if len(k.vm) + 2 > 62: return
        if c >= NSLOT and c - NSLOT > freed["c"]: return
        issue_w()
    def epi_qk(t, acc):
        ops = []
        sc = SC1 if t == 0 else RSTD
        for r in range(16):
            ops.append("v_mul_f32 v%d, v%d, v%d" % (acc+r, sc, acc+r))
            if r % 2 == 1:
                ops.append("v_cvt_pk_bf16_f32 v%d, v%d, v%d" % (PK + 8*t + r//2, acc+r-1, acc+r))
        base = QF if t == 0 else KF
        def st():
            e("s_lshl_b32 s13, s7, 17")
            e("s_lshl_b32 s14, s6, 10")
            e("s_add_u32 s13, s13, s14")
            e("s_add_u32 s13, s13, 0x%x" % base)
            e("s_add_u32 s14, s13, 65536")
            k.vmem("buffer_store_dwordx4 v[%d:%d], v5, s[36:39], s13 offen" % (PK+8*t, PK+8*t+3), "st")
            k.vmem("buffer_store_dwordx4 v[%d:%d], v5, s[36:39], s14 offen" % (PK+8*t+4, PK+8*t+7), "st")
        ops.append(st)
        return ops
    def stats_ops():
        ops = [lambda: k.wait_vm("cs")]
        ops += stats_reduce_ops(ST, MEAN, RSTD, T0, T1, VAR, MFR)
        if qkv:
            ops.append("v_mul_f32 v%d, 0x%x, v%d" % (SC1, f32bits(QSCALE), RSTD))
            def wr():
                e("s_lshl_b32 s15, s3, 7")
                e("s_add_u32 s15, s15, %d" % (NSLOT*8192))
                e("v_lshl_add_u32 v14, v3, 2, s15")
                k.lds("ds_write_b32 v14, v%d" % RSTD, "stw")
                e("v_lshl_add_u32 v14, v4, 4, s15")
                k.wait_lg("stw")
                for g in range(4):
                    k.lds("ds_read_b128 v[%d:%d], v14 offset:%d" % (ST+4*g, ST+4*g+3, g*32), "str")
            ops.append(wr)
        else:
            ops.append("v_mul_f32 v%d, 0x%x, v%d" % (SC1, f32bits(-LOG2E), RSTD))
        return ops
    def epi_v(acc):
        k.wait_lg("str")
        for r in range(16):
            e("v_mul_f32 v%d, v%d, v%d" % (acc+r, ST+r, acc+r))
            if r % 2 == 1:
                e("v_cvt_pk_bf16_f32 v%d, v%d, v%d" % (PK + r//2, acc+r-1, acc+r))
        e("v_lshrrev_b32 v14, 4, v3")
        e("v_lshlrev_b32 v14, 16, v14")
        e("v_and_b32 v15, 15, v3")
        e("v_lshl_add_u32 v14, v15, 4, v14")
        e("v_lshl_add_u32 v14, v4, 8, v14")
        e("s_lshl_b32 s13, s7, 17")
        e("s_lshl_b32 s14, s6, 10")
        e("s_add_u32 s13, s13, s14")
        e("s_add_u32 s13, s13, 0x%x" % VF)
        k.vmem("buffer_store_dwordx4 v[%d:%d], v14, s[36:39], s13 offen" % (PK, PK+3), "st")
        k.vmem("buffer_store_dwordx4 v[%d:%d], v14, s[36:39], s13 offen offset:512" % (PK+4, PK+7), "st")
    def epi_gu(t, acc):
        ops = []
        pk = PK + 4*(t % 2)
        tm = PK + 8
        for r in range(8):
            ops.append("v_mul_f32 v%d, v%d, v%d" % (tm+r, SC1, acc+r))
        for r in range(8):
            ops.append("v_exp_f32 v%d, v%d" % (tm+r, tm+r))
            ops.append("v_mul_f32 v%d, v%d, v%d" % (acc+r, acc+r, acc+8+r))
        for r in range(8):
            ops.append("v_fma_f32 v%d, v%d, v%d, v%d" % (tm+r, tm+r, VAR, VAR))
        for r in range(8):
            ops.append("v_rcp_f32 v%d, v%d" % (tm+r, tm+r))
        ops.append("s_nop 0")
        for r in range(8):
            ops.append("v_mul_f32 v%d, v%d, v%d" % (acc+r, acc+r, tm+r))
            if r % 2 == 1:
                ops.append("v_cvt_pk_bf16_f32 v%d, v%d, v%d" % (pk + r//2, acc+r-1, acc+r))
        def st():
            if t == 0:
                e("s_mul_i32 s13, s6, 112")
                e("s_mul_i32 s14, s7, 7")
                e("s_add_u32 s13, s13, s14")
                e("s_lshl_b32 s13, s13, 10")
                e("s_add_u32 s13, s13, 0x%x" % HT)
            if t == 4:
                e("s_add_u32 s13, s13, 4096")
            k.vmem("buffer_store_dwordx4 v[%d:%d], v5, s[36:39], s13 offen offset:%d" % (pk, pk+3, (t % 4)*1024), "st")
        ops.append(st)
        return ops
    for g in range(PF):
        rd(g)
    for g in range(total):
        t, s = divmod(g, 32)
        if g + PF < total: rd(g + PF)
        try_issue()
        if g == 14: side.extend(stats_ops())
        if s == 4 and t >= 1:
            side.extend(epi_qk(t-1, ACC[(t-1) % 2]) if qkv else epi_gu(t-1, ACC[(t-1) % 2]))
        k.wait_lg(("wf", g))
        acc = ACC[t % 2]
        wf = "v[%d:%d]" % (WF+4*(g % 4), WF+4*(g % 4)+3)
        xf = "a[%d:%d]" % (4*s, 4*s+3)
        c = "0" if s == 0 else "v[%d:%d]" % (acc, acc+15)
        swap = qkv and t == 2
        if not swap:
            e("v_mfma_f32_32x32x16_bf16 v[%d:%d], %s, %s, %s" % (acc, acc+15, wf, xf, c))
        else:
            e("v_mfma_f32_32x32x16_bf16 v[%d:%d], %s, %s, %s" % (acc, acc+15, xf, wf, c))
        run_side(4)
        if s == 31:
            if t == 0:
                run_side(1000)
                e("s_nop 1")
            cf = "v[%d:%d]" % (CSF+4*t, CSF+4*t+3)
            mf = "v[%d:%d]" % (MFR, MFR+3)
            if not swap:
                e("v_mfma_f32_32x32x16_bf16 v[%d:%d], %s, %s, v[%d:%d]" % (acc, acc+15, cf, mf, acc, acc+15))
            else:
                e("v_mfma_f32_32x32x16_bf16 v[%d:%d], %s, %s, v[%d:%d]" % (acc, acc+15, mf, cf, acc, acc+15))
    assert state["next"] == NCH
    run_side(1000)
    e("s_nop 15")
    if qkv:
        epi_v(ACC[(NT-1) % 2])
    else:
        side.extend(epi_gu(NT-1, ACC[(NT-1) % 2]))
        run_side(1000)
    k.label(Lend)
    e("s_endpgm")
    return k.text(144, 128)

NEGBIG = f32bits(-1e30)
def gen_attn():
    k = Kern("attn_kernel")
    e = k.e
    e("s_cmp_ge_u32 s2, 256")
    e("s_cbranch_scc1 L_attn_end")
    e("s_load_dwordx2 s[32:33], s[0:1], 72")
    e("v_lshrrev_b32 v1, 6, v0")
    e("v_and_b32 v2, 63, v0")
    e("v_and_b32 v3, 31, v0")
    e("v_readfirstlane_b32 s3, v1")
    e("v_bfe_u32 v4, v0, 5, 1")
    e("v_lshlrev_b32 v5, 4, v2")
    e("s_and_b32 s4, s2, 7")
    e("s_lshr_b32 s5, s2, 3")
    e("s_and_b32 s6, s5, 3")
    e("s_lshl_b32 s4, s4, 2")
    e("s_add_u32 s4, s4, s6")
    e("s_lshr_b32 s5, s5, 2")
    e("s_lshl_b32 s6, s5, 3")
    e("s_add_u32 s6, s6, s3")
    e("s_lshl_b32 s7, s5, 3")
    e("s_lshl_b32 s8, s3, 1")
    e("s_add_u32 s7, s7, s8")
    e("s_sub_i32 s7, s7, 8")
    e("s_max_i32 s7, s7, 0")
    e("s_lshl_b32 s9, s4, 6")
    e("s_add_u32 s7, s7, s9")
    e("s_lshl_b32 s7, s7, 10")
    e("s_add_u32 s10, s7, 0x%x" % KF)
    e("s_add_u32 s11, s7, 0x%x" % VF)
    e("s_add_u32 s12, s9, s6")
    e("s_lshl_b32 s12, s12, 10")
    e("s_add_u32 s12, s12, 0x%x" % QF)
    e("s_lshl_b32 s8, s3, 11")
    e("s_waitcnt lgkmcnt(0)")
    ws_srd(k, 32, 36)
    e("s_mov_b32 m0, s8")
    e("s_nop 0")
    k.vmem("buffer_load_dwordx4 v5, s[36:39], s10 offen lds", "kv")
    k.vmem("buffer_load_dwordx4 v5, s[36:39], s10 offen offset:1024 lds", "kv")
    e("s_add_u32 m0, s8, 16384")
    Q = 8
    k.vmem("buffer_load_dwordx4 v[%d:%d], v5, s[36:39], s12 offen" % (Q, Q+3), "kv")
    k.vmem("buffer_load_dwordx4 v5, s[36:39], s11 offen lds", "kv")
    k.vmem("buffer_load_dwordx4 v5, s[36:39], s11 offen offset:1024 lds", "kv")
    KFR = 12
    S = [48, 64]
    MF, MD, NB = 80, 96, 112
    NM = 128
    VFR = [144, 152]
    P = [160, 168]
    O = 176
    M, T0, T1 = 6, 7, 14
    T1 = 192
    e("v_lshlrev_b32 v6, 2, v4")
    e("v_sub_u32 v6, v3, v6")
    e("s_mov_b32 s13, 0x%x" % NEGBIG)
    e("v_mov_b32 v7, s13")
    for r in range(16):
        a = (r & 3) + 8*(r >> 2)
        e("v_cmp_gt_i32 s[%d:%d], %d, v6" % (40+2*r, 41+2*r, a))
    for r in range(16):
        e("v_cndmask_b32 v%d, v7, 0, s[%d:%d]" % (MF+r, 40+2*r, 41+2*r))
        e("v_cndmask_b32 v%d, 0, v7, s[%d:%d]" % (MD+r, 40+2*r, 41+2*r))
        e("v_mov_b32 v%d, v7" % (NB+r))
    e("v_cmp_eq_u32 s[40:41], 16, v3")
    e("v_cmp_eq_u32 s[42:43], 20, v3")
    e("s_mov_b32 s13, 0x%x" % ONES_BF16)
    e("v_mov_b32 v7, s13")
    e("s_or_b64 s[40:41], s[40:41], s[42:43]")
    e("s_nop 0")
    e("v_cndmask_b32 v7, 0, v7, s[40:41]")
    for r in range(16):
        e("v_mov_b32 v%d, v7" % (VFR[0]+r))
    e("s_mov_b32 s40, 0x0000ffff")
    e("s_mov_b32 s41, 0x0000ffff")
    e("s_lshl_b32 s8, s3, 10")
    e("v_add_u32 v196, s8, v5")
    e("v_and_b32 v197, 15, v3")
    e("v_lshlrev_b32 v197, 4, v197")
    e("v_lshl_add_u32 v197, v4, 8, v197")
    e("v_add_u32 v197, s8, v197")
    k.wait_vm("kv")
    e("s_barrier")
    for i in range(9):
        k.lds("ds_read_b128 v[%d:%d], v196 offset:%d" % (KFR+4*i, KFR+4*i+3, i*1024), ("k", i))
    def rdv(i):
        b = VFR[i % 2]
        e("s_mov_b64 exec, s[40:41]")
        k.lds("ds_read_b128 v[%d:%d], v197 offset:%d" % (b, b+3, 16384 + i*1024), ("v", i))
        k.lds("ds_read_b128 v[%d:%d], v197 offset:%d" % (b+4, b+7, 16384 + i*1024 + 512), ("v", i))
        e("s_mov_b64 exec, -1")
    def smfma(i, cval):
        d = S[i % 2]
        kf = "v[%d:%d]" % (KFR+4*i, KFR+4*i+3)
        q = "v[%d:%d]" % (Q, Q+3)
        if i < 8:
            la, lb = k.newlabel(), k.newlabel()
            e("s_cmp_lt_u32 s6, %d" % (8 - i))
            e("s_cbranch_scc1 %s" % la)
            e("v_mfma_f32_32x32x16_bf16 v[%d:%d], %s, %s, %s" % (d, d+15, kf, q, cval))
            e("s_branch %s" % lb)
            k.label(la)
            e("v_mfma_f32_32x32x16_bf16 v[%d:%d], %s, %s, v[%d:%d]" % (d, d+15, kf, q, NB, NB+15))
            k.label(lb)
        else:
            e("v_mfma_f32_32x32x16_bf16 v[%d:%d], %s, %s, %s" % (d, d+15, kf, q, cval))
    def c1(i):
        if i == 0: return "v[%d:%d]" % (MF, MF+15)
        if i == 8: return "v[%d:%d]" % (MD, MD+15)
        return "0"
    def c2(i):
        if i == 0: return "v[%d:%d]" % (MF, MF+15)
        if i == 8: return "v[%d:%d]" % (MD, MD+15)
        return "v[%d:%d]" % (NM, NM+15)
    k.wait_lg(("k", 0))
    smfma(0, c1(0))
    for i in range(9):
        if i + 1 < 9:
            k.wait_lg(("k", i+1))
            smfma(i+1, c1(i+1))
            e("s_nop 7")
        else:
            e("s_nop 15")
        d = S[i % 2]
        for j in range(8):
            if i == 0 and j == 0:
                e("v_max_f32 v%d, v%d, v%d" % (M, d, d+1))
            else:
                e("v_max3_f32 v%d, v%d, v%d, v%d" % (M, M, d+2*j, d+2*j+1))
    rdv(0)
    e("v_mov_b32 v%d, v%d" % (T0, M))
    e("s_nop 1")
    e("v_permlane32_swap_b32 v%d, v%d" % (M, T0))
    e("s_nop 1")
    e("v_max_f32 v%d, v%d, v%d" % (M, M, T0))
    for r in range(16):
        e("v_sub_f32 v%d, v%d, v%d" % (MF+r, MF+r, M))
    for r in range(16):
        e("v_sub_f32 v%d, 0, v%d" % (NM+r, M))
    smfma(0, c2(0))
    for r in range(16):
        e("v_sub_f32 v%d, v%d, v%d" % (MD+r, MD+r, M))
    for i in range(9):
        if i + 1 < 9:
            smfma(i+1, c2(i+1))
            rdv(i+1)
            e("s_nop 3")
        else:
            e("s_nop 11")
        d = S[i % 2]; p = P[i % 2]
        for r in range(16):
            e("v_exp_f32 v%d, v%d" % (d+r, d+r))
            if r % 2 == 1 and r >= 3:
                e("v_cvt_pk_bf16_f32 v%d, v%d, v%d" % (p + (r-3)//2, d+r-3, d+r-2))
        e("s_nop 0")
        e("v_cvt_pk_bf16_f32 v%d, v%d, v%d" % (p + 7, d+14, d+15))
        k.wait_lg(("v", i))
        e("s_nop 1")
        b = VFR[i % 2]
        c = "0" if i == 0 else "v[%d:%d]" % (O, O+15)
        e("v_mfma_f32_32x32x16_bf16 v[%d:%d], v[%d:%d], v[%d:%d], %s" % (O, O+15, b, b+3, p, p+3, c))
        e("v_mfma_f32_32x32x16_bf16 v[%d:%d], v[%d:%d], v[%d:%d], v[%d:%d]" % (O, O+15, b+4, b+7, p+4, p+7, O, O+15))
    e("s_lshl_b32 s13, s6, 5")
    e("s_add_u32 s13, s13, s4")
    e("s_lshl_b32 s13, s13, 10")
    e("s_add_u32 s13, s13, 0x%x" % OT)
    e("s_nop 15")
    e("v_rcp_f32 v%d, v%d" % (T0, O+8))
    e("s_nop 0")
    for r in range(8):
        e("v_mul_f32 v%d, v%d, v%d" % (O+r, T0, O+r))
        if r % 2 == 1:
            e("v_cvt_pk_bf16_f32 v%d, v%d, v%d" % (P[0] + r//2, O+r-1, O+r))
    e("buffer_store_dwordx4 v[%d:%d], v5, s[36:39], s13 offen" % (P[0], P[0]+3))
    k.label("L_attn_end")
    e("s_endpgm")
    return k.text(200, 0)

def gen_splitk(name, KS, ABASE, WBASE, final):
    k = Kern(name)
    e = k.e
    KW = KS // 4
    D = min(KW, 14)
    Lend = "L_%s_end" % name
    e("s_cmp_ge_u32 s2, 256")
    e("s_cbranch_scc1 %s" % Lend)
    e("s_load_dwordx2 s[32:33], s[0:1], 72")
    if final:
        e("s_load_dwordx2 s[30:31], s[0:1], 56")
    e("v_lshrrev_b32 v1, 6, v0")
    e("v_and_b32 v2, 63, v0")
    e("v_and_b32 v3, 31, v0")
    e("v_readfirstlane_b32 s3, v1")
    e("v_bfe_u32 v4, v0, 5, 1")
    e("v_lshlrev_b32 v5, 4, v2")
    e("s_and_b32 s4, s2, 7")
    e("s_lshr_b32 s5, s2, 3")
    e("s_and_b32 s6, s4, 3"); e("s_lshr_b32 s7, s4, 2")
    e("s_and_b32 s8, s5, 7"); e("s_lshl_b32 s6, s6, 3"); e("s_add_u32 s6, s6, s8")
    e("s_lshr_b32 s8, s5, 3"); e("s_lshl_b32 s7, s7, 2"); e("s_add_u32 s7, s7, s8")
    e("s_lshr_b32 s8, s3, 1")
    e("s_and_b32 s9, s3, 1")
    e("s_lshl_b32 s6, s6, 1")
    e("s_add_u32 s10, s6, s8")
    e("s_xor_b32 s11, s10, 1")
    e("s_lshl_b32 s12, s7, 1")
    e("s_add_u32 s12, s12, s9")
    e("s_xor_b32 s13, s12, 1")
    e("s_mul_i32 s14, s3, %d" % (KW*1024))
    for (dst, src, base) in ((16, 10, ABASE), (17, 11, ABASE), (18, 12, WBASE), (19, 13, WBASE)):
        e("s_mul_i32 s%d, s%d, %d" % (dst, src, KS*1024))
        e("s_add_u32 s%d, s%d, s14" % (dst, dst))
        e("s_add_u32 s%d, s%d, 0x%x" % (dst, dst, base))
    e("s_lshl_b32 s20, s10, 15")
    e("s_lshl_b32 s21, s12, 11")
    e("s_add_u32 s20, s20, s21")
    e("s_add_u32 s20, s20, 0x%x" % XT)
    e("s_waitcnt lgkmcnt(0)")
    ws_srd(k, 32, 36)
    RES = 8
    ACC = 16
    k.vmem("buffer_load_dwordx4 v[%d:%d], v5, s[36:39], s20 offen" % (RES, RES+3), "res")
    k.vmem("buffer_load_dwordx4 v[%d:%d], v5, s[36:39], s20 offen offset:1024" % (RES+4, RES+7), "res")
    def issue(s):
        slot = s % D
        if s % 4 == 0 and s > 0:
            for q in range(4): e("s_add_u32 s%d, s%d, 4096" % (16+q, 16+q))
        for q in range(4):
            k.vmem("buffer_load_dwordx4 a[%d:%d], v5, s[36:39], s%d offen offset:%d" %
                   (16*slot+4*q, 16*slot+4*q+3, 16+q, (s % 4)*1024), ("k", s))
    for s in range(D):
        issue(s)
    for s in range(KW):
        k.wait_vm(("k", s))
        slot = s % D
        A = ["a[%d:%d]" % (16*slot+4*q, 16*slot+4*q+3) for q in range(4)]
        for u in range(4):
            al, be = u >> 1, u & 1
            acc = ACC + 16*u
            c = "0" if s == 0 else "v[%d:%d]" % (acc, acc+15)
            e("v_mfma_f32_32x32x16_bf16 v[%d:%d], %s, %s, %s" % (acc, acc+15, A[2+be], A[al], c))
        if s + D < KW:
            issue(s + D)
    for u in range(1, 4):
        e("s_xor_b32 s21, s3, %d" % u)
        e("s_mul_i32 s21, s21, 12288")
        e("s_add_u32 s21, s21, %d" % ((u-1)*4096))
        e("v_add_u32 v%d, s21, v5" % (80+u))
    e("s_mul_i32 s21, s3, 12288")
    e("v_add_u32 v80, s21, v5")
    e("s_nop 7")
    for u in range(1, 4):
        for q in range(4):
            k.lds("ds_write_b128 v%d, v[%d:%d] offset:%d" % (80+u, ACC+16*u+4*q, ACC+16*u+4*q+3, q*1024), "w")
    k.wait_lg_all()
    e("s_barrier")
    for u in range(1, 4):
        for q in range(4):
            k.lds("ds_read_b128 v[%d:%d], v80 offset:%d" % (ACC+16*u+4*q, ACC+16*u+4*q+3, (u-1)*4096 + q*1024), ("r", u))
    k.wait_vm("res")
    for j in range(8):
        e("v_lshlrev_b32 v%d, 16, v%d" % (84+2*j, RES+j))
        e("v_and_b32 v%d, 0xffff0000, v%d" % (85+2*j, RES+j))
    for r in range(16):
        e("v_add_f32 v%d, v%d, v%d" % (ACC+r, ACC+r, 84+r))
    for u in range(1, 4):
        k.wait_lg(("r", u))
        for r in range(16):
            e("v_add_f32 v%d, v%d, v%d" % (ACC+r, ACC+r, ACC+16*u+r))
    for j in range(8):
        e("v_cvt_pk_bf16_f32 v%d, v%d, v%d" % (RES+j, ACC+2*j, ACC+2*j+1))
    if not final:
        k.vmem("buffer_store_dwordx4 v[%d:%d], v5, s[36:39], s20 offen" % (RES, RES+3))
        k.vmem("buffer_store_dwordx4 v[%d:%d], v5, s[36:39], s20 offen offset:1024" % (RES+4, RES+7))
        e("s_mov_b32 s22, 0x%x" % ONES_BF16)
        e("v_mov_b32 v84, 0"); e("v_mov_b32 v85, 0")
        for j in range(8):
            e("v_dot2_f32_bf16 v84, v%d, s22, v84" % (RES+j))
            e("v_dot2_f32_bf16 v85, v%d, v%d, v85" % (RES+j, RES+j))
        e("s_lshl_b32 s21, s10, 13")
        e("s_lshl_b32 s22, s7, 10")
        e("s_add_u32 s21, s21, s22")
        e("s_lshl_b32 s22, s9, 3")
        e("s_add_u32 s21, s21, s22")
        e("s_add_u32 s21, s21, 0x%x" % STATS)
        k.vmem("buffer_store_dwordx2 v[84:85], v5, s[36:39], s21 offen")
    else:
        e("s_mov_b32 s40, s30"); e("s_mov_b32 s41, s31"); e("s_mov_b32 s42, %d" % (2048*512*2)); e("s_mov_b32 s43, 0x20000")
        e("v_lshlrev_b32 v84, 10, v3")
        e("v_lshl_add_u32 v84, v4, 4, v84")
        e("s_lshl_b32 s21, s10, 15")
        e("s_lshl_b32 s22, s12, 6")
        e("s_add_u32 s21, s21, s22")
        for c in range(2):
            b = RES + 4*c
            e("v_permlane32_swap_b32 v%d, v%d" % (b, b+2))
            e("v_permlane32_swap_b32 v%d, v%d" % (b+1, b+3))
        e("s_nop 1")
        for c in range(2):
            b = RES + 4*c
            k.vmem("buffer_store_dwordx4 v[%d:%d], v84, s[40:43], s21 offen offset:%d" % (b, b+3, 32*c))
    k.label(Lend)
    e("s_endpgm")
    return k.text(100, 16*D)

HEADER = """; Kernarg layout for this problem (80 bytes, ptrs only, base s[0:1]):
;   offset   8: d_in[1] A_wqkv  shape=(512, 1536) dtype=bfloat16
"""

def main(out_path):
    layer = lambda last: [
        ("qkv_kernel", 256, 256, 12*8192 + 1024),
        ("attn_kernel", 256, 512, 32768),
        ("wo_kernel", 256, 256, 49152),
        ("gateup_kernel", 256, 256, 20*8192),
        ("downf_kernel" if last else "down_kernel", 256, 256, 49152),
    ]
    launches = [("prep_kernel", N_STRIP_WG + N_X_WG, 256, 1024)] + layer(False) + layer(True)
    txt = HEADER
    for name, g, b, lds in launches:
        txt += "; @launch kernel=%s grid=(%d,1,1) block=(%d,1,1) lds=%d\n" % (name, g, b, lds)
    txt += '.amdgcn_target "amdgcn-amd-amdhsa--gfx950"\n'
    txt += gen_prep() + gen_rowgemm("qkv") + gen_attn() + gen_splitk("wo_kernel", 32, OT, WO_F, False)
    txt += gen_rowgemm("gateup") + gen_splitk("down_kernel", 112, HT, WD_F, False) + gen_splitk("downf_kernel", 112, HT, WD_F, True)
    open(out_path, "w").write(txt)

if __name__ == "__main__":
    main(sys.argv[1] if len(sys.argv) > 1 else "k.s")
```

```python
import sys, struct

WQKV_F = 0x000000
WO_F   = 0x180000
WGU_F  = 0x200000
WD_F   = 0x580000
CS_QKV = 0x740000
CS_GU  = 0x750000
CS_DUM = 0x770000
XT     = 0x800000
STATS  = 0xA00000
QF     = 0xB00000
KF     = 0xD00000
VF     = 0xF00000
OT     = 0x1100000
HT     = 0x1300000
WS_SIZE = 0x10000000
STAMPS = 0x4000000
import os
STAMP = int(os.environ.get('STAMP', '0'))

def f32bits(x):
    return struct.unpack("<I", struct.pack("<f", x))[0]

class Kern:
    def __init__(self, name):
        self.name = name
        self.lines = []
        self.vm = []
        self.lg = []
        self.nlabel = 0
        self.nstamp = 0
    def e(self, s):
        self.lines.append("  " + s)
    def label(self, l):
        self.lines.append(l + ":")
    def newlabel(self, p="L"):
        self.nlabel += 1
        return "%s_%s_%d" % (p, self.name, self.nlabel)
    def vmem(self, s, tag=None):
        self.e(s); self.vm.append(tag)
    def lds(self, s, tag=None):
        self.e(s); self.lg.append(tag)
    def _need(self, lst, tag):
        idx = -1
        for i, t in enumerate(lst):
            if t == tag: idx = i
        return idx
    def wait_vm(self, tag):
        idx = self._need(self.vm, tag)
        if idx < 0: return
        n = len(self.vm) - 1 - idx
        self.e("s_waitcnt vmcnt(%d)" % min(n, 63))
        if n > 63:
            self.vm = self.vm[len(self.vm)-63:]
        else:
            self.vm = self.vm[idx+1:]
    def wait_lg(self, tag):
        idx = self._need(self.lg, tag)
        if idx < 0: return
        n = len(self.lg) - 1 - idx
        self.e("s_waitcnt lgkmcnt(%d)" % min(n, 15))
        if n > 15:
            self.lg = self.lg[len(self.lg)-15:]
        else:
            self.lg = self.lg[idx+1:]
    def wait_all(self):
        self.e("s_waitcnt vmcnt(0) lgkmcnt(0)"); self.vm = []; self.lg = []
    def wait_lg_all(self):
        self.e("s_waitcnt lgkmcnt(0)"); self.lg = []
    def wait_vm_all(self):
        self.e("s_waitcnt vmcnt(0)"); self.vm = []
    def stamp(self):
        if not STAMP: return
        i = self.nstamp; self.nstamp += 1
        assert i < 12
        self.e("s_memrealtime s[%d:%d]" % (76+2*i, 77+2*i))
    def stamp_flush(self, nwaves, slot):
        if not STAMP: return
        self.e("s_waitcnt vmcnt(0)")
        self.stamp()
        self.e("s_waitcnt lgkmcnt(0)")
        self.e("s_mul_i32 s74, s2, %d" % nwaves)
        self.e("s_add_u32 s74, s74, s3")
        self.e("s_lshl_b32 s74, s74, 6")
        self.e("s_add_u32 s74, s74, 0x%x" % (STAMPS + slot*0x40000))
        self.e("v_mov_b32 v1, 0")
        for i in range(self.nstamp):
            self.e("v_mov_b32 v2, s%d" % (76+2*i))
            self.e("buffer_store_dword v2, v1, s[36:39], s74 offen offset:%d" % (4*i))
            self.e("s_nop 1")
    def text(self, vgpr, agpr, sgpr=102):
        acc_off = (vgpr + 3) // 4 * 4
        nfv = acc_off + agpr if agpr else vgpr
        hdr = [".text", ".globl %s" % self.name, ".p2align 8", ".type %s,@function" % self.name, "%s:" % self.name]
        kd = [".section .rodata,\"a\"", ".p2align 6", ".amdhsa_kernel %s" % self.name,
              "  .amdhsa_next_free_vgpr %d" % nfv, "  .amdhsa_next_free_sgpr %d" % sgpr,
              "  .amdhsa_accum_offset %d" % acc_off, "  .amdhsa_group_segment_fixed_size 0",
              "  .amdhsa_kernarg_size 80", "  .amdhsa_user_sgpr_count 2",
              "  .amdhsa_user_sgpr_kernarg_segment_ptr 1", "  .amdhsa_system_sgpr_workgroup_id_x 1",
              ".end_amdhsa_kernel"]
        return "\n".join(hdr + self.lines + kd) + "\n"

def ws_srd(k, s_ptr, s_srd):
    k.e("s_mov_b32 s%d, s%d" % (s_srd, s_ptr))
    k.e("s_mov_b32 s%d, s%d" % (s_srd+1, s_ptr+1))
    k.e("s_mov_b32 s%d, 0x%x" % (s_srd+2, WS_SIZE))
    k.e("s_mov_b32 s%d, 0x20000" % (s_srd+3))

ONES_BF16 = 0x3f803f80

N_STRIP_WG = 240
N_X_WG = 256
def gen_prep():
    k = Kern("prep_kernel")
    e = k.e
    e("s_cmp_ge_u32 s2, %d" % (N_STRIP_WG + N_X_WG))
    e("s_cbranch_scc1 L_prep_end")
    e("s_load_dwordx16 s[16:31], s[0:1], 0")
    e("s_load_dwordx2 s[32:33], s[0:1], 72")
    e("v_lshrrev_b32 v1, 6, v0")
    e("v_and_b32 v2, 63, v0")
    e("v_and_b32 v3, 31, v0")
    e("v_readfirstlane_b32 s3, v1")
    e("v_bfe_u32 v4, v0, 5, 1")
    e("s_mov_b32 s53, 0x%x" % ONES_BF16)
    e("s_waitcnt lgkmcnt(0)")
    ws_srd(k, 32, 36)
    e("s_mov_b32 s43, 0x20000")
    e("s_cmp_ge_u32 s2, %d" % N_STRIP_WG)
    e("s_cbranch_scc1 L_prep_x")
    e("s_mov_b32 s47, 256")
    e("s_mov_b32 s48, 0")
    e("s_mov_b32 s50, 256")
    e("s_lshl_b32 s52, s3, 3")
    e("s_cmp_lt_u32 s2, 48")
    e("s_cbranch_scc0 L_prep_n1")
    e("s_mov_b32 s40, s18"); e("s_mov_b32 s41, s19"); e("s_mov_b32 s42, %d" % (512*1536*2))
    e("s_mov_b32 s44, 3072")
    e("s_lshl_b32 s45, s2, 6")
    e("s_lshr_b32 s54, s2, 4")
    e("s_and_b32 s55, s2, 15")
    e("s_mul_i32 s55, s55, 3")
    e("s_add_u32 s55, s55, s54")
    e("s_lshl_b32 s46, s55, 15")
    e("s_add_u32 s46, s46, 0x%x" % WQKV_F)
    e("s_lshl_b32 s49, s55, 10")
    e("s_add_u32 s49, s49, 0x%x" % CS_QKV)
    e("s_branch L_prep_strip")
    k.label("L_prep_n1")
    e("s_cmp_lt_u32 s2, 160")
    e("s_cbranch_scc0 L_prep_n2")
    e("s_mov_b32 s42, %d" % (512*1792*2))
    e("s_mov_b32 s44, 3584")
    e("s_mov_b32 s47, 32768")
    e("s_mov_b32 s50, 1024")
    e("s_sub_u32 s54, s2, 48")
    e("s_mov_b32 s40, s24"); e("s_mov_b32 s41, s25")
    e("s_cmp_lt_u32 s2, 104")
    e("s_cbranch_scc1 L_prep_gu")
    e("s_sub_u32 s54, s2, 104")
    e("s_mov_b32 s40, s26"); e("s_mov_b32 s41, s27")
    e("s_mov_b32 s48, 256")
    k.label("L_prep_gu")
    e("s_lshl_b32 s45, s54, 6")
    e("s_lshl_b32 s46, s54, 16")
    e("s_add_u32 s46, s46, 0x%x" % WGU_F)
    e("s_lshl_b32 s49, s54, 11")
    e("s_add_u32 s49, s49, 0x%x" % CS_GU)
    e("s_branch L_prep_strip")
    k.label("L_prep_n2")
    e("s_mov_b32 s44, 1024")
    e("s_mov_b32 s49, 0x%x" % CS_DUM)
    e("s_cmp_lt_u32 s2, 176")
    e("s_cbranch_scc0 L_prep_n3")
    e("s_mov_b32 s40, s20"); e("s_mov_b32 s41, s21"); e("s_mov_b32 s42, %d" % (512*512*2))
    e("s_sub_u32 s54, s2, 160")
    e("s_lshl_b32 s45, s54, 6")
    e("s_lshl_b32 s46, s54, 15")
    e("s_add_u32 s46, s46, 0x%x" % WO_F)
    e("s_branch L_prep_strip")
    k.label("L_prep_n3")
    e("s_mov_b32 s40, s28"); e("s_mov_b32 s41, s29"); e("s_mov_b32 s42, %d" % (1792*512*2))
    e("s_sub_u32 s54, s2, 176")
    e("s_and_b32 s55, s54, 3")
    e("s_lshr_b32 s54, s54, 2")
    e("s_lshl_b32 s45, s54, 6")
    e("s_mul_i32 s46, s54, %d" % (112*1024))
    e("s_add_u32 s46, s46, 0x%x" % WD_F)
    e("s_lshl_b32 s55, s55, 5")
    e("s_add_u32 s52, s52, s55")
    k.label("L_prep_strip")
    e("s_lshl_b32 s54, s44, 2")
    e("v_mul_lo_u32 v5, v4, s54")
    e("v_lshl_add_u32 v5, v3, 1, v5")
    e("v_add_u32 v5, s45, v5")
    e("v_lshrrev_b32 v7, 4, v3")
    e("v_and_b32 v8, 15, v3")
    e("v_lshlrev_b32 v8, 4, v8")
    e("v_lshl_add_u32 v8, v4, 9, v8")
    e("v_mul_lo_u32 v6, v7, s47")
    e("v_add_u32 v6, v6, v8")
    e("s_add_u32 s54, s46, s48")
    e("v_add_u32 v6, s54, v6")
    e("v_mul_lo_u32 v9, v7, s50")
    e("v_add_u32 v9, v9, v8")
    e("s_add_u32 s54, s49, s48")
    e("v_add_u32 v9, s54, v9")
    e("v_mov_b32 v10, 0")
    e("s_cmp_ge_u32 s52, 112")
    e("s_cbranch_scc1 L_prep_cs")
    e("s_lshl_b32 s54, s52, 4")
    e("s_mul_i32 s54, s54, s44")
    pat = [0, 1, 2, 3, 8, 9, 10, 11]
    for j in range(8):
        e("s_mul_i32 s55, s44, %d" % pat[j])
        e("s_add_u32 s%d, s54, s55" % (60 + j))
    e("s_lshl_b32 s56, s44, 4")
    e("s_lshl_b32 s57, s52, 10")
    for ks in range(8):
        for j in range(8):
            k.vmem("buffer_load_ushort v%d, v5, s[40:43], s%d offen" % (64 + 8*ks + j, 60 + j), ("ld", ks))
        if ks < 7:
            e("v_add_u32 v5, s56, v5")
        if ks == 6:
            k.wait_vm(("ld", 0))
    for ks in range(8):
        k.wait_vm(("ld", ks))
        for j in range(4):
            e("v_lshl_or_b32 v%d, v%d, 16, v%d" % (16 + 4*ks + j, 64 + 8*ks + 2*j + 1, 64 + 8*ks + 2*j))
        for j in range(4):
            e("v_dot2_f32_bf16 v10, v%d, s53, v10" % (16 + 4*ks + j))
        if ks == 4: e("s_add_u32 s57, s57, 4096")
        k.vmem("buffer_store_dwordx4 v[%d:%d], v6, s[36:39], s57 offen offset:%d" % (16+4*ks, 19+4*ks, (ks % 4)*1024), "st")
    k.label("L_prep_cs")
    e("s_nop 3")
    e("v_lshlrev_b32 v11, 2, v0")
    e("ds_write_b32 v11, v10")
    e("s_waitcnt lgkmcnt(0)")
    e("s_barrier")
    e("s_cmp_lg_u32 s3, 0")
    e("s_cbranch_scc1 L_prep_end")
    e("v_lshlrev_b32 v11, 2, v3")
    for w in range(4):
        e("ds_read2_b32 v[%d:%d], v11 offset0:%d offset1:%d" % (48+2*w, 49+2*w, w*64, w*64+32))
    e("s_waitcnt lgkmcnt(0)")
    e("v_add_f32 v48, v48, v49"); e("v_add_f32 v50, v50, v51"); e("v_add_f32 v52, v52, v53"); e("v_add_f32 v54, v54, v55")
    e("v_add_f32 v48, v48, v50"); e("v_add_f32 v52, v52, v54"); e("v_add_f32 v48, v48, v52")
    e("v_cvt_pk_bf16_f32 v49, v48, v48")
    e("v_lshlrev_b32 v49, 16, v49")
    e("v_sub_f32 v49, v48, v49")
    e("v_cvt_pk_bf16_f32 v52, v48, v49")
    e("v_cmp_eq_u32 vcc, 0, v4")
    e("v_mov_b32 v54, 0")
    e("v_mov_b32 v55, 0")
    e("v_cndmask_b32 v52, 0, v52, vcc")
    e("v_mov_b32 v53, v52")
    e("buffer_store_dwordx4 v[52:55], v9, s[36:39], 0 offen")
    e("s_endpgm")
    k.label("L_prep_x")
    e("s_mov_b32 s40, s16"); e("s_mov_b32 s41, s17"); e("s_mov_b32 s42, %d" % (2048*512*2))
    e("s_sub_u32 s54, s2, %d" % N_STRIP_WG)
    e("s_lshl_b32 s54, s54, 2")
    e("s_add_u32 s54, s54, s3")
    e("s_lshr_b32 s55, s54, 4")
    e("s_and_b32 s56, s54, 15")
    e("s_lshl_b32 s57, s55, 15")
    e("s_lshl_b32 s58, s56, 6")
    e("s_add_u32 s58, s58, s57")
    e("v_lshlrev_b32 v5, 10, v3")
    e("v_lshl_add_u32 v5, v4, 3, v5")
    for q in range(4):
        e("buffer_load_dwordx2 v[%d:%d], v5, s[40:43], s58 offen offset:%d" % (16+2*q, 17+2*q, 16*q))
    e("v_lshlrev_b32 v6, 4, v2")
    e("s_lshl_b32 s59, s56, 11")
    e("s_add_u32 s59, s59, s57")
    e("s_add_u32 s59, s59, 0x%x" % XT)
    e("s_lshl_b32 s60, s55, 13")
    e("s_lshr_b32 s61, s56, 1")
    e("s_lshl_b32 s61, s61, 10")
    e("s_add_u32 s60, s60, s61")
    e("s_and_b32 s61, s56, 1")
    e("s_lshl_b32 s61, s61, 3")
    e("s_add_u32 s60, s60, s61")
    e("s_add_u32 s60, s60, 0x%x" % STATS)
    e("v_mov_b32 v10, 0"); e("v_mov_b32 v11, 0")
    e("s_waitcnt vmcnt(0)")
    e("buffer_store_dwordx4 v[16:19], v6, s[36:39], s59 offen")
    e("buffer_store_dwordx4 v[20:23], v6, s[36:39], s59 offen offset:1024")
    for q in range(8):
        e("v_dot2_f32_bf16 v10, v%d, s53, v10" % (16+q))
        e("v_dot2_f32_bf16 v11, v%d, v%d, v11" % (16+q, 16+q))
    e("s_nop 3")
    e("buffer_store_dwordx2 v[10:11], v6, s[36:39], s60 offen")
    k.label("L_prep_end")
    e("s_endpgm")
    return k.text(128, 0)

def stats_issue(k, s_srd, s_off, v_l16, vb):
    for cq in range(8):
        if cq == 4:
            k.e("s_add_u32 s%d, s%d, 4096" % (s_off, s_off))
        k.vmem("buffer_load_dwordx4 v[%d:%d], v%d, s[%d:%d], s%d offen offset:%d" %
               (vb+4*cq, vb+4*cq+3, v_l16, s_srd, s_srd+3, s_off, (cq % 4)*1024), "stats")

def stats_reduce_ops(vb, v_mean, v_rstd, v_t0, v_t1, v_var, v_mfrag):
    ops = []
    step = 1
    while step < 16:
        for c in range(0, 16, 2*step):
            ops.append("v_add_f32 v%d, v%d, v%d" % (vb+2*c, vb+2*c, vb+2*(c+step)))
            ops.append("v_add_f32 v%d, v%d, v%d" % (vb+2*c+1, vb+2*c+1, vb+2*(c+step)+1))
        step *= 2
    ops.append("v_mov_b32 v%d, v%d" % (v_t0, vb))
    ops.append("v_mov_b32 v%d, v%d" % (v_t1, vb+1))
    ops.append("s_nop 1")
    ops.append("v_permlane32_swap_b32 v%d, v%d" % (vb, v_t0))
    ops.append("v_permlane32_swap_b32 v%d, v%d" % (vb+1, v_t1))
    ops.append("s_nop 1")
    ops.append("v_add_f32 v%d, v%d, v%d" % (vb, vb, v_t0))
    ops.append("v_add_f32 v%d, v%d, v%d" % (vb+1, vb+1, v_t1))
    ops.append("v_mul_f32 v%d, 0x%x, v%d" % (v_mean, f32bits(-1.0/512), vb))
    ops.append("v_mul_f32 v%d, 0x%x, v%d" % (v_t0, f32bits(1.0/512), vb+1))
    ops.append("v_fma_f32 v%d, -v%d, v%d, v%d" % (v_t0, v_mean, v_mean, v_t0))
    ops.append("v_max_f32 v%d, 0, v%d" % (v_t0, v_t0))
    ops.append("v_add_f32 v%d, 0x%x, v%d" % (v_var, f32bits(1e-5), v_t0))
    ops.append("v_rsq_f32 v%d, v%d" % (v_rstd, v_var))
    ops.append("v_cvt_pk_bf16_f32 v%d, v%d, v%d" % (v_mfrag, v_mean, v_mean))
    ops.append("v_lshlrev_b32 v%d, 16, v%d" % (v_t0, v_mfrag))
    ops.append("v_sub_f32 v%d, v%d, v%d" % (v_t0, v_mean, v_t0))
    ops.append("v_cvt_pk_bf16_f32 v%d, v%d, v%d" % (v_mfrag+1, v_t0, v_t0))
    ops.append("v_mov_b32 v%d, v%d" % (v_mfrag+2, v_mfrag))
    ops.append("v_mov_b32 v%d, v%d" % (v_mfrag+3, v_mfrag+1))
    return ops

SIDE_BUDGET = int(os.environ.get('SIDE', '2'))
LOG2E = 1.4426950408889634
QSCALE = 0.25 * LOG2E

def gen_rowgemm(kind):
    qkv = kind == "qkv"
    k = Kern("qkv_kernel" if qkv else "gateup_kernel")
    e = k.e
    NT = 3 if qkv else 7
    NSLOT = 12 if qkv else 20
    WBASE = WQKV_F if qkv else WGU_F
    CSB = CS_QKV if qkv else CS_GU
    Lend = "L_%s_end" % kind
    Lload = "L_%s_loader" % kind
    NCH = NT*4
    e("s_cmp_ge_u32 s2, 256")
    e("s_cbranch_scc1 %s" % Lend)
    k.stamp()
    e("s_load_dwordx2 s[32:33], s[0:1], 72")
    e("v_lshrrev_b32 v1, 6, v0")
    e("v_and_b32 v2, 63, v0")
    e("v_and_b32 v3, 31, v0")
    e("v_readfirstlane_b32 s3, v1")
    e("v_bfe_u32 v4, v0, 5, 1")
    e("v_lshlrev_b32 v5, 4, v2")
    e("s_and_b32 s4, s2, 7")
    e("s_lshr_b32 s5, s2, 3")
    if qkv:
        e("s_and_b32 s6, s4, 3"); e("s_lshr_b32 s7, s4, 2")
        e("s_and_b32 s8, s5, 3"); e("s_lshl_b32 s6, s6, 2"); e("s_add_u32 s6, s6, s8")
        e("s_lshr_b32 s8, s5, 2"); e("s_lshl_b32 s7, s7, 3"); e("s_add_u32 s7, s7, s8")
    else:
        e("s_and_b32 s6, s4, 1"); e("s_lshr_b32 s7, s4, 1")
        e("s_and_b32 s8, s5, 7"); e("s_lshl_b32 s6, s6, 3"); e("s_add_u32 s6, s6, s8")
        e("s_lshr_b32 s8, s5, 3"); e("s_lshl_b32 s7, s7, 2"); e("s_add_u32 s7, s7, s8")
    e("s_cmp_ge_u32 s3, 4")
    e("s_cbranch_scc1 %s" % Lload)
    e("s_lshl_b32 s6, s6, 2")
    e("s_add_u32 s6, s6, s3")
    e("s_lshl_b32 s8, s6, 15")
    e("s_add_u32 s8, s8, 0x%x" % XT)
    e("s_lshl_b32 s11, s6, 13")
    e("s_add_u32 s11, s11, 0x%x" % STATS)
    e("s_mul_i32 s12, s7, %d" % (NT*1024))
    e("s_add_u32 s12, s12, 0x%x" % CSB)
    e("v_add_u32 v6, 0x10000, v5")
    e("v_add_u32 v7, 0x20000, v5")
    e("s_waitcnt lgkmcnt(0)")
    ws_srd(k, 32, 36)
    WF = 16
    ACC = [32, 48]
    ST = 64
    CSF = 96
    MFR = 124
    PK = 80
    MEAN, RSTD, T0, T1, SC1, VAR = 8, 9, 10, 11, 12, 13
    loads = []
    def mk_x(s):
        def f():
            if s % 4 == 0 and s > 0: e("s_add_u32 s8, s8, 4096")
            k.vmem("buffer_load_dwordx4 a[%d:%d], v5, s[36:39], s8 offen offset:%d" % (4*s, 4*s+3, (s % 4)*1024), ("x", s))
        return f
    def mk_st(cq):
        def f():
            if cq == 4: e("s_add_u32 s11, s11, 4096")
            k.vmem("buffer_load_dwordx4 v[%d:%d], v5, s[36:39], s11 offen offset:%d" % (ST+4*cq, ST+4*cq+3, (cq % 4)*1024), "stats")
        return f
    def mk_cs(t):
        def f():
            if t == 4: e("s_add_u32 s12, s12, 4096")
            k.vmem("buffer_load_dwordx4 v[%d:%d], v5, s[36:39], s12 offen offset:%d" % (CSF+4*t, CSF+4*t+3, (t % 4)*1024), "cs")
        return f
    loads = [mk_x(s) for s in range(24)] + [mk_st(c) for c in range(8)] + [mk_cs(t) for t in range(NT)] + [mk_x(s) for s in range(24, 32)]
    NPRE = 20
    for f in loads[:NPRE]: f()
    loads = loads[NPRE:]
    PF = 3
    total = NT*32
    side = []
    def rd(g):
        c = g // 8
        if g % 8 == 0:
            e("s_barrier")
        slot = c % NSLOT
        a = slot*8192 + (g % 8)*1024
        va, off = 5 + a // 65536, a % 65536
        k.lds("ds_read_b128 v[%d:%d], v%d offset:%d" % (WF+4*(g % 4), WF+4*(g % 4)+3, va, off), ("wf", g))
    def cost(x):
        if callable(x): return 2
        return 2 if x.startswith(("v_exp", "v_rcp", "v_rsq")) else 1
    def run_side(budget):
        while side and budget > 0:
            x = side.pop(0)
            budget -= cost(x)
            if callable(x): x()
            else: e(x)
    def epi_qk(t, acc):
        ops = []
        sc = SC1 if t == 0 else RSTD
        for r in range(16):
            ops.append("v_mul_f32 v%d, v%d, v%d" % (acc+r, sc, acc+r))
            if r % 2 == 1:
                ops.append("v_cvt_pk_bf16_f32 v%d, v%d, v%d" % (PK + 8*t + r//2, acc+r-1, acc+r))
        base = QF if t == 0 else KF
        def st():
            e("s_lshl_b32 s13, s7, 17")
            e("s_lshl_b32 s14, s6, 10")
            e("s_add_u32 s13, s13, s14")
            e("s_add_u32 s13, s13, 0x%x" % base)
            e("s_add_u32 s14, s13, 65536")
            k.vmem("buffer_store_dwordx4 v[%d:%d], v5, s[36:39], s13 offen" % (PK+8*t, PK+8*t+3), "st")
        def st2():
            k.vmem("buffer_store_dwordx4 v[%d:%d], v5, s[36:39], s14 offen" % (PK+8*t+4, PK+8*t+7), "st")
        ops.append(st); ops.append(st2)
        return ops
    def stats_ops():
        ops = [lambda: k.wait_vm("cs")]
        ops += stats_reduce_ops(ST, MEAN, RSTD, T0, T1, VAR, MFR)
        if qkv:
            ops.append("v_mul_f32 v%d, 0x%x, v%d" % (SC1, f32bits(QSCALE), RSTD))
            def wr():
                e("s_lshl_b32 s15, s3, 7")
                e("s_add_u32 s15, s15, %d" % (NSLOT*8192))
                e("v_lshl_add_u32 v14, v3, 2, s15")
                k.lds("ds_write_b32 v14, v%d" % RSTD, "stw")
                e("v_lshl_add_u32 v14, v4, 4, s15")
                k.wait_lg("stw")
                for g in range(4):
                    k.lds("ds_read_b128 v[%d:%d], v14 offset:%d" % (ST+4*g, ST+4*g+3, g*32), "str")
            ops.append(wr)
        else:
            ops.append("v_mul_f32 v%d, 0x%x, v%d" % (SC1, f32bits(-LOG2E), RSTD))
        return ops
    def epi_v(acc):
        k.wait_lg("str")
        for r in range(16):
            e("v_mul_f32 v%d, v%d, v%d" % (acc+r, ST+r, acc+r))
            if r % 2 == 1:
                e("v_cvt_pk_bf16_f32 v%d, v%d, v%d" % (PK + r//2, acc+r-1, acc+r))
        k.vmem("buffer_store_dwordx4 v[%d:%d], v14, s[36:39], s13 offen" % (PK, PK+3), "st")
        k.vmem("buffer_store_dwordx4 v[%d:%d], v14, s[36:39], s13 offen offset:512" % (PK+4, PK+7), "st")
    def epi_v_addr():
        return ["v_lshrrev_b32 v14, 4, v3", "v_lshlrev_b32 v14, 16, v14", "v_and_b32 v15, 15, v3",
                "v_lshl_add_u32 v14, v15, 4, v14", "v_lshl_add_u32 v14, v4, 8, v14",
                "s_lshl_b32 s13, s7, 17", "s_lshl_b32 s14, s6, 10", "s_add_u32 s13, s13, s14",
                "s_add_u32 s13, s13, 0x%x" % VF]
    def epi_gu(t, acc):
        ops = []
        pk = PK + 4*(t % 2)
        tm = PK + 8
        for r in range(8):
            ops.append("v_mul_f32 v%d, v%d, v%d" % (tm+r, SC1, acc+r))
        for r in range(8):
            ops.append("v_exp_f32 v%d, v%d" % (tm+r, tm+r))
            ops.append("v_mul_f32 v%d, v%d, v%d" % (acc+r, acc+r, acc+8+r))
        for r in range(8):
            ops.append("v_fma_f32 v%d, v%d, v%d, v%d" % (tm+r, tm+r, VAR, VAR))
        for r in range(8):
            ops.append("v_rcp_f32 v%d, v%d" % (tm+r, tm+r))
        ops.append("s_nop 0")
        for r in range(8):
            ops.append("v_mul_f32 v%d, v%d, v%d" % (acc+r, acc+r, tm+r))
            if r % 2 == 1:
                ops.append("v_cvt_pk_bf16_f32 v%d, v%d, v%d" % (pk + r//2, acc+r-1, acc+r))
        def st():
            if t == 0:
                e("s_mul_i32 s13, s6, 112")
                e("s_mul_i32 s14, s7, 7")
                e("s_add_u32 s13, s13, s14")
                e("s_lshl_b32 s13, s13, 10")
                e("s_add_u32 s13, s13, 0x%x" % HT)
            if t == 4:
                e("s_add_u32 s13, s13, 4096")
            k.vmem("buffer_store_dwordx4 v[%d:%d], v5, s[36:39], s13 offen offset:%d" % (pk, pk+3, (t % 4)*1024), "st")
        ops.append(st)
        return ops
    k.stamp()
    for g in range(PF):
        rd(g)
        if g == 0: k.stamp()
    for g in range(total):
        t, s = divmod(g, 32)
        if s == 0 and t > 0: k.stamp()
        if g + PF < total: rd(g + PF)
        if g == 20: side.extend(stats_ops())
        if s == 3 and t >= 1:
            side.extend(epi_qk(t-1, ACC[(t-1) % 2]) if qkv else epi_gu(t-1, ACC[(t-1) % 2]))
            if qkv and t == 2: side.extend(epi_v_addr())
        if t == 0: k.wait_vm(("x", s))
        k.wait_lg(("wf", g))
        acc = ACC[t % 2]
        wf = "v[%d:%d]" % (WF+4*(g % 4), WF+4*(g % 4)+3)
        xf = "a[%d:%d]" % (4*s, 4*s+3)
        c = "0" if s == 0 else "v[%d:%d]" % (acc, acc+15)
        swap = qkv and t == 2
        if not swap:
            e("v_mfma_f32_32x32x16_bf16 v[%d:%d], %s, %s, %s" % (acc, acc+15, wf, xf, c))
        else:
            e("v_mfma_f32_32x32x16_bf16 v[%d:%d], %s, %s, %s" % (acc, acc+15, xf, wf, c))
        if loads:
            loads.pop(0)()
            if loads: loads.pop(0)()
        run_side(4 if t == 0 else SIDE_BUDGET)
        if s == 31:
            run_side(1000)
            if t == 0:
                e("s_nop 1")
            cf = "v[%d:%d]" % (CSF+4*t, CSF+4*t+3)
            mf = "v[%d:%d]" % (MFR, MFR+3)
            if not swap:
                e("v_mfma_f32_32x32x16_bf16 v[%d:%d], %s, %s, v[%d:%d]" % (acc, acc+15, cf, mf, acc, acc+15))
            else:
                e("v_mfma_f32_32x32x16_bf16 v[%d:%d], %s, %s, v[%d:%d]" % (acc, acc+15, mf, cf, acc, acc+15))
    k.stamp()
    e("s_nop 15")
    if qkv:
        epi_v(ACC[(NT-1) % 2])
    else:
        side.extend(epi_gu(NT-1, ACC[(NT-1) % 2]))
        run_side(1000)
    k.stamp_flush(4, 1 if qkv else 4)
    e("s_endpgm")
    k.label(Lload)
    k.vm = []; k.lg = []
    e("s_sub_u32 s3, s3, 4")
    e("s_mul_i32 s9, s7, %d" % (NT*32768))
    e("s_lshl_b32 s10, s3, 11")
    e("s_add_u32 s9, s9, s10")
    e("s_add_u32 s9, s9, 0x%x" % WBASE)
    e("s_waitcnt lgkmcnt(0)")
    ws_srd(k, 32, 36)
    nxt = 0
    def issue_w(c):
        e("s_add_u32 m0, s10, %d" % ((c % NSLOT)*8192))
        if c > 0: e("s_add_u32 s9, s9, 8192")
        else: e("s_nop 0")
        k.vmem("buffer_load_dwordx4 v5, s[36:39], s9 offen lds", ("w", c))
        k.vmem("buffer_load_dwordx4 v5, s[36:39], s9 offen offset:1024 lds", ("w", c))
    for c in range(NCH):
        lim = {0: 3, 1: 4, 2: 6, 3: 10}.get(c, 1000)
        lim = min(lim, NCH-1, (c-1) - 2 + NSLOT if c >= 1 else NSLOT-1)
        while nxt <= lim and len(k.vm) + 2 <= 62:
            issue_w(nxt); nxt += 1
        k.wait_vm(("w", c))
        e("s_barrier")
    assert nxt == NCH
    k.label(Lend)
    e("s_endpgm")
    return k.text(128, 128)

NEGBIG = f32bits(-1e30)
def gen_attn():
    k = Kern("attn_kernel")
    e = k.e
    e("s_cmp_ge_u32 s2, 256")
    e("s_cbranch_scc1 L_attn_end")
    k.stamp()
    e("s_load_dwordx2 s[32:33], s[0:1], 72")
    e("v_lshrrev_b32 v1, 6, v0")
    e("v_and_b32 v2, 63, v0")
    e("v_and_b32 v3, 31, v0")
    e("v_readfirstlane_b32 s3, v1")
    e("v_bfe_u32 v4, v0, 5, 1")
    e("v_lshlrev_b32 v5, 4, v2")
    e("s_and_b32 s4, s2, 7")
    e("s_lshr_b32 s5, s2, 3")
    e("s_and_b32 s6, s5, 3")
    e("s_lshl_b32 s4, s4, 2")
    e("s_add_u32 s4, s4, s6")
    e("s_lshr_b32 s5, s5, 2")
    e("s_lshl_b32 s6, s5, 3")
    e("s_add_u32 s6, s6, s3")
    e("s_lshl_b32 s7, s5, 3")
    e("s_lshl_b32 s8, s3, 1")
    e("s_add_u32 s7, s7, s8")
    e("s_sub_i32 s7, s7, 8")
    e("s_max_i32 s7, s7, 0")
    e("s_lshl_b32 s9, s4, 6")
    e("s_add_u32 s7, s7, s9")
    e("s_lshl_b32 s7, s7, 10")
    e("s_add_u32 s10, s7, 0x%x" % KF)
    e("s_add_u32 s11, s7, 0x%x" % VF)
    e("s_add_u32 s12, s9, s6")
    e("s_lshl_b32 s12, s12, 10")
    e("s_add_u32 s12, s12, 0x%x" % QF)
    e("s_lshl_b32 s8, s3, 11")
    e("s_waitcnt lgkmcnt(0)")
    ws_srd(k, 32, 36)
    e("s_mov_b32 m0, s8")
    e("s_nop 0")
    k.vmem("buffer_load_dwordx4 v5, s[36:39], s10 offen lds", "kv")
    k.vmem("buffer_load_dwordx4 v5, s[36:39], s10 offen offset:1024 lds", "kv")
    e("s_add_u32 m0, s8, 16384")
    Q = 8
    k.vmem("buffer_load_dwordx4 v[%d:%d], v5, s[36:39], s12 offen" % (Q, Q+3), "kv")
    k.vmem("buffer_load_dwordx4 v5, s[36:39], s11 offen lds", "kv")
    k.vmem("buffer_load_dwordx4 v5, s[36:39], s11 offen offset:1024 lds", "kv")
    KFR = 12
    S = [48, 64]
    MF, MD, NB = 80, 96, 112
    NM = 128
    VFR = [144, 152]
    P = [160, 168]
    O = 176
    M, T0, T1 = 6, 7, 14
    T1 = 192
    e("v_lshlrev_b32 v6, 2, v4")
    e("v_sub_u32 v6, v3, v6")
    e("s_mov_b32 s13, 0x%x" % NEGBIG)
    e("v_mov_b32 v7, s13")
    for r in range(16):
        a = (r & 3) + 8*(r >> 2)
        e("v_cmp_gt_i32 s[%d:%d], %d, v6" % (40+2*r, 41+2*r, a))
    for r in range(16):
        e("v_cndmask_b32 v%d, v7, 0, s[%d:%d]" % (MF+r, 40+2*r, 41+2*r))
        e("v_cndmask_b32 v%d, 0, v7, s[%d:%d]" % (MD+r, 40+2*r, 41+2*r))
        e("v_mov_b32 v%d, v7" % (NB+r))
    e("v_cmp_eq_u32 s[40:41], 16, v3")
    e("v_cmp_eq_u32 s[42:43], 20, v3")
    e("s_mov_b32 s13, 0x%x" % ONES_BF16)
    e("v_mov_b32 v7, s13")
    e("s_or_b64 s[40:41], s[40:41], s[42:43]")
    e("s_nop 0")
    e("v_cndmask_b32 v7, 0, v7, s[40:41]")
    for r in range(16):
        e("v_mov_b32 v%d, v7" % (VFR[0]+r))
    e("s_mov_b32 s40, 0x0000ffff")
    e("s_mov_b32 s41, 0x0000ffff")
    e("s_lshl_b32 s8, s3, 10")
    e("v_add_u32 v196, s8, v5")
    e("v_and_b32 v197, 15, v3")
    e("v_lshlrev_b32 v197, 4, v197")
    e("v_lshl_add_u32 v197, v4, 8, v197")
    e("v_add_u32 v197, s8, v197")
    k.stamp()
    k.wait_vm("kv")
    e("s_barrier")
    k.stamp()
    for i in range(9):
        k.lds("ds_read_b128 v[%d:%d], v196 offset:%d" % (KFR+4*i, KFR+4*i+3, i*1024), ("k", i))
    def rdv(i):
        b = VFR[i % 2]
        e("s_mov_b64 exec, s[40:41]")
        k.lds("ds_read_b128 v[%d:%d], v197 offset:%d" % (b, b+3, 16384 + i*1024), ("v", i))
        k.lds("ds_read_b128 v[%d:%d], v197 offset:%d" % (b+4, b+7, 16384 + i*1024 + 512), ("v", i))
        e("s_mov_b64 exec, -1")
    def smfma(i, cval):
        d = S[i % 2]
        kf = "v[%d:%d]" % (KFR+4*i, KFR+4*i+3)
        q = "v[%d:%d]" % (Q, Q+3)
        if i < 8:
            la, lb = k.newlabel(), k.newlabel()
            e("s_cmp_lt_u32 s6, %d" % (8 - i))
            e("s_cbranch_scc1 %s" % la)
            e("v_mfma_f32_32x32x16_bf16 v[%d:%d], %s, %s, %s" % (d, d+15, kf, q, cval))
            e("s_branch %s" % lb)
            k.label(la)
            e("v_mfma_f32_32x32x16_bf16 v[%d:%d], %s, %s, v[%d:%d]" % (d, d+15, kf, q, NB, NB+15))
            k.label(lb)
        else:
            e("v_mfma_f32_32x32x16_bf16 v[%d:%d], %s, %s, %s" % (d, d+15, kf, q, cval))
    def c1(i):
        if i == 0: return "v[%d:%d]" % (MF, MF+15)
        if i == 8: return "v[%d:%d]" % (MD, MD+15)
        return "0"
    def c2(i):
        if i == 0: return "v[%d:%d]" % (MF, MF+15)
        if i == 8: return "v[%d:%d]" % (MD, MD+15)
        return "v[%d:%d]" % (NM, NM+15)
    k.wait_lg(("k", 0))
    smfma(0, c1(0))
    for i in range(9):
        if i + 1 < 9:
            k.wait_lg(("k", i+1))
            smfma(i+1, c1(i+1))
            e("s_nop 7")
        else:
            e("s_nop 15")
        d = S[i % 2]
        for j in range(8):
            if i == 0 and j == 0:
                e("v_max_f32 v%d, v%d, v%d" % (M, d, d+1))
            else:
                e("v_max3_f32 v%d, v%d, v%d, v%d" % (M, M, d+2*j, d+2*j+1))
    k.stamp()
    rdv(0)
    e("v_mov_b32 v%d, v%d" % (T0, M))
    e("s_nop 1")
    e("v_permlane32_swap_b32 v%d, v%d" % (M, T0))
    e("s_nop 1")
    e("v_max_f32 v%d, v%d, v%d" % (M, M, T0))
    for r in range(16):
        e("v_sub_f32 v%d, v%d, v%d" % (MF+r, MF+r, M))
    for r in range(16):
        e("v_sub_f32 v%d, 0, v%d" % (NM+r, M))
    smfma(0, c2(0))
    for r in range(16):
        e("v_sub_f32 v%d, v%d, v%d" % (MD+r, MD+r, M))
    for i in range(9):
        if i + 1 < 9:
            smfma(i+1, c2(i+1))
            rdv(i+1)
            e("s_nop 3")
        else:
            e("s_nop 11")
        d = S[i % 2]; p = P[i % 2]
        for r in range(16):
            e("v_exp_f32 v%d, v%d" % (d+r, d+r))
            if r % 2 == 1 and r >= 3:
                e("v_cvt_pk_bf16_f32 v%d, v%d, v%d" % (p + (r-3)//2, d+r-3, d+r-2))
        e("s_nop 0")
        e("v_cvt_pk_bf16_f32 v%d, v%d, v%d" % (p + 7, d+14, d+15))
        k.wait_lg(("v", i))
        e("s_nop 1")
        b = VFR[i % 2]
        c = "0" if i == 0 else "v[%d:%d]" % (O, O+15)
        e("v_mfma_f32_32x32x16_bf16 v[%d:%d], v[%d:%d], v[%d:%d], %s" % (O, O+15, b, b+3, p, p+3, c))
        e("v_mfma_f32_32x32x16_bf16 v[%d:%d], v[%d:%d], v[%d:%d], v[%d:%d]" % (O, O+15, b+4, b+7, p+4, p+7, O, O+15))
    k.stamp()
    e("s_lshl_b32 s13, s6, 5")
    e("s_add_u32 s13, s13, s4")
    e("s_lshl_b32 s13, s13, 10")
    e("s_add_u32 s13, s13, 0x%x" % OT)
    e("s_nop 15")
    e("v_rcp_f32 v%d, v%d" % (T0, O+8))
    e("s_nop 0")
    for r in range(8):
        e("v_mul_f32 v%d, v%d, v%d" % (O+r, T0, O+r))
        if r % 2 == 1:
            e("v_cvt_pk_bf16_f32 v%d, v%d, v%d" % (P[0] + r//2, O+r-1, O+r))
    e("buffer_store_dwordx4 v[%d:%d], v5, s[36:39], s13 offen" % (P[0], P[0]+3))
    k.stamp_flush(8, 2)
    k.label("L_attn_end")
    e("s_endpgm")
    return k.text(200, 0)

def gen_splitk(name, KS, ABASE, WBASE, final):
    k = Kern(name)
    e = k.e
    KW = KS // 4
    D = min(KW, 14)
    Lend = "L_%s_end" % name
    e("s_cmp_ge_u32 s2, 256")
    e("s_cbranch_scc1 %s" % Lend)
    k.stamp()
    e("s_load_dwordx2 s[32:33], s[0:1], 72")
    if final:
        e("s_load_dwordx2 s[30:31], s[0:1], 56")
    e("v_lshrrev_b32 v1, 6, v0")
    e("v_and_b32 v2, 63, v0")
    e("v_and_b32 v3, 31, v0")
    e("v_readfirstlane_b32 s3, v1")
    e("v_bfe_u32 v4, v0, 5, 1")
    e("v_lshlrev_b32 v5, 4, v2")
    e("s_and_b32 s4, s2, 7")
    e("s_lshr_b32 s5, s2, 3")
    e("s_and_b32 s6, s4, 3"); e("s_lshr_b32 s7, s4, 2")
    e("s_and_b32 s8, s5, 7"); e("s_lshl_b32 s6, s6, 3"); e("s_add_u32 s6, s6, s8")
    e("s_lshr_b32 s8, s5, 3"); e("s_lshl_b32 s7, s7, 2"); e("s_add_u32 s7, s7, s8")
    e("s_lshr_b32 s8, s3, 1")
    e("s_and_b32 s9, s3, 1")
    e("s_lshl_b32 s6, s6, 1")
    e("s_add_u32 s10, s6, s8")
    e("s_xor_b32 s11, s10, 1")
    e("s_lshl_b32 s12, s7, 1")
    e("s_add_u32 s12, s12, s9")
    e("s_xor_b32 s13, s12, 1")
    e("s_mul_i32 s14, s3, %d" % (KW*1024))
    for (dst, src, base) in ((16, 10, ABASE), (17, 11, ABASE), (18, 12, WBASE), (19, 13, WBASE)):
        e("s_mul_i32 s%d, s%d, %d" % (dst, src, KS*1024))
        e("s_add_u32 s%d, s%d, s14" % (dst, dst))
        e("s_add_u32 s%d, s%d, 0x%x" % (dst, dst, base))
    e("s_lshl_b32 s20, s10, 15")
    e("s_lshl_b32 s21, s12, 11")
    e("s_add_u32 s20, s20, s21")
    e("s_add_u32 s20, s20, 0x%x" % XT)
    e("s_waitcnt lgkmcnt(0)")
    ws_srd(k, 32, 36)
    RES = 8
    ACC = 16
    k.vmem("buffer_load_dwordx4 v[%d:%d], v5, s[36:39], s20 offen" % (RES, RES+3), "res")
    k.vmem("buffer_load_dwordx4 v[%d:%d], v5, s[36:39], s20 offen offset:1024" % (RES+4, RES+7), "res")
    def issue1(s, q):
        slot = s % D
        if s % 4 == 0 and s > 0:
            e("s_add_u32 s%d, s%d, 4096" % (16+q, 16+q))
        k.vmem("buffer_load_dwordx4 a[%d:%d], v5, s[36:39], s%d offen offset:%d" %
               (16*slot+4*q, 16*slot+4*q+3, 16+q, (s % 4)*1024), ("k", s))
    pend = [(s, q) for s in range(KW) for q in range(4)]
    NPRE = min(6, KW)*4
    for (s, q) in pend[:NPRE]: issue1(s, q)
    pend = pend[NPRE:]
    k.stamp()
    for s in range(KW):
        k.wait_vm(("k", s))
        if s == 0 or s == KW//2: k.stamp()
        slot = s % D
        A = ["a[%d:%d]" % (16*slot+4*q, 16*slot+4*q+3) for q in range(4)]
        for u in range(4):
            al, be = u >> 1, u & 1
            acc = ACC + 16*u
            c = "0" if s == 0 else "v[%d:%d]" % (acc, acc+15)
            e("v_mfma_f32_32x32x16_bf16 v[%d:%d], %s, %s, %s" % (acc, acc+15, A[2+be], A[al], c))
            for _ in range(2):
                if pend and pend[0][0] - D < s and len(k.vm) < 60:
                    issue1(*pend.pop(0))
    assert not pend
    k.stamp()
    for u in range(1, 4):
        e("s_xor_b32 s21, s3, %d" % u)
        e("s_mul_i32 s21, s21, 12288")
        e("s_add_u32 s21, s21, %d" % ((u-1)*4096))
        e("v_add_u32 v%d, s21, v5" % (80+u))
    e("s_mul_i32 s21, s3, 12288")
    e("v_add_u32 v80, s21, v5")
    e("s_nop 7")
    for u in range(1, 4):
        for q in range(4):
            k.lds("ds_write_b128 v%d, v[%d:%d] offset:%d" % (80+u, ACC+16*u+4*q, ACC+16*u+4*q+3, q*1024), "w")
    k.wait_lg_all()
    e("s_barrier")
    for u in range(1, 4):
        for q in range(4):
            k.lds("ds_read_b128 v[%d:%d], v80 offset:%d" % (ACC+16*u+4*q, ACC+16*u+4*q+3, (u-1)*4096 + q*1024), ("r", u))
    k.stamp()
    k.wait_vm("res")
    for j in range(8):
        e("v_lshlrev_b32 v%d, 16, v%d" % (84+2*j, RES+j))
        e("v_and_b32 v%d, 0xffff0000, v%d" % (85+2*j, RES+j))
    for r in range(16):
        e("v_add_f32 v%d, v%d, v%d" % (ACC+r, ACC+r, 84+r))
    for u in range(1, 4):
        k.wait_lg(("r", u))
        for r in range(16):
            e("v_add_f32 v%d, v%d, v%d" % (ACC+r, ACC+r, ACC+16*u+r))
    for j in range(8):
        e("v_cvt_pk_bf16_f32 v%d, v%d, v%d" % (RES+j, ACC+2*j, ACC+2*j+1))
    if not final:
        k.vmem("buffer_store_dwordx4 v[%d:%d], v5, s[36:39], s20 offen" % (RES, RES+3))
        k.vmem("buffer_store_dwordx4 v[%d:%d], v5, s[36:39], s20 offen offset:1024" % (RES+4, RES+7))
        e("s_mov_b32 s22, 0x%x" % ONES_BF16)
        e("v_mov_b32 v84, 0"); e("v_mov_b32 v85, 0")
        for j in range(8):
            e("v_dot2_f32_bf16 v84, v%d, s22, v84" % (RES+j))
            e("v_dot2_f32_bf16 v85, v%d, v%d, v85" % (RES+j, RES+j))
        e("s_lshl_b32 s21, s10, 13")
        e("s_lshl_b32 s22, s7, 10")
        e("s_add_u32 s21, s21, s22")
        e("s_lshl_b32 s22, s9, 3")
        e("s_add_u32 s21, s21, s22")
        e("s_add_u32 s21, s21, 0x%x" % STATS)
        k.vmem("buffer_store_dwordx2 v[84:85], v5, s[36:39], s21 offen")
    else:
        e("s_mov_b32 s40, s30"); e("s_mov_b32 s41, s31"); e("s_mov_b32 s42, %d" % (2048*512*2)); e("s_mov_b32 s43, 0x20000")
        e("v_lshlrev_b32 v84, 10, v3")
        e("v_lshl_add_u32 v84, v4, 4, v84")
        e("s_lshl_b32 s21, s10, 15")
        e("s_lshl_b32 s22, s12, 6")
        e("s_add_u32 s21, s21, s22")
        for c in range(2):
            b = RES + 4*c
            e("v_permlane32_swap_b32 v%d, v%d" % (b, b+2))
            e("v_permlane32_swap_b32 v%d, v%d" % (b+1, b+3))
        e("s_nop 1")
        for c in range(2):
            b = RES + 4*c
            k.vmem("buffer_store_dwordx4 v[%d:%d], v84, s[40:43], s21 offen offset:%d" % (b, b+3, 32*c))
    k.stamp_flush(4, 3 if KS == 32 else 5)
    k.label(Lend)
    e("s_endpgm")
    return k.text(100, 16*D)

HEADER = """; Kernarg layout for this problem (80 bytes, ptrs only, base s[0:1]):
;   offset   8: d_in[1] A_wqkv  shape=(512, 1536) dtype=bfloat16
"""

def main(out_path):
    layer = lambda last: [
        ("qkv_kernel", 256, 512, 12*8192 + 1024),
        ("attn_kernel", 256, 512, 32768),
        ("wo_kernel", 256, 256, 49152),
        ("gateup_kernel", 256, 512, 20*8192),
        ("downf_kernel" if last else "down_kernel", 256, 256, 49152),
    ]
    launches = [("prep_kernel", N_STRIP_WG + N_X_WG, 256, 1024)] + layer(False) + layer(True)
    txt = HEADER
    for name, g, b, lds in launches:
        txt += "; @launch kernel=%s grid=(%d,1,1) block=(%d,1,1) lds=%d\n" % (name, g, b, lds)
    txt += '.amdgcn_target "amdgcn-amd-amdhsa--gfx950"\n'
    txt += gen_prep() + gen_rowgemm("qkv") + gen_attn() + gen_splitk("wo_kernel", 32, OT, WO_F, False)
    txt += gen_rowgemm("gateup") + gen_splitk("down_kernel", 112, HT, WD_F, False) + gen_splitk("downf_kernel", 112, HT, WD_F, True)
    open(out_path, "w").write(txt)

if __name__ == "__main__":
    main(sys.argv[1] if len(sys.argv) > 1 else "k.s")
```

```python
import sys, struct, os
import gen
from gen import Kern, f32bits, ws_srd, ONES_BF16, LOG2E, QSCALE, NEGBIG, stats_reduce_ops, HEADER

STAMP = int(os.environ.get('STAMP', '0'))
WQKV_F, WO_F, WGU_F, WD_F, CS_QKV, CS_GU = gen.WQKV_F, gen.WO_F, gen.WGU_F, gen.WD_F, gen.CS_QKV, gen.CS_GU
XT     = 0x0800000
STATS  = 0x1000000
FLAGS  = 0x1200000
LSTR   = 0x1000000
QF     = 0x2000000
KF     = 0x2200000
VF     = 0x2400000
OT     = 0x2600000
HT     = 0x2800000
STAMPS = 0x6000000
FL_CENSUS = 0x0000
FL_X   = 0x1000
FL_L   = 0x8000
FL_QKV = 0x0000
FL_O   = 0x1000
FL_H   = 0x3000
FLAGS_BYTES = 0x18000

gen.XT = XT; gen.STATS = STATS

S_WAVE, S_G, S_J = 3, 4, 5
S_MODE = 44
S_LOFF = 45
S_XIN  = 46
S_FLL  = 47
S_LAYER = 48
S_STIN = 49
S_FXIN = 50
SRD = "s[36:39]"

S_STI = 51
class PK(Kern):
    def stamp(self):
        if not STAMP: return
        self.e("s_memrealtime s[98:99]")
        self.e("s_waitcnt lgkmcnt(0)")
        self.lg = []
        self.e("s_mov_b32 m0, s%d" % S_STI)
        self.e("s_nop 0")
        self.e("v_writelane_b32 v0, s98, m0")
        self.e("s_add_u32 s%d, s%d, 1" % (S_STI, S_STI))

def store(k, ins, tag=None, force_sc1=False):
    if force_sc1:
        k.vmem(ins + " sc1", tag); return
    la, lb = k.newlabel(), k.newlabel()
    k.e("s_cmp_eq_u32 s%d, 1" % S_MODE)
    k.e("s_cbranch_scc1 %s" % la)
    k.e(ins + " sc1")
    k.e("s_branch %s" % lb)
    k.label(la)
    k.e(ins)
    k.label(lb)
    k.vm.append(tag)

def stores(k, inss, tag=None):
    la, lb = k.newlabel(), k.newlabel()
    k.e("s_cmp_eq_u32 s%d, 1" % S_MODE)
    k.e("s_cbranch_scc1 %s" % la)
    for ins in inss: k.e(ins + " sc1")
    k.e("s_branch %s" % lb)
    k.label(la)
    for ins in inss: k.e(ins)
    k.label(lb)
    for ins in inss: k.vm.append(tag)

SPIN_LIMIT = 400000
def set_exec(k, nlanes):
    if nlanes >= 64: return
    assert nlanes <= 32
    k.e("s_mov_b32 exec_lo, 0x%x" % ((1 << nlanes) - 1))
    k.e("s_mov_b32 exec_hi, 0")

def poll(k, s_addr, nlanes, vtmp, v_l4, val=1):
    lp, ld = k.newlabel(), k.newlabel()
    set_exec(k, nlanes)
    k.e("s_mov_b32 s53, 0")
    k.label(lp)
    k.e("buffer_load_dword v%d, v%d, %s, s%d offen sc1" % (vtmp, v_l4, SRD, s_addr))
    k.e("s_add_u32 s53, s53, 1")
    k.e("s_waitcnt vmcnt(0)")
    k.e("v_cmp_gt_u32 vcc, %d, v%d" % (val, vtmp))
    k.e("s_cbranch_vccz %s" % ld)
    k.e("s_cmp_lt_u32 s53, %d" % SPIN_LIMIT)
    k.e("s_cbranch_scc1 %s" % lp)
    k.label(ld)
    if nlanes < 64:
        k.e("s_mov_b64 exec, -1")
    k.vm = []

def signal(k, s_addr, v_one, v_zero, force_sc1=False):
    k.wait_vm_all()
    k.e("s_mov_b64 exec, 1")
    store(k, "buffer_store_dword v%d, v%d, %s, s%d offen" % (v_one, v_zero, SRD, s_addr), "flag", force_sc1)
    k.e("s_mov_b64 exec, -1")

V_L4, V_ONE, V_ZERO = 125, 126, 127

def phase_rowgemm(k, kind):
    e = k.e
    qkv = kind == "qkv"
    NT = 3 if qkv else 7
    NSLOT = 12 if qkv else 20
    WBASE = WQKV_F if qkv else WGU_F
    CSB = CS_QKV if qkv else CS_GU
    NCH = NT*4
    Lload, Ldone = k.newlabel("RL"), k.newlabel("RD")
    e("s_and_b32 s6, s%d, 1" % S_J)
    e("s_lshl_b32 s8, s%d, 1" % S_G)
    e("s_add_u32 s6, s6, s8")
    e("s_lshr_b32 s7, s%d, 1" % S_J)
    e("s_cmp_ge_u32 s%d, 4" % S_WAVE)
    e("s_cbranch_scc1 %s" % Lload)
    e("s_lshl_b32 s6, s6, 2")
    e("s_add_u32 s6, s6, s%d" % S_WAVE)
    xadd = 0 if qkv else 0x200000
    e("s_lshl_b32 s8, s6, 15")
    e("s_add_u32 s8, s8, s%d" % S_XIN)
    if xadd: e("s_add_u32 s8, s8, 0x%x" % xadd)
    e("s_lshl_b32 s11, s6, 13")
    e("s_add_u32 s11, s11, s%d" % S_STIN)
    if not qkv: e("s_add_u32 s11, s11, 0x80000")
    e("s_mul_i32 s12, s7, %d" % (NT*1024))
    e("s_add_u32 s12, s12, 0x%x" % CSB)
    WF = 16
    ACC = [32, 48]
    ST = 64
    CSF = 96
    MFR = 8
    PKR = 80
    MEAN, RSTD, T0, T1, SC1, VAR = 12, 13, 14, 15, 1, 124
    for t in range(NT):
        if t == 4: e("s_add_u32 s12, s12, 4096")
        k.vmem("buffer_load_dwordx4 v[%d:%d], v5, %s, s12 offen offset:%d" % (CSF+4*t, CSF+4*t+3, SRD, (t % 4)*1024), "cs")
    e("s_lshl_b32 s13, s6, 6")
    e("s_add_u32 s13, s13, s%d" % S_FXIN)
    if not qkv: e("s_add_u32 s13, s13, 4096")
    if qkv:
        lskip = k.newlabel()
        e("s_cmp_eq_u32 s%d, 0" % S_LAYER)
        e("s_cbranch_scc1 %s" % lskip)
        poll(k, 13, 16, T0, V_L4)
        k.label(lskip)
        k.wait_vm_all()
    else:
        poll(k, 13, 16, T0, V_L4)
    k.stamp()
    def mk_x(s):
        def f():
            if s % 4 == 0 and s > 0: e("s_add_u32 s8, s8, 4096")
            k.vmem("buffer_load_dwordx4 a[%d:%d], v5, %s, s8 offen offset:%d" % (4*s, 4*s+3, SRD, (s % 4)*1024), ("x", s))
        return f
    def mk_st(cq):
        def f():
            if cq == 4: e("s_add_u32 s11, s11, 4096")
            k.vmem("buffer_load_dwordx4 v[%d:%d], v5, %s, s11 offen offset:%d" % (ST+4*cq, ST+4*cq+3, SRD, (cq % 4)*1024), "stats")
        return f
    loads = [mk_x(s) for s in range(20)] + [mk_st(c) for c in range(8)] + [mk_x(s) for s in range(20, 32)]
    NPRE = 12
    for f in loads[:NPRE]: f()
    loads = loads[NPRE:]
    sched = []
    for s in range(32):
        sched.append((0, s)); sched.append((1, s))
    for t in range(2, NT):
        for s in range(32): sched.append((t, s))
    chunk_order = []
    for c in range(4): chunk_order += [(0, c), (1, c)]
    for t in range(2, NT):
        for c in range(4): chunk_order.append((t, c))
    cidx = {tc: i for i, tc in enumerate(chunk_order)}
    ACCT = {0: 32, 1: 48}
    accs = [32, 48, 96+28 if False else None]
    PF = 3
    total = len(sched)
    side = []
    seen_chunks = set()
    nbar = [0]
    def rd(g):
        t, s = sched[g]
        ci = cidx[(t, s // 8)]
        if ci not in seen_chunks:
            while nbar[0] <= ci:
                e("s_barrier"); nbar[0] += 1
            seen_chunks.add(ci)
        slot = ci % NSLOT
        a = slot*8192 + (s % 8)*1024
        va, off = 5 + a // 65536, a % 65536
        k.lds("ds_read_b128 v[%d:%d], v%d offset:%d" % (WF+4*(g % 4), WF+4*(g % 4)+3, va, off), ("wf", g))
    def cost(x):
        if callable(x): return 2
        return 2 if x.startswith(("v_exp", "v_rcp", "v_rsq")) else 1
    def run_side(budget):
        while side and budget > 0:
            x = side.pop(0)
            budget -= cost(x)
            if callable(x): x()
            else: e(x)
    def epi_qk(t, acc):
        ops = []
        sc = SC1 if t == 0 else RSTD
        for r in range(16):
            ops.append("v_mul_f32 v%d, v%d, v%d" % (acc+r, sc, acc+r))
            if r % 2 == 1:
                ops.append("v_cvt_pk_bf16_f32 v%d, v%d, v%d" % (PKR + 8*t + r//2, acc+r-1, acc+r))
        base = QF if t == 0 else KF
        def st():
            e("s_lshl_b32 s13, s7, 17")
            e("s_lshl_b32 s14, s6, 10")
            e("s_add_u32 s13, s13, s14")
            e("s_add_u32 s13, s13, s%d" % S_LOFF)
            e("s_add_u32 s13, s13, 0x%x" % base)
            e("s_add_u32 s14, s13, 65536")
            k.vmem("buffer_store_dwordx4 v[%d:%d], v5, %s, s13 offen sc1" % (PKR+8*t, PKR+8*t+3, SRD), "st")
        def st2():
            k.vmem("buffer_store_dwordx4 v[%d:%d], v5, %s, s14 offen sc1" % (PKR+8*t+4, PKR+8*t+7, SRD), "st")
        ops.append(st); ops.append(st2)
        return ops
    def stats_ops():
        ops = [lambda: k.wait_vm("stats")]
        ops += stats_reduce_ops(ST, MEAN, RSTD, T0, T1, VAR, MFR)
        if qkv:
            ops.append("v_mul_f32 v%d, 0x%x, v%d" % (SC1, f32bits(QSCALE), RSTD))
            def wr():
                e("s_lshl_b32 s15, s%d, 7" % S_WAVE)
                e("s_add_u32 s15, s15, %d" % (NSLOT*8192))
                e("v_lshl_add_u32 v%d, v3, 2, s15" % T0)
                k.lds("ds_write_b32 v%d, v%d" % (T0, RSTD), "stw")
                e("v_lshl_add_u32 v%d, v4, 4, s15" % T0)
                k.wait_lg("stw")
                for g in range(4):
                    k.lds("ds_read_b128 v[%d:%d], v%d offset:%d" % (ST+4*g, ST+4*g+3, T0, g*32), "str")
            ops.append(wr)
        else:
            ops.append("v_mul_f32 v%d, 0x%x, v%d" % (SC1, f32bits(-LOG2E), RSTD))
        return ops
    def epi_v(acc):
        k.wait_lg("str")
        for r in range(16):
            e("v_mul_f32 v%d, v%d, v%d" % (acc+r, ST+r, acc+r))
            if r % 2 == 1:
                e("v_cvt_pk_bf16_f32 v%d, v%d, v%d" % (PKR + r//2, acc+r-1, acc+r))
        k.vmem("buffer_store_dwordx4 v[%d:%d], v%d, %s, s13 offen sc1" % (PKR, PKR+3, T0, SRD), "st")
        k.vmem("buffer_store_dwordx4 v[%d:%d], v%d, %s, s13 offen offset:512 sc1" % (PKR+4, PKR+7, T0, SRD), "st")
    def epi_v_addr():
        return ["v_lshrrev_b32 v%d, 4, v3" % T0, "v_lshlrev_b32 v%d, 16, v%d" % (T0, T0), "v_and_b32 v%d, 15, v3" % T1,
                "v_lshl_add_u32 v%d, v%d, 4, v%d" % (T0, T1, T0), "v_lshl_add_u32 v%d, v4, 8, v%d" % (T0, T0),
                "s_lshl_b32 s13, s7, 17", "s_lshl_b32 s14, s6, 10", "s_add_u32 s13, s13, s14",
                "s_add_u32 s13, s13, s%d" % S_LOFF, "s_add_u32 s13, s13, 0x%x" % VF]
    def epi_gu(t, acc):
        ops = []
        pk = PKR + 4*(t % 2)
        tm = PKR + 8
        for r in range(8):
            ops.append("v_mul_f32 v%d, v%d, v%d" % (tm+r, SC1, acc+r))
        for r in range(8):
            ops.append("v_exp_f32 v%d, v%d" % (tm+r, tm+r))
            ops.append("v_mul_f32 v%d, v%d, v%d" % (acc+r, acc+r, acc+8+r))
        for r in range(8):
            ops.append("v_fma_f32 v%d, v%d, v%d, v%d" % (tm+r, tm+r, VAR, VAR))
        for r in range(8):
            ops.append("v_rcp_f32 v%d, v%d" % (tm+r, tm+r))
        ops.append("s_nop 0")
        for r in range(8):
            ops.append("v_mul_f32 v%d, v%d, v%d" % (acc+r, acc+r, tm+r))
            if r % 2 == 1:
                ops.append("v_cvt_pk_bf16_f32 v%d, v%d, v%d" % (pk + r//2, acc+r-1, acc+r))
        def st():
            if t == 0:
                e("s_mul_i32 s13, s6, 112")
                e("s_mul_i32 s14, s7, 7")
                e("s_add_u32 s13, s13, s14")
                e("s_lshl_b32 s13, s13, 10")
                e("s_add_u32 s13, s13, s%d" % S_LOFF)
                e("s_add_u32 s13, s13, 0x%x" % HT)
            if t == 4:
                e("s_add_u32 s13, s13, 4096")
            store(k, "buffer_store_dwordx4 v[%d:%d], v5, %s, s13 offen offset:%d" % (pk, pk+3, SRD, (t % 4)*1024), "st")
        ops.append(st)
        return ops
    ACC3 = [32, 48, 64] if not qkv else [32, 48, 96+12]
    def accof(t): return ACC3[t % 3]
    def corr(t):
        acc = accof(t)
        cf = "v[%d:%d]" % (CSF+4*t, CSF+4*t+3)
        mf = "v[%d:%d]" % (MFR, MFR+3)
        if not (qkv and t == 2):
            e("v_mfma_f32_32x32x16_bf16 v[%d:%d], %s, %s, v[%d:%d]" % (acc, acc+15, cf, mf, acc, acc+15))
        else:
            e("v_mfma_f32_32x32x16_bf16 v[%d:%d], %s, %s, v[%d:%d]" % (acc, acc+15, mf, cf, acc, acc+15))
    for g in range(PF):
        rd(g)
    for g in range(total):
        t, s = sched[g]
        if g + PF < total: rd(g + PF)
        if g == 36: side.extend(stats_ops())
        if g >= 64 and s == 3:
            if t == 2:
                for tt in (0, 1):
                    side.extend(epi_qk(tt, accof(tt)) if qkv else epi_gu(tt, accof(tt)))
                if qkv: side.extend(epi_v_addr())
            else:
                side.extend(epi_gu(t-1, accof(t-1)))
        if g < 64 and t == 0: k.wait_vm(("x", s))
        k.wait_lg(("wf", g))
        acc = accof(t)
        wf = "v[%d:%d]" % (WF+4*(g % 4), WF+4*(g % 4)+3)
        xf = "a[%d:%d]" % (4*s, 4*s+3)
        c = "0" if s == 0 else "v[%d:%d]" % (acc, acc+15)
        if not (qkv and t == 2):
            e("v_mfma_f32_32x32x16_bf16 v[%d:%d], %s, %s, %s" % (acc, acc+15, wf, xf, c))
        else:
            e("v_mfma_f32_32x32x16_bf16 v[%d:%d], %s, %s, %s" % (acc, acc+15, xf, wf, c))
        if loads:
            loads.pop(0)()
        run_side(2 if g >= 64 else 3)
        if g == 63:
            run_side(1000)
            e("s_nop 1")
            corr(0); corr(1)
            k.stamp()
        elif g > 63 and s == 31:
            run_side(1000)
            corr(t)
    k.wait_lg_all()
    e("s_barrier")
    k.stamp()
    e("s_nop 11")
    if qkv:
        epi_v(accof(2))
        e("s_lshl_b32 s13, s7, 8")
        e("s_lshl_b32 s14, s6, 2")
        e("s_add_u32 s13, s13, s14")
        e("s_add_u32 s13, s13, s%d" % S_FLL)
        if FL_QKV: e("s_add_u32 s13, s13, 0x%x" % FL_QKV)
        signal(k, 13, V_ONE, V_ZERO, force_sc1=True)
    else:
        side.extend(epi_gu(NT-1, accof(NT-1)))
        run_side(1000)
        e("s_lshl_b32 s13, s6, 6")
        e("s_lshl_b32 s14, s7, 2")
        e("s_add_u32 s13, s13, s14")
        e("s_add_u32 s13, s13, s%d" % S_FLL)
        e("s_add_u32 s13, s13, 0x%x" % FL_H)
        signal(k, 13, V_ONE, V_ZERO)
    e("s_branch %s" % Ldone)
    k.label(Lload)
    save_vm, save_lg = k.vm, k.lg
    k.vm = []; k.lg = []
    e("s_sub_u32 s10, s%d, 4" % S_WAVE)
    e("s_lshl_b32 s10, s10, 11")
    e("s_mul_i32 s9, s7, %d" % (NT*32768))
    e("s_add_u32 s9, s9, s10")
    e("s_add_u32 s9, s9, 0x%x" % WBASE)
    nxt = 0
    def issue_w(ci):
        t, c = chunk_order[ci]
        e("s_add_u32 m0, s10, %d" % ((ci % NSLOT)*8192))
        e("s_add_u32 s8, s9, %d" % (t*32768 + c*8192))
        k.vmem("buffer_load_dwordx4 v5, %s, s8 offen lds" % SRD, ("w", ci))
        k.vmem("buffer_load_dwordx4 v5, %s, s8 offen offset:1024 lds" % SRD, ("w", ci))
    for c in range(NCH):
        lim = min(NCH-1, max(NSLOT-1, c - 5 + NSLOT))
        while nxt <= lim and len(k.vm) + 2 <= 62:
            issue_w(nxt); nxt += 1
        k.wait_vm(("w", c))
        e("s_barrier")
    assert nxt == NCH
    e("s_barrier")
    k.label(Ldone)
    k.vm = ["?"] * 4; k.lg = []

def census_check(k, vt):
    e = k.e
    lskip, lp = k.newlabel(), k.newlabel()
    e("s_cmp_lg_u32 s%d, 0" % S_LAYER)
    e("s_cbranch_scc1 %s" % lskip)
    e("s_lshl_b32 s13, s%d, 7" % S_G)
    e("s_add_u32 s13, s13, 0x%x" % (FLAGS + FL_CENSUS))
    set_exec(k, 32)
    e("s_mov_b32 s53, 0")
    ld = k.newlabel()
    k.label(lp)
    e("buffer_load_dword v%d, v%d, %s, s13 offen sc1" % (vt, V_L4, SRD))
    e("s_add_u32 s53, s53, 1")
    e("s_waitcnt vmcnt(0)")
    e("v_cmp_eq_u32 vcc, 0, v%d" % vt)
    e("s_cbranch_vccz %s" % ld)
    e("s_cmp_lt_u32 s53, %d" % SPIN_LIMIT)
    e("s_cbranch_scc1 %s" % lp)
    k.label(ld)
    e("v_cmp_ne_u32 vcc, s52, v%d" % vt)
    e("s_mov_b64 exec, -1")
    e("s_cmp_eq_u64 vcc, 0")
    e("s_cselect_b32 s%d, %d, 0" % (S_MODE, 0 if FORCE_SLOW else 1))
    k.label(lskip)
    k.vm = []

FORCE_SLOW = int(os.environ.get('FORCE_SLOW', '0'))

def phase_attn(k):
    e = k.e
    k.vm = []; k.lg = []
    census_check(k, 120)
    e("s_lshl_b32 s6, s%d, 3" % S_G)
    e("s_add_u32 s6, s6, s%d" % S_WAVE)
    e("s_lshl_b32 s7, s%d, 3" % S_G)
    e("s_lshl_b32 s8, s%d, 1" % S_WAVE)
    e("s_add_u32 s7, s7, s8")
    e("s_sub_i32 s7, s7, 8")
    e("s_max_i32 s7, s7, 0")
    e("s_lshl_b32 s9, s%d, 6" % S_J)
    e("s_add_u32 s7, s7, s9")
    e("s_lshl_b32 s7, s7, 10")
    e("s_add_u32 s7, s7, s%d" % S_LOFF)
    e("s_add_u32 s10, s7, 0x%x" % KF)
    e("s_add_u32 s11, s7, 0x%x" % VF)
    e("s_add_u32 s12, s9, s6")
    e("s_lshl_b32 s12, s12, 10")
    e("s_add_u32 s12, s12, s%d" % S_LOFF)
    e("s_add_u32 s12, s12, 0x%x" % QF)
    e("s_lshl_b32 s8, s%d, 11" % S_WAVE)
    S = [8, 24]
    MF, MD, NM, NB = 40, 56, 72, 88
    P = [104, 112]
    M, T0, VK, VV = 120, 121, 122, 123
    AQ, AK, AV, AO = 0, 4, 40, 56
    e("v_lshlrev_b32 v%d, 2, v4" % M)
    e("v_sub_u32 v%d, v3, v%d" % (M, M))
    e("s_mov_b32 s13, 0x%x" % NEGBIG)
    e("v_mov_b32 v%d, s13" % T0)
    for r in range(16):
        a = (r & 3) + 8*(r >> 2)
        e("v_cmp_gt_i32 s[%d:%d], %d, v%d" % (64+2*r, 65+2*r, a, M))
    for r in range(16):
        e("v_cndmask_b32 v%d, v%d, 0, s[%d:%d]" % (MF+r, T0, 64+2*r, 65+2*r))
        e("v_cndmask_b32 v%d, 0, v%d, s[%d:%d]" % (MD+r, T0, 64+2*r, 65+2*r))
        e("v_mov_b32 v%d, v%d" % (NB+r, T0))
    e("v_cmp_eq_u32 s[64:65], 16, v3")
    e("v_cmp_eq_u32 s[66:67], 20, v3")
    e("s_mov_b32 s13, 0x%x" % ONES_BF16)
    e("v_mov_b32 v%d, s13" % T0)
    e("s_or_b64 s[64:65], s[64:65], s[66:67]")
    e("s_nop 0")
    e("v_cndmask_b32 v%d, 0, v%d, s[64:65]" % (T0, T0))
    for r in range(16):
        e("v_accvgpr_write_b32 a%d, v%d" % (AV+r, T0))
    e("s_mov_b32 s64, 0x0000ffff")
    e("s_mov_b32 s65, 0x0000ffff")
    e("s_lshl_b32 s13, s%d, 10" % S_WAVE)
    e("v_add_u32 v%d, s13, v5" % VK)
    e("v_and_b32 v%d, 15, v3" % VV)
    e("v_lshlrev_b32 v%d, 4, v%d" % (VV, VV))
    e("v_lshl_add_u32 v%d, v4, 8, v%d" % (VV, VV))
    e("v_add_u32 v%d, s13, v%d" % (VV, VV))
    e("s_lshr_b32 s13, s%d, 1" % S_J)
    e("s_lshl_b32 s13, s13, 8")
    e("s_add_u32 s13, s13, s%d" % S_FLL)
    e("s_lshl_b32 s14, s%d, 5" % S_G)
    e("s_add_u32 s13, s13, s14")
    lg0, lgd = k.newlabel(), k.newlabel()
    e("s_cmp_eq_u32 s%d, 0" % S_G)
    e("s_cbranch_scc1 %s" % lg0)
    e("s_sub_u32 s13, s13, 32")
    poll(k, 13, 16, T0, V_L4)
    e("s_branch %s" % lgd)
    k.label(lg0)
    poll(k, 13, 8, T0, V_L4)
    k.label(lgd)
    k.stamp()
    e("s_mov_b32 m0, s8")
    e("s_nop 0")
    k.vmem("buffer_load_dwordx4 v5, %s, s10 offen lds" % SRD, "kv")
    k.vmem("buffer_load_dwordx4 v5, %s, s10 offen offset:1024 lds" % SRD, "kv")
    e("s_add_u32 m0, s8, 16384")
    k.vmem("buffer_load_dwordx4 a[%d:%d], v5, %s, s12 offen" % (AQ, AQ+3, SRD), "kv")
    k.vmem("buffer_load_dwordx4 v5, %s, s11 offen lds" % SRD, "kv")
    k.vmem("buffer_load_dwordx4 v5, %s, s11 offen offset:1024 lds" % SRD, "kv")
    k.wait_vm("kv")
    e("s_barrier")
    k.stamp()
    for i in range(9):
        k.lds("ds_read_b128 a[%d:%d], v%d offset:%d" % (AK+4*i, AK+4*i+3, VK, i*1024), ("k", i))
    def rdv(i):
        b = AV + 8*(i % 2)
        e("s_mov_b64 exec, s[64:65]")
        k.lds("ds_read_b128 a[%d:%d], v%d offset:%d" % (b, b+3, VV, 16384 + i*1024), ("v", i))
        k.lds("ds_read_b128 a[%d:%d], v%d offset:%d" % (b+4, b+7, VV, 16384 + i*1024 + 512), ("v", i))
        e("s_mov_b64 exec, -1")
    def smfma(i, cval):
        d = S[i % 2]
        kf = "a[%d:%d]" % (AK+4*i, AK+4*i+3)
        q = "a[%d:%d]" % (AQ, AQ+3)
        if i < 8:
            la, lb = k.newlabel(), k.newlabel()
            e("s_cmp_lt_u32 s6, %d" % (8 - i))
            e("s_cbranch_scc1 %s" % la)
            e("v_mfma_f32_32x32x16_bf16 v[%d:%d], %s, %s, %s" % (d, d+15, kf, q, cval))
            e("s_branch %s" % lb)
            k.label(la)
            e("v_mfma_f32_32x32x16_bf16 v[%d:%d], %s, %s, v[%d:%d]" % (d, d+15, kf, q, NB, NB+15))
            k.label(lb)
        else:
            e("v_mfma_f32_32x32x16_bf16 v[%d:%d], %s, %s, %s" % (d, d+15, kf, q, cval))
    def c1(i):
        if i == 0: return "v[%d:%d]" % (MF, MF+15)
        if i == 8: return "v[%d:%d]" % (MD, MD+15)
        return "0"
    def c2(i):
        if i == 0: return "v[%d:%d]" % (MF, MF+15)
        if i == 8: return "v[%d:%d]" % (MD, MD+15)
        return "v[%d:%d]" % (NM, NM+15)
    k.wait_lg(("k", 0))
    smfma(0, c1(0))
    for i in range(9):
        if i + 1 < 9:
            k.wait_lg(("k", i+1))
            smfma(i+1, c1(i+1))
            if i == 0: e("s_nop 7")
        else:
            e("s_nop 3")
        d = S[i % 2]
        for j in range(8):
            if i == 0 and j == 0:
                e("v_max_f32 v%d, v%d, v%d" % (M, d, d+1))
            else:
                e("v_max3_f32 v%d, v%d, v%d, v%d" % (M, M, d+2*j, d+2*j+1))
    rdv(0)
    e("v_mov_b32 v%d, v%d" % (T0, M))
    e("s_nop 1")
    e("v_permlane32_swap_b32 v%d, v%d" % (M, T0))
    e("s_nop 1")
    e("v_max_f32 v%d, v%d, v%d" % (M, M, T0))
    for r in range(16):
        e("v_sub_f32 v%d, v%d, v%d" % (MF+r, MF+r, M))
    for r in range(16):
        e("v_sub_f32 v%d, 0, v%d" % (NM+r, M))
    smfma(0, c2(0))
    for r in range(16):
        e("v_sub_f32 v%d, v%d, v%d" % (MD+r, MD+r, M))
    for i in range(9):
        if i + 1 < 9:
            smfma(i+1, c2(i+1))
            rdv(i+1)
        d = S[i % 2]; p = P[i % 2]
        for r in range(16):
            e("v_exp_f32 v%d, v%d" % (d+r, d+r))
            if r % 2 == 1 and r >= 3:
                e("v_cvt_pk_bf16_f32 v%d, v%d, v%d" % (p + (r-3)//2, d+r-3, d+r-2))
        k.wait_lg(("v", i))
        e("v_cvt_pk_bf16_f32 v%d, v%d, v%d" % (p + 7, d+14, d+15))
        b = AV + 8*(i % 2)
        c = "0" if i == 0 else "a[%d:%d]" % (AO, AO+15)
        e("v_mfma_f32_32x32x16_bf16 a[%d:%d], a[%d:%d], v[%d:%d], %s" % (AO, AO+15, b, b+3, p, p+3, c))
        e("s_nop 0")
        e("v_mfma_f32_32x32x16_bf16 a[%d:%d], a[%d:%d], v[%d:%d], a[%d:%d]" % (AO, AO+15, b+4, b+7, p+4, p+7, AO, AO+15))
    e("s_barrier")
    k.stamp()
    e("s_lshl_b32 s13, s6, 5")
    e("s_add_u32 s13, s13, s%d" % S_J)
    e("s_lshl_b32 s14, s13, 2")
    e("s_lshl_b32 s13, s13, 10")
    e("s_add_u32 s13, s13, s%d" % S_LOFF)
    e("s_add_u32 s13, s13, 0x%x" % OT)
    e("s_add_u32 s14, s14, s%d" % S_FLL)
    e("s_add_u32 s14, s14, 0x%x" % FL_O)
    e("s_nop 7")
    for r in range(9):
        e("v_accvgpr_read_b32 v%d, a%d" % (S[0]+r, AO+r))
    e("v_rcp_f32 v%d, v%d" % (T0, S[0]+8))
    e("s_nop 0")
    for r in range(8):
        e("v_mul_f32 v%d, v%d, v%d" % (S[0]+r, T0, S[0]+r))
        if r % 2 == 1:
            e("v_cvt_pk_bf16_f32 v%d, v%d, v%d" % (P[0] + r//2, S[0]+r-1, S[0]+r))
    store(k, "buffer_store_dwordx4 v[%d:%d], v5, %s, s13 offen" % (P[0], P[0]+3, SRD), "st")
    signal(k, 14, V_ONE, V_ZERO)

def phase_ldsgemm(k, kind):
    e = k.e
    k.vm = []; k.lg = []
    wo = kind == "wo"
    KS = 32 if wo else 112
    NC = KS // 4
    NA, NW = (8, 8) if wo else (8, 12)
    ABASE, WBASE = (OT, WO_F) if wo else (HT, WD_F)
    WOFF = NA*8192
    Lload, Ldone = k.newlabel("GL"), k.newlabel("GD")
    e("s_and_b32 s6, s%d, 3" % S_J)
    e("s_lshl_b32 s8, s%d, 2" % S_G)
    e("s_add_u32 s6, s6, s8")
    e("s_lshr_b32 s7, s%d, 2" % S_J)
    e("s_cmp_ge_u32 s%d, 4" % S_WAVE)
    e("s_cbranch_scc1 %s" % Lload)
    e("s_lshr_b32 s8, s%d, 1" % S_WAVE)
    e("s_and_b32 s9, s%d, 1" % S_WAVE)
    e("s_lshl_b32 s10, s6, 1"); e("s_add_u32 s10, s10, s8")
    e("s_lshl_b32 s12, s7, 1"); e("s_add_u32 s12, s12, s9")
    e("s_lshl_b32 s20, s10, 15")
    e("s_lshl_b32 s21, s12, 11")
    e("s_add_u32 s20, s20, s21")
    e("s_add_u32 s20, s20, s%d" % S_XIN)
    if not wo: e("s_add_u32 s20, s20, 0x200000")
    RES = 8; ACC = 16; AF = 32; WFR = 48; TMP = 64
    k.vmem("buffer_load_dwordx4 v[%d:%d], v5, %s, s20 offen" % (RES, RES+3, SRD), "res")
    k.vmem("buffer_load_dwordx4 v[%d:%d], v5, %s, s20 offen offset:1024" % (RES+4, RES+7, SRD), "res")
    e("s_add_u32 s20, s20, 0x200000")
    VA, VW0, VW1 = 120, 121, 122
    e("s_lshl_b32 s13, s8, 12")
    e("v_add_u32 v%d, s13, v5" % VA)
    e("s_lshl_b32 s13, s9, 12")
    e("s_add_u32 s13, s13, %d" % WOFF)
    e("v_add_u32 v%d, s13, v5" % VW0)
    e("v_add_u32 v%d, 0x10000, v%d" % (VW1, VW0))
    PF = 3
    def rd(s):
        c = s // 4
        if s % 4 == 0: e("s_barrier")
        ao = (c % NA)*8192 + (s % 4)*1024
        wo_ = (c % NW)*8192 + (s % 4)*1024
        k.lds("ds_read_b128 v[%d:%d], v%d offset:%d" % (AF+4*(s % 4), AF+4*(s % 4)+3, VA, ao), ("f", s))
        vw, off = (VW0, wo_) if wo_ + 4096 + 1024 <= 65536 else (VW1, wo_ - 65536)
        assert 0 <= off < 65536
        k.lds("ds_read_b128 v[%d:%d], v%d offset:%d" % (WFR+4*(s % 4), WFR+4*(s % 4)+3, vw, off), ("f", s))
    for s in range(PF):
        rd(s)
        if s == 0: k.stamp()
    for s in range(KS):
        if s + PF < KS: rd(s + PF)
        k.wait_lg(("f", s))
        c = "0" if s == 0 else "v[%d:%d]" % (ACC, ACC+15)
        e("v_mfma_f32_32x32x16_bf16 v[%d:%d], v[%d:%d], v[%d:%d], %s" % (ACC, ACC+15, WFR+4*(s % 4), WFR+4*(s % 4)+3, AF+4*(s % 4), AF+4*(s % 4)+3, c))
        if s == 4:
            k.wait_vm("res")
            for j in range(8):
                e("v_lshlrev_b32 v%d, 16, v%d" % (TMP+2*j, RES+j))
                e("v_and_b32 v%d, 0xffff0000, v%d" % (TMP+2*j+1, RES+j))
    e("s_barrier")
    k.stamp()
    e("s_lshl_b32 s21, s10, 13")
    e("s_lshl_b32 s22, s7, 10")
    e("s_add_u32 s21, s21, s22")
    e("s_lshl_b32 s22, s9, 3")
    e("s_add_u32 s21, s21, s22")
    e("s_add_u32 s21, s21, s%d" % S_STIN)
    e("s_add_u32 s21, s21, 0x%x" % (0x80000 if wo else 0x100000))
    e("s_lshl_b32 s23, s10, 6")
    e("s_lshl_b32 s22, s12, 2")
    e("s_add_u32 s23, s23, s22")
    e("s_add_u32 s23, s23, s%d" % S_FXIN)
    e("s_add_u32 s23, s23, %d" % (4096 if wo else 8192))
    e("s_mov_b32 s22, 0x%x" % ONES_BF16)
    e("s_nop 1")
    for r in range(16):
        e("v_add_f32 v%d, v%d, v%d" % (ACC+r, ACC+r, TMP+r))
    for j in range(8):
        e("v_cvt_pk_bf16_f32 v%d, v%d, v%d" % (RES+j, ACC+2*j, ACC+2*j+1))
    lfin = k.newlabel()
    if not wo:
        e("s_cmp_eq_u32 s%d, 1" % S_LAYER)
        e("s_cbranch_scc1 %s" % lfin)
    stores(k, ["buffer_store_dwordx4 v[%d:%d], v5, %s, s20 offen" % (RES, RES+3, SRD),
               "buffer_store_dwordx4 v[%d:%d], v5, %s, s20 offen offset:1024" % (RES+4, RES+7, SRD)], "st")
    e("v_mov_b32 v%d, 0" % TMP); e("v_mov_b32 v%d, 0" % (TMP+1))
    for j in range(8):
        e("v_dot2_f32_bf16 v%d, v%d, s22, v%d" % (TMP, RES+j, TMP))
        e("v_dot2_f32_bf16 v%d, v%d, v%d, v%d" % (TMP+1, RES+j, RES+j, TMP+1))
    e("s_nop 2")
    store(k, "buffer_store_dwordx2 v[%d:%d], v5, %s, s21 offen" % (TMP, TMP+1, SRD), "st")
    signal(k, 23, V_ONE, V_ZERO)
    e("s_branch %s" % Ldone)
    if not wo:
        k.label(lfin)
        e("v_lshlrev_b32 v%d, 10, v3" % TMP)
        e("v_lshl_add_u32 v%d, v4, 4, v%d" % (TMP, TMP))
        e("s_lshl_b32 s21, s10, 15")
        e("s_lshl_b32 s22, s12, 6")
        e("s_add_u32 s21, s21, s22")
        for c in range(2):
            b = RES + 4*c
            e("v_permlane32_swap_b32 v%d, v%d" % (b, b+2))
            e("v_permlane32_swap_b32 v%d, v%d" % (b+1, b+3))
        e("s_nop 1")
        for c in range(2):
            b = RES + 4*c
            e("buffer_store_dwordx4 v[%d:%d], v%d, s[40:43], s21 offen offset:%d" % (b, b+3, TMP, 32*c))
        e("s_branch %s" % Ldone)
    k.label(Lload)
    k.vm = []; k.lg = []
    e("s_sub_u32 s10, s%d, 4" % S_WAVE)
    e("s_lshr_b32 s8, s10, 1")
    e("s_and_b32 s9, s10, 1")
    e("s_lshl_b32 s10, s10, 11")
    e("s_lshl_b32 s9, s9, 11")
    e("s_lshl_b32 s11, s6, 1"); e("s_add_u32 s11, s11, s8"); e("s_mul_i32 s11, s11, %d" % (KS*1024))
    e("s_add_u32 s11, s11, s9"); e("s_add_u32 s11, s11, s%d" % S_LOFF); e("s_add_u32 s11, s11, 0x%x" % ABASE)
    e("s_lshl_b32 s12, s7, 1"); e("s_add_u32 s12, s12, s8"); e("s_mul_i32 s12, s12, %d" % (KS*1024))
    e("s_add_u32 s12, s12, s9"); e("s_add_u32 s12, s12, 0x%x" % WBASE)
    def issue(which, c):
        sreg, n, off = (11, NA, 0) if which == "a" else (12, NW, WOFF)
        e("s_add_u32 m0, s10, %d" % (off + (c % n)*8192))
        if c > 0: e("s_add_u32 s%d, s%d, 4096" % (sreg, sreg))
        else: e("s_nop 0")
        k.vmem("buffer_load_dwordx4 v5, %s, s%d offen lds" % (SRD, sreg), (which, c))
        k.vmem("buffer_load_dwordx4 v5, %s, s%d offen offset:1024 lds" % (SRD, sreg), (which, c))
    nw = 0; na = 0
    while nw < min(NW, NC):
        issue("w", nw); nw += 1
    if wo:
        e("s_lshl_b32 s13, s6, 8")
        e("s_add_u32 s13, s13, s%d" % S_FLL)
        e("s_add_u32 s13, s13, 0x%x" % FL_O)
        poll(k, 13, 64, 8, V_L4)
    else:
        e("s_lshl_b32 s13, s6, 7")
        e("s_add_u32 s13, s13, s%d" % S_FLL)
        e("s_add_u32 s13, s13, 0x%x" % FL_H)
        poll(k, 13, 32, 8, V_L4)
    for c in range(NC):
        while True:
            prog = False
            if na < NC and na - NA <= c - 3 and len(k.vm) + 2 <= 62:
                issue("a", na); na += 1; prog = True
            if nw < NC and nw - NW <= c - 3 and len(k.vm) + 2 <= 62:
                issue("w", nw); nw += 1; prog = True
            if not prog: break
        k.wait_vm(("w", c)); k.wait_vm(("a", c))
        e("s_barrier")
    assert na == NC and nw == NC
    e("s_barrier")
    k.label(Ldone)
    k.vm = []; k.lg = []

def gen_main():
    k = PK("main_kernel")
    e = k.e
    e("s_cmp_ge_u32 s2, 256")
    e("s_cbranch_scc1 L_main_end")
    e("s_load_dwordx2 s[32:33], s[0:1], 72")
    e("s_load_dwordx2 s[30:31], s[0:1], 56")
    e("s_getreg_b32 s52, hwreg(HW_REG_XCC_ID)")
    e("v_lshrrev_b32 v1, 6, v0")
    e("v_and_b32 v2, 63, v0")
    e("v_and_b32 v3, 31, v0")
    e("v_readfirstlane_b32 s%d, v1" % S_WAVE)
    e("v_bfe_u32 v4, v0, 5, 1")
    e("v_lshlrev_b32 v5, 4, v2")
    e("v_add_u32 v6, 0x10000, v5")
    e("v_add_u32 v7, 0x20000, v5")
    e("v_lshlrev_b32 v%d, 2, v2" % V_L4)
    e("v_mov_b32 v%d, 1" % V_ONE)
    e("v_mov_b32 v%d, 0" % V_ZERO)
    e("s_and_b32 s%d, s2, 7" % S_G)
    e("s_lshr_b32 s%d, s2, 3" % S_J)
    e("s_and_b32 s52, s52, 15")
    e("s_add_u32 s52, s52, 1")
    e("s_mov_b32 s%d, 0" % S_MODE)
    e("s_mov_b32 s%d, 0" % S_LOFF)
    e("s_mov_b32 s%d, 0x%x" % (S_XIN, XT))
    e("s_mov_b32 s%d, 0x%x" % (S_FLL, FLAGS + FL_L))
    e("s_mov_b32 s%d, 0" % S_LAYER)
    e("s_mov_b32 s%d, 0x%x" % (S_STIN, STATS))
    e("s_mov_b32 s%d, 0x%x" % (S_FXIN, FLAGS + FL_X))
    e("s_mov_b32 s%d, 0" % S_STI)
    e("s_waitcnt lgkmcnt(0)")
    ws_srd(k, 32, 36)
    e("s_mov_b32 s40, s30"); e("s_mov_b32 s41, s31"); e("s_mov_b32 s42, %d" % (2048*512*2)); e("s_mov_b32 s43, 0x20000")
    k.stamp()
    lc = k.newlabel()
    e("s_cmp_lg_u32 s%d, 7" % S_WAVE)
    e("s_cbranch_scc1 %s" % lc)
    e("s_lshl_b32 s13, s%d, 5" % S_G)
    e("s_add_u32 s13, s13, s%d" % S_J)
    e("s_lshl_b32 s13, s13, 2")
    e("s_add_u32 s13, s13, 0x%x" % (FLAGS + FL_CENSUS))
    e("v_mov_b32 v8, s52")
    e("s_mov_b64 exec, 1")
    e("buffer_store_dword v8, v%d, %s, s13 offen sc1" % (V_ZERO, SRD))
    e("s_mov_b64 exec, -1")
    k.label(lc)
    k.label("L_layer")
    k.vm = []; k.lg = []
    phase_rowgemm(k, "qkv"); k.stamp()
    phase_attn(k); k.stamp()
    phase_ldsgemm(k, "wo"); k.stamp()
    k.vm = []; k.lg = []
    phase_rowgemm(k, "gateup"); k.stamp()
    phase_ldsgemm(k, "down"); k.stamp()
    e("s_add_u32 s%d, s%d, 1" % (S_LAYER, S_LAYER))
    e("s_add_u32 s%d, s%d, 0x%x" % (S_LOFF, S_LOFF, LSTR))
    e("s_add_u32 s%d, s%d, 0x400000" % (S_XIN, S_XIN))
    e("s_add_u32 s%d, s%d, 0x8000" % (S_FLL, S_FLL))
    e("s_add_u32 s%d, s%d, 0x100000" % (S_STIN, S_STIN))
    e("s_add_u32 s%d, s%d, 8192" % (S_FXIN, S_FXIN))
    e("s_cmp_lt_u32 s%d, 2" % S_LAYER)
    e("s_cbranch_scc1 L_layer")
    if STAMP:
        e("s_waitcnt vmcnt(0)")
        k.stamp()
        e("s_lshl_b32 s13, s2, 3")
        e("s_add_u32 s13, s13, s%d" % S_WAVE)
        e("s_lshl_b32 s13, s13, 8")
        e("s_add_u32 s13, s13, 0x%x" % STAMPS)
        e("buffer_store_dword v0, v%d, %s, s13 offen" % (V_L4, SRD))
    k.label("L_main_end")
    e("s_endpgm")
    return k.text(128, 128)

def gen_prep2():
    txt = gen.gen_prep()
    n0 = gen.N_STRIP_WG + gen.N_X_WG
    nz = FLAGS_BYTES // 4096
    head = "  s_cmp_ge_u32 s2, %d\n  s_cbranch_scc1 L_prep_end\n" % n0
    assert head in txt
    new = ("  s_cmp_ge_u32 s2, %d\n  s_cbranch_scc1 L_prep_end\n  s_cmp_ge_u32 s2, %d\n  s_cbranch_scc1 L_prep_zero\n" % (n0 + nz, n0))
    txt = txt.replace(head, new)
    zero = """  s_endpgm
L_prep_zero:
  s_load_dwordx2 s[32:33], s[0:1], 72
  s_sub_u32 s4, s2, %d
  s_lshl_b32 s4, s4, 12
  s_add_u32 s4, s4, 0x%x
  v_lshlrev_b32 v1, 4, v0
  v_mov_b32 v4, 0
  v_mov_b32 v5, 0
  v_mov_b32 v6, 0
  v_mov_b32 v7, 0
  s_waitcnt lgkmcnt(0)
  s_mov_b32 s36, s32
  s_mov_b32 s37, s33
  s_mov_b32 s38, 0x%x
  s_mov_b32 s39, 0x20000
  buffer_store_dwordx4 v[4:7], v1, s[36:39], s4 offen
L_prep_end:
""" % (n0, FLAGS, gen.WS_SIZE)
    assert txt.count("L_prep_end:\n") == 1
    txt = txt.replace("L_prep_end:\n", zero)
    return txt, n0 + nz

def main(out_path):
    import gen_prep
    ptxt, nprep = gen_prep.gen_prep(sys.modules[__name__])
    launches = [("prep_kernel", nprep, 64, 16384), ("main_kernel", 256, 512, 163840)]
    txt = HEADER
    for name, g, b, lds in launches:
        txt += "; @launch kernel=%s grid=(%d,1,1) block=(%d,1,1) lds=%d\n" % (name, g, b, lds)
    txt += '.amdgcn_target "amdgcn-amd-amdhsa--gfx950"\n'
    txt += ptxt + gen_main()
    open(out_path, "w").write(txt)

if __name__ == "__main__":
    main(sys.argv[1] if len(sys.argv) > 1 else "p.s")
```

```python
import gen
from gen import Kern, ws_srd, ONES_BF16
def gen_prep(G):
    k = Kern("prep_kernel"); e = k.e
    NQ, NG, NO, ND = 24*4, 28*4, 8*4, 8*14
    B_G = NQ; B_U = B_G + NG; B_O = B_U + NG; B_D = B_O + NO; B_X = B_D + ND
    NX = 256
    B_Z = B_X + NX
    NZ = G.FLAGS_BYTES // 1024
    NTOT = B_Z + NZ
    e("s_cmp_ge_u32 s2, %d" % NTOT)
    e("s_cbranch_scc1 L_prep_end")
    e("s_load_dwordx16 s[16:31], s[0:1], 0")
    e("s_load_dwordx2 s[32:33], s[0:1], 72")
    e("v_and_b32 v3, 31, v0")
    e("v_lshrrev_b32 v4, 5, v0")
    e("v_lshlrev_b32 v2, 4, v0")
    e("s_mov_b32 s53, 0x%x" % ONES_BF16)
    e("s_waitcnt lgkmcnt(0)")
    ws_srd(k, 32, 36)
    e("s_mov_b32 s43, 0x20000")
    e("s_cmp_ge_u32 s2, %d" % B_Z)
    e("s_cbranch_scc1 L_prep_zero")
    e("s_cmp_ge_u32 s2, %d" % B_X)
    e("s_cbranch_scc1 L_prep_x")
    e("s_mov_b32 s47, 256"); e("s_mov_b32 s48, 0"); e("s_mov_b32 s50, 256")
    e("s_cmp_lt_u32 s2, %d" % B_G)
    e("s_cbranch_scc0 L_prep_n1")
    e("s_mov_b32 s40, s18"); e("s_mov_b32 s41, s19"); e("s_mov_b32 s42, %d" % (512*1536*2)); e("s_mov_b32 s44, 3072")
    e("s_lshr_b32 s45, s2, 2"); e("s_and_b32 s52, s2, 3")
    e("s_lshr_b32 s55, s45, 3")
    e("s_and_b32 s56, s45, 7")
    e("s_mul_i32 s56, s56, 6")
    e("s_add_u32 s56, s56, s55")
    e("s_lshl_b32 s46, s56, 15"); e("s_add_u32 s46, s46, 0x%x" % G.WQKV_F); e("s_mov_b32 s51, %d" % (3*32768))
    e("s_lshl_b32 s49, s56, 10"); e("s_add_u32 s49, s49, 0x%x" % G.CS_QKV); e("s_mov_b32 s54, 3072")
    e("s_branch L_prep_strip")
    k.label("L_prep_n1")
    e("s_cmp_lt_u32 s2, %d" % B_O)
    e("s_cbranch_scc0 L_prep_n2")
    e("s_mov_b32 s42, %d" % (512*1792*2)); e("s_mov_b32 s44, 3584")
    e("s_mov_b32 s47, 32768"); e("s_mov_b32 s50, 1024")
    e("s_sub_u32 s55, s2, %d" % B_G)
    e("s_mov_b32 s40, s24"); e("s_mov_b32 s41, s25")
    e("s_cmp_lt_u32 s2, %d" % B_U)
    e("s_cbranch_scc1 L_prep_gu")
    e("s_sub_u32 s55, s2, %d" % B_U)
    e("s_mov_b32 s40, s26"); e("s_mov_b32 s41, s27"); e("s_mov_b32 s48, 256")
    k.label("L_prep_gu")
    e("s_lshr_b32 s45, s55, 2"); e("s_and_b32 s52, s55, 3")
    e("s_lshl_b32 s46, s45, 17"); e("s_add_u32 s46, s46, 0x%x" % G.WGU_F); e("s_mov_b32 s51, 65536")
    e("s_lshl_b32 s49, s45, 12"); e("s_add_u32 s49, s49, 0x%x" % G.CS_GU); e("s_mov_b32 s54, 2048")
    e("s_branch L_prep_strip")
    k.label("L_prep_n2")
    e("s_mov_b32 s44, 1024"); e("s_mov_b32 s49, 0x%x" % gen.CS_DUM); e("s_mov_b32 s54, 1024")
    e("s_cmp_lt_u32 s2, %d" % B_D)
    e("s_cbranch_scc0 L_prep_n3")
    e("s_mov_b32 s40, s20"); e("s_mov_b32 s41, s21"); e("s_mov_b32 s42, %d" % (512*512*2))
    e("s_sub_u32 s55, s2, %d" % B_O)
    e("s_lshr_b32 s45, s55, 2"); e("s_and_b32 s52, s55, 3")
    e("s_lshl_b32 s46, s45, 16"); e("s_add_u32 s46, s46, 0x%x" % G.WO_F); e("s_mov_b32 s51, 32768")
    e("s_branch L_prep_strip")
    k.label("L_prep_n3")
    e("s_mov_b32 s40, s28"); e("s_mov_b32 s41, s29"); e("s_mov_b32 s42, %d" % (1792*512*2))
    e("s_sub_u32 s55, s2, %d" % B_D)
    e("s_and_b32 s45, s55, 7"); e("s_lshr_b32 s52, s55, 3")
    e("s_mul_i32 s46, s45, %d" % (2*112*1024)); e("s_add_u32 s46, s46, 0x%x" % G.WD_F); e("s_mov_b32 s51, %d" % (112*1024))
    k.label("L_prep_strip")
    e("v_lshrrev_b32 v5, 3, v0")
    e("v_mul_lo_u32 v5, v5, s44")
    e("v_and_b32 v6, 7, v0")
    e("v_lshl_add_u32 v5, v6, 4, v5")
    e("s_lshl_b32 s55, s52, 7"); e("s_mul_i32 s55, s55, s44")
    e("s_lshl_b32 s56, s45, 7"); e("s_add_u32 s55, s55, s56")
    e("s_lshl_b32 s56, s44, 3")
    for i in range(16):
        e("s_mov_b32 m0, %d" % (i*1024))
        if i: e("s_add_u32 s55, s55, s56")
        else: e("s_nop 0")
        k.vmem("buffer_load_dwordx4 v5, s[40:43], s55 offen lds", ("ld", i))
    e("v_bfe_u32 v7, v0, 2, 2")
    e("v_lshl_add_u32 v7, v4, 2, v7")
    e("v_lshlrev_b32 v7, 7, v7")
    e("v_bfe_u32 v8, v0, 4, 1")
    e("v_lshl_add_u32 v7, v8, 5, v7")
    e("v_and_b32 v8, 3, v0")
    e("v_lshl_add_u32 v7, v8, 3, v7")
    e("v_lshrrev_b32 v9, 4, v3")
    e("v_and_b32 v8, 15, v3")
    e("v_lshlrev_b32 v8, 4, v8")
    e("v_mul_lo_u32 v6, v9, s47")
    e("v_add_u32 v6, v6, v8")
    e("v_lshl_add_u32 v6, v4, 9, v6")
    e("v_add_u32 v6, s48, v6")
    e("v_mul_lo_u32 v10, v9, s50")
    e("v_add_u32 v10, v10, v8")
    e("s_bfe_u32 s57, s52, 0x10001"); e("s_lshl_b32 s57, s57, 9")
    e("s_and_b32 s58, s52, 1"); e("s_lshl_b32 s58, s58, 3")
    e("s_add_u32 s57, s57, s58"); e("s_add_u32 s57, s57, s48"); e("s_add_u32 s57, s57, s49")
    e("v_add_u32 v10, s57, v10")
    e("v_mov_b32 v11, 0"); e("v_mov_b32 v12, 0")
    KPERM = getattr(G, "kstep_dest", None)
    e("s_lshl_b32 s57, s52, 13")
    e("s_add_u32 s57, s57, s46")
    e("s_add_u32 s58, s57, s51")
    for ks in range(8):
        k.wait_vm(("ld", 2*ks+1))
        for hh in range(2):
            b = 16 + 8*ks + 4*hh
            k.lds("ds_read_b64_tr_b16 v[%d:%d], v7 offset:%d" % (b, b+1, ks*2048 + hh*64), ("t", ks))
            k.lds("ds_read_b64_tr_b16 v[%d:%d], v7 offset:%d" % (b+2, b+3, ks*2048 + 1024 + hh*64), ("t", ks))
    for ks in range(8):
        k.wait_lg(("t", ks))
        if ks == 4:
            e("s_add_u32 s57, s57, 4096"); e("s_add_u32 s58, s58, 4096")
        for hh in range(2):
            b = 16 + 8*ks + 4*hh
            k.vmem("buffer_store_dwordx4 v[%d:%d], v6, s[36:39], s%d offen offset:%d" % (b, b+3, 57+hh, (ks % 4)*1024), "st")
            for j in range(4):
                e("v_dot2_f32_bf16 v%d, v%d, s53, v%d" % (11+hh, b+j, 11+hh))
    e("s_nop 2")
    e("v_mov_b32 v13, v11"); e("v_mov_b32 v14, v12")
    e("s_nop 1")
    e("v_permlane32_swap_b32 v11, v13"); e("v_permlane32_swap_b32 v12, v14")
    e("s_nop 1")
    e("v_add_f32 v11, v11, v13"); e("v_add_f32 v12, v12, v14")
    for hh in range(2):
        c = 11 + hh
        e("v_cvt_pk_bf16_f32 v13, v%d, v%d" % (c, c))
        e("v_lshlrev_b32 v13, 16, v13")
        e("v_sub_f32 v13, v%d, v13" % c)
        e("v_cvt_pk_bf16_f32 v%d, v%d, v13" % (80+2*hh, c))
        e("v_mov_b32 v%d, v%d" % (81+2*hh, 80+2*hh))
    e("s_mov_b32 exec_hi, 0")
    e("buffer_store_dwordx2 v[80:81], v10, s[36:39], 0 offen")
    e("buffer_store_dwordx2 v[82:83], v10, s[36:39], s54 offen")
    e("s_endpgm")
    k.label("L_prep_x")
    k.vm = []; k.lg = []
    e("s_mov_b32 s40, s16"); e("s_mov_b32 s41, s17"); e("s_mov_b32 s42, %d" % (2048*512*2))
    e("s_sub_u32 s54, s2, %d" % B_X)
    e("s_lshr_b32 s55, s54, 2")
    e("s_and_b32 s56, s54, 3")
    e("s_lshl_b32 s57, s55, 15")
    e("s_lshl_b32 s58, s56, 8")
    e("s_add_u32 s58, s58, s57")
    e("v_lshlrev_b32 v5, 10, v3")
    e("v_lshl_add_u32 v5, v4, 4, v5")
    for ks in range(8):
        k.vmem("buffer_load_dwordx4 v[%d:%d], v5, s[40:43], s58 offen offset:%d" % (16+4*ks, 19+4*ks, 32*ks), ("x", ks))
    e("s_lshl_b32 s59, s56, 13")
    e("s_add_u32 s59, s59, s57")
    e("s_add_u32 s59, s59, 0x%x" % G.XT)
    e("s_lshl_b32 s60, s55, 13")
    e("s_lshl_b32 s61, s56, 11")
    e("s_add_u32 s60, s60, s61")
    e("s_add_u32 s60, s60, 0x%x" % G.STATS)
    for r in range(8): e("v_mov_b32 v%d, 0" % (64+r))
    for ks in range(8):
        k.wait_vm(("x", ks))
        b = 16 + 4*ks
        e("v_permlane32_swap_b32 v%d, v%d" % (b, b+2))
        e("v_permlane32_swap_b32 v%d, v%d" % (b+1, b+3))
        if ks == 4: e("s_add_u32 s59, s59, 4096")
        else: e("s_nop 0")
        e("s_nop 0")
        k.vmem("buffer_store_dwordx4 v[%d:%d], v2, s[36:39], s59 offen offset:%d" % (b, b+3, (ks % 4)*1024), "st")
        ct = ks // 2
        for j in range(4):
            e("v_dot2_f32_bf16 v%d, v%d, s53, v%d" % (64+2*ct, b+j, 64+2*ct))
            e("v_dot2_f32_bf16 v%d, v%d, v%d, v%d" % (65+2*ct, b+j, b+j, 65+2*ct))
    e("s_nop 3")
    e("buffer_store_dwordx4 v[64:67], v2, s[36:39], s60 offen")
    e("buffer_store_dwordx4 v[68:71], v2, s[36:39], s60 offen offset:1024")
    e("s_endpgm")
    k.label("L_prep_zero")
    e("s_sub_u32 s4, s2, %d" % B_Z)
    e("s_lshl_b32 s4, s4, 10")
    e("s_add_u32 s4, s4, 0x%x" % G.FLAGS)
    for r in range(4): e("v_mov_b32 v%d, 0" % (4+r))
    e("buffer_store_dwordx4 v[4:7], v2, s[36:39], s4 offen")
    k.label("L_prep_end")
    e("s_endpgm")
    return k.text(96, 0), NTOT
```

```python
import gen
from gen import Kern, ws_srd, ONES_BF16
def gen_prep(G):
    k = Kern("prep_kernel"); e = k.e
    NQ, NG, NO, ND = 24*4, 28*4, 8*4, 8*14
    B_G = NQ; B_U = B_G + NG; B_O = B_U + NG; B_D = B_O + NO; B_X = B_D + ND
    NX = 256
    B_Z = B_X + NX
    NZ = G.FLAGS_BYTES // 1024
    NTOT = B_Z + NZ
    e("s_cmp_ge_u32 s2, %d" % NTOT)
    e("s_cbranch_scc1 L_prep_end")
    e("s_load_dwordx16 s[16:31], s[0:1], 0")
    e("s_load_dwordx2 s[32:33], s[0:1], 72")
    e("v_and_b32 v3, 31, v0")
    e("v_lshrrev_b32 v4, 5, v0")
    e("v_lshlrev_b32 v2, 4, v0")
    e("s_mov_b32 s53, 0x%x" % ONES_BF16)
    e("s_waitcnt lgkmcnt(0)")
    ws_srd(k, 32, 36)
    e("s_mov_b32 s43, 0x20000")
    e("s_cmp_ge_u32 s2, %d" % B_Z)
    e("s_cbranch_scc1 L_prep_zero")
    e("s_cmp_ge_u32 s2, %d" % B_X)
    e("s_cbranch_scc1 L_prep_x")
    e("s_mov_b32 s47, 256"); e("s_mov_b32 s48, 0"); e("s_mov_b32 s50, 256"); e("s_mov_b32 s59, 0")
    e("s_cmp_lt_u32 s2, %d" % B_G)
    e("s_cbranch_scc0 L_prep_n1")
    e("s_mov_b32 s40, s18"); e("s_mov_b32 s41, s19"); e("s_mov_b32 s42, %d" % (512*1536*2)); e("s_mov_b32 s44, 3072")
    e("s_lshr_b32 s45, s2, 2"); e("s_and_b32 s52, s2, 3")
    e("s_lshr_b32 s55, s45, 3")
    e("s_and_b32 s56, s45, 7")
    e("s_mul_i32 s56, s56, 6")
    e("s_add_u32 s56, s56, s55")
    e("s_lshl_b32 s46, s56, 15"); e("s_add_u32 s46, s46, 0x%x" % G.WQKV_F); e("s_mov_b32 s51, %d" % (3*32768))
    e("s_lshl_b32 s49, s56, 10"); e("s_add_u32 s49, s49, 0x%x" % G.CS_QKV); e("s_mov_b32 s54, 3072")
    e("s_branch L_prep_strip")
    k.label("L_prep_n1")
    e("s_cmp_lt_u32 s2, %d" % B_O)
    e("s_cbranch_scc0 L_prep_n2")
    e("s_mov_b32 s42, %d" % (512*1792*2)); e("s_mov_b32 s44, 3584")
    e("s_mov_b32 s47, 32768"); e("s_mov_b32 s50, 1024")
    e("s_sub_u32 s55, s2, %d" % B_G)
    e("s_mov_b32 s40, s24"); e("s_mov_b32 s41, s25")
    e("s_cmp_lt_u32 s2, %d" % B_U)
    e("s_cbranch_scc1 L_prep_gu")
    e("s_sub_u32 s55, s2, %d" % B_U)
    e("s_mov_b32 s40, s26"); e("s_mov_b32 s41, s27"); e("s_mov_b32 s48, 256")
    k.label("L_prep_gu")
    e("s_lshr_b32 s45, s55, 2"); e("s_and_b32 s52, s55, 3")
    e("s_lshl_b32 s46, s45, 17"); e("s_add_u32 s46, s46, 0x%x" % G.WGU_F); e("s_mov_b32 s51, 65536")
    e("s_lshl_b32 s49, s45, 12"); e("s_add_u32 s49, s49, 0x%x" % G.CS_GU); e("s_mov_b32 s54, 2048")
    e("s_branch L_prep_strip")
    k.label("L_prep_n2")
    e("s_mov_b32 s44, 1024"); e("s_mov_b32 s49, 0x%x" % gen.CS_DUM); e("s_mov_b32 s54, 1024")
    e("s_cmp_lt_u32 s2, %d" % B_D)
    e("s_cbranch_scc0 L_prep_n3")
    e("s_mov_b32 s40, s20"); e("s_mov_b32 s41, s21"); e("s_mov_b32 s42, %d" % (512*512*2))
    e("s_sub_u32 s55, s2, %d" % B_O)
    e("s_lshr_b32 s45, s55, 2"); e("s_and_b32 s52, s55, 3")
    e("s_lshl_b32 s46, s45, 16"); e("s_add_u32 s46, s46, 0x%x" % G.WO_F); e("s_mov_b32 s51, 32768")
    e("s_branch L_prep_strip")
    k.label("L_prep_n3")
    e("s_mov_b32 s40, s28"); e("s_mov_b32 s41, s29"); e("s_mov_b32 s42, %d" % (1792*512*2))
    e("s_sub_u32 s55, s2, %d" % B_D)
    e("s_and_b32 s45, s55, 7"); e("s_lshr_b32 s52, s55, 3")
    if getattr(G, "H_TMAJOR", False): e("s_mov_b32 s59, 1")
    e("s_mul_i32 s46, s45, %d" % (2*112*1024)); e("s_add_u32 s46, s46, 0x%x" % G.WD_F); e("s_mov_b32 s51, %d" % (112*1024))
    k.label("L_prep_strip")
    e("v_lshrrev_b32 v5, 3, v0")
    e("v_mul_lo_u32 v5, v5, s44")
    e("v_and_b32 v6, 7, v0")
    e("v_lshl_add_u32 v5, v6, 4, v5")
    e("s_lshl_b32 s55, s52, 7"); e("s_mul_i32 s55, s55, s44")
    e("s_lshl_b32 s56, s45, 7"); e("s_add_u32 s55, s55, s56")
    e("s_lshl_b32 s56, s44, 3")
    for i in range(16):
        e("s_mov_b32 m0, %d" % (i*1024))
        if i: e("s_add_u32 s55, s55, s56")
        else: e("s_nop 0")
        k.vmem("buffer_load_dwordx4 v5, s[40:43], s55 offen lds", ("ld", i))
    e("v_bfe_u32 v7, v0, 2, 2")
    e("v_lshl_add_u32 v7, v4, 2, v7")
    e("v_lshlrev_b32 v7, 7, v7")
    e("v_bfe_u32 v8, v0, 4, 1")
    e("v_lshl_add_u32 v7, v8, 5, v7")
    e("v_and_b32 v8, 3, v0")
    e("v_lshl_add_u32 v7, v8, 3, v7")
    e("v_lshrrev_b32 v9, 4, v3")
    e("v_and_b32 v8, 15, v3")
    e("v_lshlrev_b32 v8, 4, v8")
    e("v_mul_lo_u32 v6, v9, s47")
    e("v_add_u32 v6, v6, v8")
    e("v_lshl_add_u32 v6, v4, 9, v6")
    e("v_add_u32 v6, s48, v6")
    e("v_mul_lo_u32 v10, v9, s50")
    e("v_add_u32 v10, v10, v8")
    e("s_bfe_u32 s57, s52, 0x10001"); e("s_lshl_b32 s57, s57, 9")
    e("s_and_b32 s58, s52, 1"); e("s_lshl_b32 s58, s58, 3")
    e("s_add_u32 s57, s57, s58"); e("s_add_u32 s57, s57, s48"); e("s_add_u32 s57, s57, s49")
    e("v_add_u32 v10, s57, v10")
    e("v_mov_b32 v11, 0"); e("v_mov_b32 v12, 0")
    KPERM = getattr(G, "kstep_dest", None)
    for ks in range(8):
        e("s_lshl_b32 s57, s52, 3")
        e("s_add_u32 s57, s57, %d" % ks)
        e("s_mul_i32 s58, s57, 9363")
        e("s_lshr_b32 s58, s58, 16")
        e("s_mul_i32 s60, s58, 7")
        e("s_sub_u32 s60, s57, s60")
        e("s_lshl_b32 s60, s60, 4")
        e("s_add_u32 s60, s60, s58")
        e("s_cmp_eq_u32 s59, 1")
        e("s_cselect_b32 s57, s60, s57")
        e("s_lshl_b32 s57, s57, 10")
        e("s_add_u32 s%d, s57, s46" % (64+2*ks))
        e("s_add_u32 s%d, s%d, s51" % (65+2*ks, 64+2*ks))
    for ks in range(8):
        k.wait_vm(("ld", 2*ks+1))
        for hh in range(2):
            b = 16 + 8*ks + 4*hh
            k.lds("ds_read_b64_tr_b16 v[%d:%d], v7 offset:%d" % (b, b+1, ks*2048 + hh*64), ("t", ks))
            k.lds("ds_read_b64_tr_b16 v[%d:%d], v7 offset:%d" % (b+2, b+3, ks*2048 + 1024 + hh*64), ("t", ks))
    for ks in range(8):
        k.wait_lg(("t", ks))
        for hh in range(2):
            b = 16 + 8*ks + 4*hh
            k.vmem("buffer_store_dwordx4 v[%d:%d], v6, s[36:39], s%d offen" % (b, b+3, 64+2*ks+hh), "st")
            for j in range(4):
                e("v_dot2_f32_bf16 v%d, v%d, s53, v%d" % (11+hh, b+j, 11+hh))
    e("s_nop 2")
    e("v_mov_b32 v13, v11"); e("v_mov_b32 v14, v12")
    e("s_nop 1")
    e("v_permlane32_swap_b32 v11, v13"); e("v_permlane32_swap_b32 v12, v14")
    e("s_nop 1")
    e("v_add_f32 v11, v11, v13"); e("v_add_f32 v12, v12, v14")
    for hh in range(2):
        c = 11 + hh
        e("v_cvt_pk_bf16_f32 v13, v%d, v%d" % (c, c))
        e("v_lshlrev_b32 v13, 16, v13")
        e("v_sub_f32 v13, v%d, v13" % c)
        e("v_cvt_pk_bf16_f32 v%d, v%d, v13" % (80+2*hh, c))
        e("v_mov_b32 v%d, v%d" % (81+2*hh, 80+2*hh))
    e("s_mov_b32 exec_hi, 0")
    e("buffer_store_dwordx2 v[80:81], v10, s[36:39], 0 offen")
    e("buffer_store_dwordx2 v[82:83], v10, s[36:39], s54 offen")
    e("s_endpgm")
    k.label("L_prep_x")
    k.vm = []; k.lg = []
    e("s_mov_b32 s40, s16"); e("s_mov_b32 s41, s17"); e("s_mov_b32 s42, %d" % (2048*512*2))
    e("s_sub_u32 s54, s2, %d" % B_X)
    e("s_lshr_b32 s55, s54, 2")
    e("s_and_b32 s56, s54, 3")
    e("s_lshl_b32 s57, s55, 15")
    e("s_lshl_b32 s58, s56, 8")
    e("s_add_u32 s58, s58, s57")
    e("v_lshlrev_b32 v5, 10, v3")
    e("v_lshl_add_u32 v5, v4, 4, v5")
    for ks in range(8):
        k.vmem("buffer_load_dwordx4 v[%d:%d], v5, s[40:43], s58 offen offset:%d" % (16+4*ks, 19+4*ks, 32*ks), ("x", ks))
    e("s_lshl_b32 s59, s56, 13")
    e("s_add_u32 s59, s59, s57")
    e("s_add_u32 s59, s59, 0x%x" % G.XT)
    e("s_lshl_b32 s60, s55, 13")
    e("s_lshl_b32 s61, s56, 11")
    e("s_add_u32 s60, s60, s61")
    e("s_add_u32 s60, s60, 0x%x" % G.STATS)
    for r in range(8): e("v_mov_b32 v%d, 0" % (64+r))
    for ks in range(8):
        k.wait_vm(("x", ks))
        b = 16 + 4*ks
        e("v_permlane32_swap_b32 v%d, v%d" % (b, b+2))
        e("v_permlane32_swap_b32 v%d, v%d" % (b+1, b+3))
        if ks == 4: e("s_add_u32 s59, s59, 4096")
        else: e("s_nop 0")
        e("s_nop 0")
        k.vmem("buffer_store_dwordx4 v[%d:%d], v2, s[36:39], s59 offen offset:%d" % (b, b+3, (ks % 4)*1024), "st")
        ct = ks // 2
        for j in range(4):
            e("v_dot2_f32_bf16 v%d, v%d, s53, v%d" % (64+2*ct, b+j, 64+2*ct))
            e("v_dot2_f32_bf16 v%d, v%d, v%d, v%d" % (65+2*ct, b+j, b+j, 65+2*ct))
    e("s_nop 3")
    e("buffer_store_dwordx4 v[64:67], v2, s[36:39], s60 offen")
    e("buffer_store_dwordx4 v[68:71], v2, s[36:39], s60 offen offset:1024")
    e("s_endpgm")
    k.label("L_prep_zero")
    e("s_sub_u32 s4, s2, %d" % B_Z)
    e("s_lshl_b32 s4, s4, 10")
    e("s_add_u32 s4, s4, 0x%x" % G.FLAGS)
    for r in range(4): e("v_mov_b32 v%d, 0" % (4+r))
    e("buffer_store_dwordx4 v[4:7], v2, s[36:39], s4 offen")
    k.label("L_prep_end")
    e("s_endpgm")
    return k.text(96, 0), NTOT
```

```python
import sys, struct, os
import gen
from gen import Kern, f32bits, ws_srd, ONES_BF16, LOG2E, QSCALE, NEGBIG, stats_reduce_ops, HEADER

STAMP = int(os.environ.get('STAMP', '0'))
FORCE_SLOW = int(os.environ.get('FORCE_SLOW', '0'))
WQKV_F, WO_F, WGU_F, WD_F, CS_QKV, CS_GU = gen.WQKV_F, gen.WO_F, gen.WGU_F, gen.WD_F, gen.CS_QKV, gen.CS_GU
XT     = 0x0800000
STATS  = 0x1000000
FLAGS  = 0x1200000
LSTR   = 0x1400000
QF     = 0x1400000
KF     = 0x1600000
VF     = 0x1800000
KH     = 0x1A00000
VH     = 0x1C00000
OT     = 0x1E00000
HT     = 0x2000000
STAMPS = 0x6000000
H_TMAJOR = True
FL_CENSUS = 0x0000
FL_X   = 0x1000
FL_L   = 0x8000
FL_KV  = 0x0000
FL_KVH = 0x1000
FL_Q   = 0x2000
FL_O   = 0x3000
FL_H   = 0x5000
FLAGS_BYTES = 0x18000

S_WAVE, S_G, S_J = 3, 4, 5
S_MODE, S_LOFF, S_XIN, S_FLL, S_LAYER, S_STIN, S_FXIN, S_STI = 44, 45, 46, 47, 48, 49, 50, 51
SRD = "s[36:39]"
V_L4, V_ONE, V_ZERO = 125, 126, 127

a_ = list(range(8)); w_ = list(range(8, 20))
QMAP = [w_[4], w_[5], w_[6], w_[7], a_[4], w_[8], a_[5], w_[9], a_[6], w_[10], a_[7], w_[11]]
KV_BASE = 0
SCRATCH = w_[0]*8192
WOW = w_[0:8]
WOA = [a_[0], a_[1], a_[2], a_[3], w_[10], w_[11]]
GUR = [a_[4], a_[5], a_[6], a_[7], w_[8], w_[9], a_[0], a_[1], a_[2], a_[3], w_[10], w_[11]]
GU_PRE = 6
DN_PRE = 8

class PK(Kern):
    def stamp(self):
        if not STAMP: return
        self.e("s_memrealtime s[98:99]")
        self.e("s_waitcnt lgkmcnt(0)")
        self.lg = []
        self.e("s_mov_b32 m0, s%d" % S_STI)
        self.e("s_nop 0")
        self.e("v_writelane_b32 v0, s98, m0")
        self.e("s_add_u32 s%d, s%d, 1" % (S_STI, S_STI))

def stores(k, inss, tag=None):
    la, lb = k.newlabel(), k.newlabel()
    k.e("s_cmp_eq_u32 s%d, 1" % S_MODE)
    k.e("s_cbranch_scc1 %s" % la)
    for ins in inss: k.e(ins + " sc1")
    k.e("s_branch %s" % lb)
    k.label(la)
    for ins in inss: k.e(ins)
    k.label(lb)
    for ins in inss: k.vm.append(tag)

SPIN_LIMIT = 400000
def set_exec(k, nlanes):
    if nlanes >= 64: return
    assert nlanes <= 32
    k.e("s_mov_b32 exec_lo, 0x%x" % ((1 << nlanes) - 1))
    k.e("s_mov_b32 exec_hi, 0")

def poll(k, s_addr, nlanes, vtmp, val=1):
    lp, ld = k.newlabel(), k.newlabel()
    set_exec(k, nlanes)
    k.e("s_mov_b32 s53, 0")
    k.label(lp)
    k.e("buffer_load_dword v%d, v%d, %s, s%d offen sc1" % (vtmp, V_L4, SRD, s_addr))
    k.e("s_add_u32 s53, s53, 1")
    k.e("s_waitcnt vmcnt(0)")
    k.e("v_cmp_gt_u32 vcc, %d, v%d" % (val, vtmp))
    k.e("s_cbranch_vccz %s" % ld)
    k.e("s_cmp_lt_u32 s53, %d" % SPIN_LIMIT)
    k.e("s_cbranch_scc1 %s" % lp)
    k.label(ld)
    if nlanes < 64:
        k.e("s_mov_b64 exec, -1")
    k.vm = []

def flag_store(k, s_addr, v_val=V_ONE, extra_sc1=None):
    k.e("s_mov_b64 exec, 1")
    if extra_sc1 is not None:
        k.vmem("buffer_store_dword v%d, v%d, %s, s%d offen sc1" % (v_val, V_ZERO, SRD, extra_sc1), "flag")
    stores(k, ["buffer_store_dword v%d, v%d, %s, s%d offen" % (v_val, V_ZERO, SRD, s_addr)], "flag")
    k.e("s_mov_b64 exec, -1")

def census_check(k, vt):
    e = k.e
    lskip, lp, ld = k.newlabel(), k.newlabel(), k.newlabel()
    e("s_cmp_lg_u32 s%d, 0" % S_LAYER)
    e("s_cbranch_scc1 %s" % lskip)
    e("s_lshl_b32 s13, s%d, 7" % S_G)
    e("s_add_u32 s13, s13, 0x%x" % (FLAGS + FL_CENSUS))
    set_exec(k, 32)
    e("s_mov_b32 s53, 0")
    k.label(lp)
    e("buffer_load_dword v%d, v%d, %s, s13 offen sc1" % (vt, V_L4, SRD))
    e("s_add_u32 s53, s53, 1")
    e("s_waitcnt vmcnt(0)")
    e("v_cmp_eq_u32 vcc, 0, v%d" % vt)
    e("s_cbranch_vccz %s" % ld)
    e("s_cmp_lt_u32 s53, %d" % SPIN_LIMIT)
    e("s_cbranch_scc1 %s" % lp)
    k.label(ld)
    e("v_cmp_ne_u32 vcc, s52, v%d" % vt)
    e("s_mov_b64 exec, -1")
    e("s_cmp_eq_u64 vcc, 0")
    e("s_cselect_b32 s%d, %d, 0" % (S_MODE, 0 if FORCE_SLOW else 1))
    k.label(lskip)

def lds_addr(a):
    return 5 + a // 65536, a % 65536

QKV_ORDER = []
for c in range(4): QKV_ORDER += [(1, c), (2, c)]
for c in range(4): QKV_ORDER.append((0, c))
GU_ORDER = []
for c in range(4): GU_ORDER += [(0, c), (1, c)]
for t in range(2, 7):
    for c in range(4): GU_ORDER.append((t, c))

def loader_issue_qkv_w(k, ci, s_base, s_lw2k, tag="qw"):
    t, c = QKV_ORDER[ci]
    k.e("s_add_u32 m0, s%d, %d" % (s_lw2k, QMAP[ci]*8192))
    k.e("s_add_u32 s14, s%d, %d" % (s_base, t*32768 + c*8192))
    k.vmem("buffer_load_dwordx4 v5, %s, s14 offen lds" % SRD, (tag, ci))
    k.vmem("buffer_load_dwordx4 v5, %s, s14 offen offset:1024 lds" % SRD, (tag, ci))

def qkv_w_base(k, s_dst, s_lw2k):
    k.e("s_lshr_b32 s%d, s%d, 1" % (s_dst, S_J))
    k.e("s_mul_i32 s%d, s%d, %d" % (s_dst, s_dst, 3*32768))
    k.e("s_add_u32 s%d, s%d, s%d" % (s_dst, s_dst, s_lw2k))
    if WQKV_F: k.e("s_add_u32 s%d, s%d, 0x%x" % (s_dst, s_dst, WQKV_F))

def phase_rowgemm(k, kind):
    e = k.e
    k.vm = []; k.lg = []
    qkv = kind == "qkv"
    NT = 3 if qkv else 7
    CSB = CS_QKV if qkv else CS_GU
    NCH = NT*4
    ORDER = QKV_ORDER if qkv else GU_ORDER
    slot_of = (lambda ci: QMAP[ci]) if qkv else (lambda ci: GUR[ci % 12])
    P1 = (1, 2) if qkv else (0, 1)
    REST = [0] if qkv else [2, 3, 4, 5, 6]
    Lload, Ldone = k.newlabel("RL"), k.newlabel("RD")
    e("s_and_b32 s6, s%d, 1" % S_J)
    e("s_lshl_b32 s8, s%d, 1" % S_G)
    e("s_add_u32 s6, s6, s8")
    e("s_lshr_b32 s7, s%d, 1" % S_J)
    e("s_cmp_ge_u32 s%d, 4" % S_WAVE)
    e("s_cbranch_scc1 %s" % Lload)
    e("s_lshl_b32 s6, s6, 2")
    e("s_add_u32 s6, s6, s%d" % S_WAVE)
    e("s_lshl_b32 s8, s6, 15")
    e("s_add_u32 s8, s8, s%d" % S_XIN)
    if not qkv: e("s_add_u32 s8, s8, 0x200000")
    e("s_lshl_b32 s11, s6, 13")
    e("s_add_u32 s11, s11, s%d" % S_STIN)
    if not qkv: e("s_add_u32 s11, s11, 0x80000")
    e("s_mul_i32 s12, s7, %d" % (NT*1024))
    e("s_add_u32 s12, s12, 0x%x" % CSB)
    WF = 16
    ST = 64
    CSF = 96
    MFR = 8
    PKR = 80
    MEAN, RSTD, T0, T1, SC1, VAR = 12, 13, 14, 15, 1, 124
    for t in range(NT):
        if t == 4: e("s_add_u32 s12, s12, 4096")
        k.vmem("buffer_load_dwordx4 v[%d:%d], v5, %s, s12 offen offset:%d" % (CSF+4*t, CSF+4*t+3, SRD, (t % 4)*1024), "cs")
    e("s_lshl_b32 s13, s6, 6")
    e("s_add_u32 s13, s13, s%d" % S_FXIN)
    if not qkv: e("s_add_u32 s13, s13, 4096")
    if qkv:
        lskip = k.newlabel()
        e("s_cmp_eq_u32 s%d, 0" % S_LAYER)
        e("s_cbranch_scc1 %s" % lskip)
        keep = list(k.vm)
        poll(k, 13, 16, T0)
        k.label(lskip)
        k.vm = keep
    else:
        poll(k, 13, 16, T0)
    k.stamp()
    def mk_x(s):
        def f():
            if s % 4 == 0 and s > 0: e("s_add_u32 s8, s8, 4096")
            k.vmem("buffer_load_dwordx4 a[%d:%d], v5, %s, s8 offen offset:%d" % (4*s, 4*s+3, SRD, (s % 4)*1024), ("x", s))
        return f
    def mk_st(cq):
        def f():
            if cq == 4: e("s_add_u32 s11, s11, 4096")
            k.vmem("buffer_load_dwordx4 v[%d:%d], v5, %s, s11 offen offset:%d" % (ST+4*cq, ST+4*cq+3, SRD, (cq % 4)*1024), "stats")
        return f
    loads = [mk_x(s) for s in range(20)] + [mk_st(c) for c in range(8)] + [mk_x(s) for s in range(20, 32)]
    NPRE = 12
    for f in loads[:NPRE]: f()
    loads = loads[NPRE:]
    if qkv: census_check(k, T0)
    sched = []
    for s in range(32):
        sched.append((P1[0], s)); sched.append((P1[1], s))
    for t in REST:
        for s in range(32): sched.append((t, s))
    cidx = {tc: i for i, tc in enumerate(ORDER)}
    PF = 3
    total = len(sched)
    side = []
    nbar = [0]
    def rd(g):
        t, s = sched[g]
        ci = cidx[(t, s // 8)]
        while nbar[0] <= ci:
            e("s_barrier"); nbar[0] += 1
        va, off = lds_addr(slot_of(ci)*8192 + (s % 8)*1024)
        k.lds("ds_read_b128 v[%d:%d], v%d offset:%d" % (WF+4*(g % 4), WF+4*(g % 4)+3, va, off), ("wf", g))
    def cost(x):
        if callable(x): return 2
        return 2 if x.startswith(("v_exp", "v_rcp", "v_rsq")) else 1
    def run_side(budget):
        while side and budget > 0:
            x = side.pop(0)
            budget -= cost(x)
            if callable(x): x()
            else: e(x)
    if qkv: ACCM = {1: 32, 2: 48, 0: 108}
    else: ACCM = {t: [32, 48, 64][t % 3] for t in range(7)}
    def qkv_off():
        return ["s_lshl_b32 s15, s7, 17", "s_lshl_b32 s14, s6, 10", "s_add_u32 s15, s15, s14", "s_add_u32 s15, s15, s%d" % S_LOFF]
    def epi_k():
        acc = ACCM[1]; ops = []
        for r in range(16):
            ops.append("v_mul_f32 v%d, v%d, v%d" % (acc+r, RSTD, acc+r))
            if r % 2 == 1:
                ops.append("v_cvt_pk_bf16_f32 v%d, v%d, v%d" % (PKR + r//2, acc+r-1, acc+r))
        def st():
            for x in qkv_off(): e(x)
            e("s_add_u32 s13, s15, 0x%x" % KH)
            e("s_add_u32 s14, s13, 65536")
            k.vmem("buffer_store_dwordx4 v[%d:%d], v5, %s, s13 offen sc1" % (PKR, PKR+3, SRD), "st")
            k.vmem("buffer_store_dwordx4 v[%d:%d], v5, %s, s14 offen sc1" % (PKR+4, PKR+7, SRD), "st")
        def st2():
            e("s_add_u32 s13, s15, 0x%x" % KF)
            e("s_add_u32 s14, s13, 65536")
            stores(k, ["buffer_store_dwordx4 v[%d:%d], v5, %s, s13 offen" % (PKR, PKR+3, SRD),
                       "buffer_store_dwordx4 v[%d:%d], v5, %s, s14 offen" % (PKR+4, PKR+7, SRD)], "st")
        ops.append(st); ops.append(st2)
        return ops
    def epi_v():
        acc = ACCM[2]
        ops = [lambda: k.wait_lg("str")]
        for r in range(16):
            ops.append("v_mul_f32 v%d, v%d, v%d" % (acc+r, ST+r, acc+r))
            if r % 2 == 1:
                ops.append("v_cvt_pk_bf16_f32 v%d, v%d, v%d" % (PKR + 8 + r//2, acc+r-1, acc+r))
        ops += ["v_lshrrev_b32 v%d, 4, v3" % T0, "v_lshlrev_b32 v%d, 16, v%d" % (T0, T0), "v_and_b32 v%d, 15, v3" % T1,
                "v_lshl_add_u32 v%d, v%d, 4, v%d" % (T0, T1, T0), "v_lshl_add_u32 v%d, v4, 8, v%d" % (T0, T0)]
        def st():
            e("s_add_u32 s13, s15, 0x%x" % VH)
            k.vmem("buffer_store_dwordx4 v[%d:%d], v%d, %s, s13 offen sc1" % (PKR+8, PKR+11, T0, SRD), "st")
            k.vmem("buffer_store_dwordx4 v[%d:%d], v%d, %s, s13 offen offset:512 sc1" % (PKR+12, PKR+15, T0, SRD), "st")
        def st2():
            e("s_add_u32 s13, s15, 0x%x" % VF)
            stores(k, ["buffer_store_dwordx4 v[%d:%d], v%d, %s, s13 offen" % (PKR+8, PKR+11, T0, SRD),
                       "buffer_store_dwordx4 v[%d:%d], v%d, %s, s13 offen offset:512" % (PKR+12, PKR+15, T0, SRD)], "st")
        ops.append(st); ops.append(st2)
        return ops
    def stats_ops():
        ops = [lambda: k.wait_vm("stats")]
        ops += stats_reduce_ops(ST, MEAN, RSTD, T0, T1, VAR, MFR)
        if qkv:
            ops.append("v_mul_f32 v%d, 0x%x, v%d" % (SC1, f32bits(QSCALE), RSTD))
            def wr():
                e("s_lshl_b32 s15, s%d, 7" % S_WAVE)
                e("s_add_u32 s15, s15, %d" % SCRATCH)
                e("v_lshl_add_u32 v%d, v3, 2, s15" % T0)
                k.lds("ds_write_b32 v%d, v%d" % (T0, RSTD), "stw")
                e("v_lshl_add_u32 v%d, v4, 4, s15" % T0)
                k.wait_lg("stw")
                for g in range(4):
                    k.lds("ds_read_b128 v[%d:%d], v%d offset:%d" % (ST+4*g, ST+4*g+3, T0, g*32), "str")
            ops.append(wr)
        else:
            ops.append("v_mul_f32 v%d, 0x%x, v%d" % (SC1, f32bits(-LOG2E), RSTD))
        return ops
    def epi_gu(t):
        acc = ACCM[t]
        ops = []
        pk = PKR + 4*(t % 2)
        tm = PKR + 8
        for r in range(8):
            ops.append("v_mul_f32 v%d, v%d, v%d" % (tm+r, SC1, acc+r))
        for r in range(8):
            ops.append("v_exp_f32 v%d, v%d" % (tm+r, tm+r))
            ops.append("v_mul_f32 v%d, v%d, v%d" % (acc+r, acc+r, acc+8+r))
        for r in range(8):
            ops.append("v_fma_f32 v%d, v%d, v%d, v%d" % (tm+r, tm+r, VAR, VAR))
        for r in range(8):
            ops.append("v_rcp_f32 v%d, v%d" % (tm+r, tm+r))
        ops.append("s_nop 0")
        for r in range(8):
            ops.append("v_mul_f32 v%d, v%d, v%d" % (acc+r, acc+r, tm+r))
            if r % 2 == 1:
                ops.append("v_cvt_pk_bf16_f32 v%d, v%d, v%d" % (pk + r//2, acc+r-1, acc+r))
        def st():
            if t == 0:
                e("s_mul_i32 s13, s6, 112")
                e("s_add_u32 s13, s13, s7")
                e("s_lshl_b32 s13, s13, 10")
                e("s_add_u32 s13, s13, s%d" % S_LOFF)
                e("s_add_u32 s13, s13, 0x%x" % HT)
                e("s_lshl_b32 s15, s6, 6")
                e("s_lshl_b32 s14, s7, 2")
                e("s_add_u32 s15, s15, s14")
                e("s_add_u32 s15, s15, s%d" % S_FLL)
                e("s_add_u32 s15, s15, 0x%x" % FL_H)
            else:
                e("s_add_u32 s13, s13, 16384")
                if t >= 2:
                    k.wait_vm_all()
                    e("v_mov_b32 v%d, %d" % (T0, t))
                    flag_store(k, 15, T0)
            stores(k, ["buffer_store_dwordx4 v[%d:%d], v5, %s, s13 offen" % (pk, pk+3, SRD)], "st")
        ops.append(st)
        return ops
    def mf(acc, wf, xf, c, t):
        if qkv and t == 2:
            e("v_mfma_f32_32x32x16_bf16 v[%d:%d], %s, %s, %s" % (acc, acc+15, xf, wf, c))
        else:
            e("v_mfma_f32_32x32x16_bf16 v[%d:%d], %s, %s, %s" % (acc, acc+15, wf, xf, c))
    def corr(t):
        acc = ACCM[t]
        mf(acc, "v[%d:%d]" % (CSF+4*t, CSF+4*t+3), "v[%d:%d]" % (MFR, MFR+3), "v[%d:%d]" % (acc, acc+15), t)
    for g in range(PF):
        rd(g)
    for g in range(total):
        t, s = sched[g]
        if g + PF < total: rd(g + PF)
        if g == 36: side.extend(stats_ops())
        if g >= 64 and s == 3:
            if g < 96:
                if qkv: side.extend(epi_k() + epi_v())
                else: side.extend(epi_gu(0) + epi_gu(1))
            else:
                side.extend(epi_gu(t-1))
        if g < 64 and t == P1[0]: k.wait_vm(("x", s))
        k.wait_lg(("wf", g))
        acc = ACCM[t]
        mf(acc, "v[%d:%d]" % (WF+4*(g % 4), WF+4*(g % 4)+3), "a[%d:%d]" % (4*s, 4*s+3),
           "0" if s == 0 else "v[%d:%d]" % (acc, acc+15), t)
        if loads:
            loads.pop(0)()
        run_side(3 if g < 64 else (5 if qkv else (4 if g < 96 else 2)))
        if g == 63:
            run_side(1000)
            e("s_nop 1")
            corr(P1[0]); corr(P1[1])
            k.stamp()
        elif g > 63 and s == 31:
            run_side(1000)
            corr(t)
    k.wait_lg_all()
    e("s_barrier")
    k.stamp()
    if qkv:
        e("s_lshl_b32 s13, s7, 8")
        e("s_lshl_b32 s14, s6, 2")
        e("s_add_u32 s13, s13, s14")
        e("s_add_u32 s13, s13, s%d" % S_FLL)
        e("s_add_u32 s14, s13, 0x%x" % FL_KVH)
        e("s_add_u32 s16, s13, 0x%x" % FL_Q)
        acc = ACCM[0]
        e("s_nop 5")
        for r in range(16):
            e("v_mul_f32 v%d, v%d, v%d" % (acc+r, SC1, acc+r))
            if r % 2 == 1:
                e("v_cvt_pk_bf16_f32 v%d, v%d, v%d" % (ST + r//2, acc+r-1, acc+r))
        k.wait_vm_all()
        e("s_add_u32 s17, s15, 0x%x" % QF)
        e("s_add_u32 s18, s17, 65536")
        stores(k, ["buffer_store_dwordx4 v[%d:%d], v5, %s, s17 offen" % (ST, ST+3, SRD),
                   "buffer_store_dwordx4 v[%d:%d], v5, %s, s18 offen" % (ST+4, ST+7, SRD)], "st")
        flag_store(k, 13, V_ONE, extra_sc1=14)
        k.wait_vm("st")
        flag_store(k, 16)
    else:
        e("s_nop 11")
        side.extend(epi_gu(NT-1))
        run_side(1000)
        e("v_mov_b32 v%d, 7" % T0)
        k.wait_vm_all()
        flag_store(k, 15, T0)
    e("s_branch %s" % Ldone)
    k.label(Lload)
    k.vm = []; k.lg = []
    e("s_sub_u32 s10, s%d, 4" % S_WAVE)
    e("s_lshl_b32 s10, s10, 11")
    if qkv:
        for c in range(NCH):
            e("s_waitcnt vmcnt(%d)" % (2*(NCH-1-c)))
            e("s_barrier")
            if c == NCH-1: census_check(k, 8)
    else:
        e("s_mul_i32 s9, s7, %d" % (NT*32768))
        e("s_add_u32 s9, s9, s10")
        e("s_add_u32 s9, s9, 0x%x" % WGU_F)
        e("s_lshr_b32 s11, s%d, 2" % S_J)
        e("s_lshl_b32 s11, s11, 1")
        e("s_lshr_b32 s12, s10, 12")
        e("s_add_u32 s11, s11, s12")
        e("s_mul_i32 s11, s11, %d" % (112*1024))
        e("s_and_b32 s12, s10, 2048")
        e("s_add_u32 s11, s11, s12")
        e("s_add_u32 s11, s11, 0x%x" % WD_F)
        nxt = GU_PRE
        ndw = 0
        def issue_w(ci):
            t, c = ORDER[ci]
            e("s_add_u32 m0, s10, %d" % (slot_of(ci)*8192))
            e("s_add_u32 s8, s9, %d" % (t*32768 + c*8192))
            k.vmem("buffer_load_dwordx4 v5, %s, s8 offen lds" % SRD, ("w", ci))
            k.vmem("buffer_load_dwordx4 v5, %s, s8 offen offset:1024 lds" % SRD, ("w", ci))
        def issue_dw(c):
            e("s_add_u32 m0, s10, %d" % (w_[c]*8192))
            e("s_add_u32 s8, s11, %d" % (c*4096))
            k.vmem("buffer_load_dwordx4 v5, %s, s8 offen lds" % SRD, ("dw", c))
            k.vmem("buffer_load_dwordx4 v5, %s, s8 offen offset:1024 lds" % SRD, ("dw", c))
        LA = 6
        for c in range(NCH):
            lim = min(NCH-1, c - 1 + LA, max(11, c - 5 + 12))
            while nxt <= lim:
                issue_w(nxt); nxt += 1
            if c >= 11 and ndw < DN_PRE:
                issue_dw(ndw); ndw += 1
            k.wait_vm(("w", c))
            e("s_barrier")
        assert nxt == NCH and ndw == DN_PRE
        k.wait_vm_all()
    e("s_barrier")
    k.label(Ldone)
    k.vm = []; k.lg = []

def phase_attn(k):
    e = k.e
    k.vm = []; k.lg = []
    e("s_lshl_b32 s6, s%d, 3" % S_G)
    e("s_add_u32 s6, s6, s%d" % S_WAVE)
    e("s_lshl_b32 s7, s%d, 3" % S_G)
    e("s_lshl_b32 s8, s%d, 1" % S_WAVE)
    e("s_add_u32 s7, s7, s8")
    e("s_sub_i32 s7, s7, 8")
    e("s_mov_b32 s15, 0")
    e("s_mov_b32 s16, 0")
    lnh = k.newlabel()
    e("s_cmp_ge_u32 s%d, 4" % S_WAVE)
    e("s_cbranch_scc1 %s" % lnh)
    e("s_mov_b32 s15, 0x%x" % (KH - KF))
    e("s_mov_b32 s16, 0x%x" % FL_KVH)
    e("s_cmp_lg_u32 s%d, 0" % S_G)
    e("s_cbranch_scc1 %s" % lnh)
    e("s_add_i32 s7, s7, 8")
    e("s_mov_b32 s15, 0")
    e("s_mov_b32 s16, 0")
    k.label(lnh)
    assert KH - KF == VH - VF
    e("s_lshr_b32 s13, s%d, 1" % S_J)
    e("s_lshl_b32 s13, s13, 8")
    e("s_add_u32 s13, s13, s%d" % S_FLL)
    e("s_lshl_b32 s14, s6, 2")
    e("s_add_u32 s17, s13, s14")
    e("s_add_u32 s17, s17, 0x%x" % FL_Q)
    e("s_lshl_b32 s14, s7, 2")
    e("s_add_u32 s13, s13, s14")
    e("s_add_u32 s13, s13, s16")
    e("s_lshl_b32 s9, s%d, 6" % S_J)
    e("s_add_u32 s7, s7, s9")
    e("s_lshl_b32 s7, s7, 10")
    e("s_add_u32 s7, s7, s%d" % S_LOFF)
    e("s_add_u32 s7, s7, s15")
    e("s_add_u32 s10, s7, 0x%x" % KF)
    e("s_add_u32 s11, s7, 0x%x" % VF)
    e("s_add_u32 s12, s9, s6")
    e("s_lshl_b32 s12, s12, 10")
    e("s_add_u32 s12, s12, s%d" % S_LOFF)
    e("s_add_u32 s12, s12, 0x%x" % QF)
    e("s_lshl_b32 s8, s%d, 11" % S_WAVE)
    S = [8, 24]
    MF, MD, NM, NB = 40, 56, 72, 88
    P = [104, 112]
    M, T0, VK, VV = 120, 121, 122, 123
    AQ, AK, AV, AO = 0, 4, 40, 56
    poll(k, 13, 2, T0)
    k.stamp()
    e("s_add_u32 m0, s8, %d" % KV_BASE)
    e("s_nop 0")
    k.vmem("buffer_load_dwordx4 v5, %s, s10 offen lds" % SRD, "kv")
    k.vmem("buffer_load_dwordx4 v5, %s, s10 offen offset:1024 lds" % SRD, "kv")
    e("s_add_u32 m0, s8, %d" % (KV_BASE + 16384))
    e("s_nop 0")
    k.vmem("buffer_load_dwordx4 v5, %s, s11 offen lds" % SRD, "kv")
    k.vmem("buffer_load_dwordx4 v5, %s, s11 offen offset:1024 lds" % SRD, "kv")
    poll(k, 17, 1, T0)
    k.vmem("buffer_load_dwordx4 a[%d:%d], v5, %s, s12 offen" % (AQ, AQ+3, SRD), "q")
    e("v_lshlrev_b32 v%d, 2, v4" % M)
    e("v_sub_u32 v%d, v3, v%d" % (M, M))
    e("s_mov_b32 s13, 0x%x" % NEGBIG)
    e("v_mov_b32 v%d, s13" % T0)
    for r in range(16):
        a = (r & 3) + 8*(r >> 2)
        e("v_cmp_gt_i32 s[%d:%d], %d, v%d" % (64+2*r, 65+2*r, a, M))
    e("s_barrier")
    e("s_lshl_b32 s13, s%d, 10" % S_WAVE)
    e("v_add_u32 v%d, s13, v5" % VK)
    for i in range(9):
        k.lds("ds_read_b128 a[%d:%d], v%d offset:%d" % (AK+4*i, AK+4*i+3, VK, KV_BASE + i*1024), ("k", i))
    for r in range(16):
        e("v_cndmask_b32 v%d, v%d, 0, s[%d:%d]" % (MF+r, T0, 64+2*r, 65+2*r))
        e("v_cndmask_b32 v%d, 0, v%d, s[%d:%d]" % (MD+r, T0, 64+2*r, 65+2*r))
        e("v_mov_b32 v%d, v%d" % (NB+r, T0))
    e("v_cmp_eq_u32 s[64:65], 16, v3")
    e("v_cmp_eq_u32 s[66:67], 20, v3")
    e("s_mov_b32 s14, 0x%x" % ONES_BF16)
    e("v_mov_b32 v%d, s14" % T0)
    e("s_or_b64 s[64:65], s[64:65], s[66:67]")
    e("s_nop 0")
    e("v_cndmask_b32 v%d, 0, v%d, s[64:65]" % (T0, T0))
    for r in range(16):
        e("v_accvgpr_write_b32 a%d, v%d" % (AV+r, T0))
    e("s_mov_b32 s64, 0x0000ffff")
    e("s_mov_b32 s65, 0x0000ffff")
    e("v_and_b32 v%d, 15, v3" % VV)
    e("v_lshlrev_b32 v%d, 4, v%d" % (VV, VV))
    e("v_lshl_add_u32 v%d, v4, 8, v%d" % (VV, VV))
    e("v_add_u32 v%d, s13, v%d" % (VV, VV))
    e("s_lshr_b32 s18, s%d, 2" % S_J)
    e("s_lshl_b32 s18, s18, 1")
    e("s_lshr_b32 s14, s%d, 2" % S_WAVE)
    e("s_add_u32 s18, s18, s14")
    e("s_lshl_b32 s18, s18, 15")
    e("s_and_b32 s14, s%d, 3" % S_WAVE)
    e("s_lshl_b32 s14, s14, 10")
    e("s_add_u32 s18, s18, s14")
    e("s_add_u32 s18, s18, 0x%x" % WO_F)
    e("s_lshr_b32 s19, s%d, 1" % S_J)
    e("s_mul_i32 s19, s19, %d" % (7*32768))
    e("s_add_u32 s19, s19, s13")
    e("s_add_u32 s19, s19, 0x%x" % WGU_F)
    pre = [("wo", c) for c in range(8)] + [("gu", c) for c in range(GU_PRE)]
    def issue_pre():
        if not pre: return
        kind, c = pre.pop(0)
        if kind == "wo":
            e("s_add_u32 m0, s13, %d" % (WOW[c]*8192))
            e("s_add_u32 s14, s18, %d" % (c*4096))
        else:
            t, cc = GU_ORDER[c]
            e("s_add_u32 m0, s13, %d" % (GUR[c]*8192))
            e("s_add_u32 s14, s19, %d" % (t*32768 + cc*8192))
        k.vmem("buffer_load_dwordx4 v5, %s, s14 offen lds" % SRD, "pre")
    k.wait_vm("q")
    k.stamp()
    def rdv(i):
        b = AV + 8*(i % 2)
        e("s_mov_b64 exec, s[64:65]")
        k.lds("ds_read_b128 a[%d:%d], v%d offset:%d" % (b, b+3, VV, KV_BASE + 16384 + i*1024), ("v", i))
        k.lds("ds_read_b128 a[%d:%d], v%d offset:%d" % (b+4, b+7, VV, KV_BASE + 16384 + i*1024 + 512), ("v", i))
        e("s_mov_b64 exec, -1")
    def smfma(i, cval):
        d = S[i % 2]
        kf = "a[%d:%d]" % (AK+4*i, AK+4*i+3)
        q = "a[%d:%d]" % (AQ, AQ+3)
        if i < 8:
            la, lb = k.newlabel(), k.newlabel()
            e("s_cmp_lt_u32 s6, %d" % (8 - i))
            e("s_cbranch_scc1 %s" % la)
            e("v_mfma_f32_32x32x16_bf16 v[%d:%d], %s, %s, %s" % (d, d+15, kf, q, cval))
            e("s_branch %s" % lb)
            k.label(la)
            e("v_mfma_f32_32x32x16_bf16 v[%d:%d], %s, %s, v[%d:%d]" % (d, d+15, kf, q, NB, NB+15))
            k.label(lb)
        else:
            e("v_mfma_f32_32x32x16_bf16 v[%d:%d], %s, %s, %s" % (d, d+15, kf, q, cval))
    def c1(i):
        if i == 0: return "v[%d:%d]" % (MF, MF+15)
        if i == 8: return "v[%d:%d]" % (MD, MD+15)
        return "0"
    def c2(i):
        if i == 0: return "v[%d:%d]" % (MF, MF+15)
        if i == 8: return "v[%d:%d]" % (MD, MD+15)
        return "v[%d:%d]" % (NM, NM+15)
    k.wait_lg(("k", 0))
    smfma(0, c1(0))
    for i in range(9):
        if i + 1 < 9:
            k.wait_lg(("k", i+1))
            smfma(i+1, c1(i+1))
            if i == 0: e("s_nop 7")
        else:
            e("s_nop 3")
        d = S[i % 2]
        for j in range(8):
            if i == 0 and j == 0:
                e("v_max_f32 v%d, v%d, v%d" % (M, d, d+1))
            else:
                e("v_max3_f32 v%d, v%d, v%d, v%d" % (M, M, d+2*j, d+2*j+1))
        if i % 2 == 1: issue_pre()
    rdv(0)
    e("v_mov_b32 v%d, v%d" % (T0, M))
    e("s_nop 1")
    e("v_permlane32_swap_b32 v%d, v%d" % (M, T0))
    e("s_nop 1")
    e("v_max_f32 v%d, v%d, v%d" % (M, M, T0))
    for r in range(16):
        e("v_sub_f32 v%d, v%d, v%d" % (MF+r, MF+r, M))
    for r in range(16):
        e("v_sub_f32 v%d, 0, v%d" % (NM+r, M))
    smfma(0, c2(0))
    for r in range(16):
        e("v_sub_f32 v%d, v%d, v%d" % (MD+r, MD+r, M))
    for i in range(9):
        if i + 1 < 9:
            smfma(i+1, c2(i+1))
            rdv(i+1)
        d = S[i % 2]; p = P[i % 2]
        for r in range(16):
            e("v_exp_f32 v%d, v%d" % (d+r, d+r))
            if r % 2 == 1 and r >= 3:
                e("v_cvt_pk_bf16_f32 v%d, v%d, v%d" % (p + (r-3)//2, d+r-3, d+r-2))
            if r in (5, 11): issue_pre()
        k.wait_lg(("v", i))
        e("v_cvt_pk_bf16_f32 v%d, v%d, v%d" % (p + 7, d+14, d+15))
        b = AV + 8*(i % 2)
        c = "0" if i == 0 else "a[%d:%d]" % (AO, AO+15)
        e("v_mfma_f32_32x32x16_bf16 a[%d:%d], a[%d:%d], v[%d:%d], %s" % (AO, AO+15, b, b+3, p, p+3, c))
        e("s_nop 0")
        e("v_mfma_f32_32x32x16_bf16 a[%d:%d], a[%d:%d], v[%d:%d], a[%d:%d]" % (AO, AO+15, b+4, b+7, p+4, p+7, AO, AO+15))
    assert not pre
    k.stamp()
    e("s_lshl_b32 s13, s6, 5")
    e("s_add_u32 s13, s13, s%d" % S_J)
    e("s_lshl_b32 s14, s13, 2")
    e("s_lshl_b32 s13, s13, 10")
    e("s_add_u32 s13, s13, s%d" % S_LOFF)
    e("s_add_u32 s13, s13, 0x%x" % OT)
    e("s_add_u32 s14, s14, s%d" % S_FLL)
    e("s_add_u32 s14, s14, 0x%x" % FL_O)
    e("s_nop 7")
    for r in range(9):
        e("v_accvgpr_read_b32 v%d, a%d" % (S[0]+r, AO+r))
    e("v_rcp_f32 v%d, v%d" % (T0, S[0]+8))
    e("s_nop 0")
    for r in range(8):
        e("v_mul_f32 v%d, v%d, v%d" % (S[0]+r, T0, S[0]+r))
        if r % 2 == 1:
            e("v_cvt_pk_bf16_f32 v%d, v%d, v%d" % (P[0] + r//2, S[0]+r-1, S[0]+r))
    stores(k, ["buffer_store_dwordx4 v[%d:%d], v5, %s, s13 offen" % (P[0], P[0]+3, SRD)], "st")
    k.wait_vm_all()
    flag_store(k, 14)
    e("s_barrier")

def phase_ldsgemm(k, kind):
    e = k.e
    k.vm = []; k.lg = []
    wo = kind == "wo"
    KS = 32 if wo else 112
    NC = KS // 4
    AMAP = WOA if wo else a_
    WMAP = WOW if wo else w_
    NA, NW = len(AMAP), len(WMAP)
    ABASE, WBASE = (OT, WO_F) if wo else (HT, WD_F)
    Lload, Ldone = k.newlabel("GL"), k.newlabel("GD")
    e("s_and_b32 s6, s%d, 3" % S_J)
    e("s_lshl_b32 s8, s%d, 2" % S_G)
    e("s_add_u32 s6, s6, s8")
    e("s_lshr_b32 s7, s%d, 2" % S_J)
    e("s_cmp_ge_u32 s%d, 4" % S_WAVE)
    e("s_cbranch_scc1 %s" % Lload)
    e("s_lshr_b32 s8, s%d, 1" % S_WAVE)
    e("s_and_b32 s9, s%d, 1" % S_WAVE)
    e("s_lshl_b32 s10, s6, 1"); e("s_add_u32 s10, s10, s8")
    e("s_lshl_b32 s12, s7, 1"); e("s_add_u32 s12, s12, s9")
    e("s_lshl_b32 s20, s10, 15")
    e("s_lshl_b32 s21, s12, 11")
    e("s_add_u32 s20, s20, s21")
    e("s_add_u32 s20, s20, s%d" % S_XIN)
    if not wo: e("s_add_u32 s20, s20, 0x200000")
    RES = 8; ACC = 16; AF = 32; WFR = 48; TMP = 64
    k.vmem("buffer_load_dwordx4 v[%d:%d], v5, %s, s20 offen" % (RES, RES+3, SRD), "res")
    k.vmem("buffer_load_dwordx4 v[%d:%d], v5, %s, s20 offen offset:1024" % (RES+4, RES+7, SRD), "res")
    e("s_add_u32 s20, s20, 0x200000")
    VA, VW = 112, 116
    e("s_lshl_b32 s13, s8, 12")
    e("s_lshl_b32 s14, s9, 12")
    for n in range(3):
        e("v_add_u32 v%d, s13, v%d" % (VA+n, 5+n))
        e("v_add_u32 v%d, s14, v%d" % (VW+n, 5+n))
    e("s_lshl_b32 s21, s10, 13")
    e("s_lshl_b32 s22, s7, 10")
    e("s_add_u32 s21, s21, s22")
    e("s_lshl_b32 s22, s9, 3")
    e("s_add_u32 s21, s21, s22")
    e("s_add_u32 s21, s21, s%d" % S_STIN)
    e("s_add_u32 s21, s21, 0x%x" % (0x80000 if wo else 0x100000))
    e("s_lshl_b32 s23, s10, 6")
    e("s_lshl_b32 s22, s12, 2")
    e("s_add_u32 s23, s23, s22")
    e("s_add_u32 s23, s23, s%d" % S_FXIN)
    e("s_add_u32 s23, s23, %d" % (4096 if wo else 8192))
    e("s_mov_b32 s22, 0x%x" % ONES_BF16)
    k.wait_vm("res")
    for j in range(8):
        e("v_lshlrev_b32 v%d, 16, v%d" % (ACC+2*j, RES+j))
        e("v_and_b32 v%d, 0xffff0000, v%d" % (ACC+2*j+1, RES+j))
    PF = 3
    def rd(s):
        c = s // 4
        if s % 4 == 0: e("s_barrier")
        aa = AMAP[c % NA]*8192 + (s % 4)*1024
        ww = WMAP[c % NW]*8192 + (s % 4)*1024
        k.lds("ds_read_b128 v[%d:%d], v%d offset:%d" % (AF+4*(s % 4), AF+4*(s % 4)+3, VA + aa // 65536, aa % 65536), ("f", s))
        k.lds("ds_read_b128 v[%d:%d], v%d offset:%d" % (WFR+4*(s % 4), WFR+4*(s % 4)+3, VW + ww // 65536, ww % 65536), ("f", s))
    for s in range(PF):
        rd(s)
        if s == 0: k.stamp()
    for s in range(KS):
        if s + PF < KS: rd(s + PF)
        k.wait_lg(("f", s))
        e("v_mfma_f32_32x32x16_bf16 v[%d:%d], v[%d:%d], v[%d:%d], v[%d:%d]" % (ACC, ACC+15, WFR+4*(s % 4), WFR+4*(s % 4)+3, AF+4*(s % 4), AF+4*(s % 4)+3, ACC, ACC+15))
    e("s_barrier")
    k.stamp()
    e("s_nop 10")
    for j in range(8):
        e("v_cvt_pk_bf16_f32 v%d, v%d, v%d" % (RES+j, ACC+2*j, ACC+2*j+1))
    lfin = k.newlabel()
    if not wo:
        e("s_cmp_eq_u32 s%d, 1" % S_LAYER)
        e("s_cbranch_scc1 %s" % lfin)
    stores(k, ["buffer_store_dwordx4 v[%d:%d], v5, %s, s20 offen" % (RES, RES+3, SRD),
               "buffer_store_dwordx4 v[%d:%d], v5, %s, s20 offen offset:1024" % (RES+4, RES+7, SRD)], "st")
    e("v_mov_b32 v%d, 0" % TMP); e("v_mov_b32 v%d, 0" % (TMP+1))
    for j in range(8):
        e("v_dot2_f32_bf16 v%d, v%d, s22, v%d" % (TMP, RES+j, TMP))
        e("v_dot2_f32_bf16 v%d, v%d, v%d, v%d" % (TMP+1, RES+j, RES+j, TMP+1))
    e("s_nop 2")
    stores(k, ["buffer_store_dwordx2 v[%d:%d], v5, %s, s21 offen" % (TMP, TMP+1, SRD)], "st")
    k.wait_vm_all()
    flag_store(k, 23)
    e("s_branch %s" % Ldone)
    if not wo:
        k.label(lfin)
        e("v_lshlrev_b32 v%d, 10, v3" % TMP)
        e("v_lshl_add_u32 v%d, v4, 4, v%d" % (TMP, TMP))
        e("s_lshl_b32 s21, s10, 15")
        e("s_lshl_b32 s22, s12, 6")
        e("s_add_u32 s21, s21, s22")
        for c in range(2):
            b = RES + 4*c
            e("v_permlane32_swap_b32 v%d, v%d" % (b, b+2))
            e("v_permlane32_swap_b32 v%d, v%d" % (b+1, b+3))
        e("s_nop 1")
        for c in range(2):
            b = RES + 4*c
            e("buffer_store_dwordx4 v[%d:%d], v%d, s[40:43], s21 offen offset:%d" % (b, b+3, TMP, 32*c))
        e("s_branch %s" % Ldone)
    k.label(Lload)
    k.vm = []; k.lg = []
    e("s_sub_u32 s10, s%d, 4" % S_WAVE)
    e("s_lshr_b32 s8, s10, 1")
    e("s_and_b32 s9, s10, 1")
    e("s_lshl_b32 s10, s10, 11")
    e("s_lshl_b32 s9, s9, 11")
    e("s_lshl_b32 s11, s6, 1"); e("s_add_u32 s11, s11, s8"); e("s_mul_i32 s11, s11, %d" % (KS*1024))
    e("s_add_u32 s11, s11, s9"); e("s_add_u32 s11, s11, s%d" % S_LOFF); e("s_add_u32 s11, s11, 0x%x" % ABASE)
    e("s_lshl_b32 s12, s7, 1"); e("s_add_u32 s12, s12, s8"); e("s_mul_i32 s12, s12, %d" % (KS*1024))
    e("s_add_u32 s12, s12, s9"); e("s_add_u32 s12, s12, 0x%x" % WBASE)
    def issue(which, c):
        sreg, mp = (11, AMAP) if which == "a" else (12, WMAP)
        e("s_add_u32 m0, s10, %d" % (mp[c % len(mp)]*8192))
        e("s_add_u32 s8, s%d, %d" % (sreg, c*4096))
        k.vmem("buffer_load_dwordx4 v5, %s, s8 offen lds" % SRD, (which, c))
        k.vmem("buffer_load_dwordx4 v5, %s, s8 offen offset:1024 lds" % SRD, (which, c))
    nw = NC if wo else DN_PRE
    na = 0
    if wo:
        e("s_lshl_b32 s13, s6, 8")
        e("s_add_u32 s13, s13, s%d" % S_FLL)
        e("s_add_u32 s13, s13, 0x%x" % FL_O)
        poll(k, 13, 64, 8)
    else:
        e("s_lshl_b32 s13, s6, 7")
        e("s_add_u32 s13, s13, s%d" % S_FLL)
        e("s_add_u32 s13, s13, 0x%x" % FL_H)
        poll(k, 13, 32, 8, val=6)
        qkv_w_base(k, 15, 10)
    nq = 0
    qfree = [("w", 16), ("w", 17), ("w", 18), ("w", 19), ("a", 20), ("w", 20), ("a", 21), ("w", 21), ("a", 22), ("w", 22), ("a", 23), ("w", 23)]
    if not wo:
        for i, (kd, c) in enumerate(qfree):
            assert QMAP[i] == (a_[c % 8] if kd == "a" else w_[c % 12])
    for c in range(NC):
        while True:
            prog = False
            if na < NC and na - NA <= c - 3 and len(k.vm) + 2 <= 62:
                if not wo and na == 24:
                    poll(k, 13, 32, 8, val=7)
                issue("a", na); na += 1; prog = True
            if nw < NC and nw - NW <= c - 3 and len(k.vm) + 2 <= 62:
                issue("w", nw); nw += 1; prog = True
            if not prog: break
        k.wait_vm(("w", c)); k.wait_vm(("a", c))
        if not wo and na == NC and nw == NC:
            todo = []
            while nq < 12 and qfree[nq][1] <= c - 3:
                todo.append(nq); nq += 1
            for q in todo: loader_issue_qkv_w(k, q, 15, 10)
        e("s_barrier")
    assert na == NC and nw == NC
    e("s_barrier")
    if not wo:
        while nq < 12:
            loader_issue_qkv_w(k, nq, 15, 10); nq += 1
    k.label(Ldone)
    k.vm = []; k.lg = []

def gen_main():
    k = PK("main_kernel")
    e = k.e
    e("s_cmp_ge_u32 s2, 256")
    e("s_cbranch_scc1 L_main_end")
    e("s_load_dwordx2 s[32:33], s[0:1], 72")
    e("s_load_dwordx2 s[30:31], s[0:1], 56")
    e("s_getreg_b32 s52, hwreg(HW_REG_XCC_ID)")
    e("v_lshrrev_b32 v1, 6, v0")
    e("v_and_b32 v2, 63, v0")
    e("v_and_b32 v3, 31, v0")
    e("v_readfirstlane_b32 s%d, v1" % S_WAVE)
    e("v_bfe_u32 v4, v0, 5, 1")
    e("v_lshlrev_b32 v5, 4, v2")
    e("v_add_u32 v6, 0x10000, v5")
    e("v_add_u32 v7, 0x20000, v5")
    e("v_lshlrev_b32 v%d, 2, v2" % V_L4)
    e("v_mov_b32 v%d, 1" % V_ONE)
    e("v_mov_b32 v%d, 0" % V_ZERO)
    e("s_and_b32 s%d, s2, 7" % S_G)
    e("s_lshr_b32 s%d, s2, 3" % S_J)
    e("s_and_b32 s52, s52, 15")
    e("s_add_u32 s52, s52, 1")
    e("s_mov_b32 s%d, 0" % S_MODE)
    e("s_mov_b32 s%d, 0" % S_LOFF)
    e("s_mov_b32 s%d, 0x%x" % (S_XIN, XT))
    e("s_mov_b32 s%d, 0x%x" % (S_FLL, FLAGS + FL_L))
    e("s_mov_b32 s%d, 0" % S_LAYER)
    e("s_mov_b32 s%d, 0x%x" % (S_STIN, STATS))
    e("s_mov_b32 s%d, 0x%x" % (S_FXIN, FLAGS + FL_X))
    e("s_mov_b32 s%d, 0" % S_STI)
    e("s_waitcnt lgkmcnt(0)")
    ws_srd(k, 32, 36)
    e("s_mov_b32 s40, s30"); e("s_mov_b32 s41, s31"); e("s_mov_b32 s42, %d" % (2048*512*2)); e("s_mov_b32 s43, 0x20000")
    k.stamp()
    lc, ln = k.newlabel(), k.newlabel()
    e("s_cmp_lt_u32 s%d, 4" % S_WAVE)
    e("s_cbranch_scc1 %s" % ln)
    e("s_cmp_lg_u32 s%d, 7" % S_WAVE)
    e("s_cbranch_scc1 %s" % lc)
    e("s_lshl_b32 s13, s%d, 5" % S_G)
    e("s_add_u32 s13, s13, s%d" % S_J)
    e("s_lshl_b32 s13, s13, 2")
    e("s_add_u32 s13, s13, 0x%x" % (FLAGS + FL_CENSUS))
    e("v_mov_b32 v8, s52")
    e("s_mov_b64 exec, 1")
    e("buffer_store_dword v8, v%d, %s, s13 offen sc1" % (V_ZERO, SRD))
    e("s_mov_b64 exec, -1")
    k.label(lc)
    e("s_sub_u32 s10, s%d, 4" % S_WAVE)
    e("s_lshl_b32 s10, s10, 11")
    qkv_w_base(k, 15, 10)
    for q in range(12): loader_issue_qkv_w(k, q, 15, 10)
    k.label(ln)
    k.label("L_layer")
    phase_rowgemm(k, "qkv"); k.stamp()
    phase_attn(k); k.stamp()
    phase_ldsgemm(k, "wo"); k.stamp()
    phase_rowgemm(k, "gateup"); k.stamp()
    phase_ldsgemm(k, "down"); k.stamp()
    e("s_add_u32 s%d, s%d, 1" % (S_LAYER, S_LAYER))
    e("s_add_u32 s%d, s%d, 0x%x" % (S_LOFF, S_LOFF, LSTR))
    e("s_add_u32 s%d, s%d, 0x400000" % (S_XIN, S_XIN))
    e("s_add_u32 s%d, s%d, 0x8000" % (S_FLL, S_FLL))
    e("s_add_u32 s%d, s%d, 0x100000" % (S_STIN, S_STIN))
    e("s_add_u32 s%d, s%d, 8192" % (S_FXIN, S_FXIN))
    e("s_cmp_lt_u32 s%d, 2" % S_LAYER)
    e("s_cbranch_scc1 L_layer")
    if STAMP:
        e("s_waitcnt vmcnt(0)")
        k.stamp()
        e("s_lshl_b32 s13, s2, 3")
        e("s_add_u32 s13, s13, s%d" % S_WAVE)
        e("s_lshl_b32 s13, s13, 8")
        e("s_add_u32 s13, s13, 0x%x" % STAMPS)
        e("buffer_store_dword v0, v%d, %s, s13 offen" % (V_L4, SRD))
    k.label("L_main_end")
    e("s_endpgm")
    return k.text(128, 128)

def main(out_path):
    import gen_prep
    ptxt, nprep = gen_prep.gen_prep(sys.modules[__name__])
    launches = [("prep_kernel", nprep, 64, 16384), ("main_kernel", 256, 512, 163840)]
    txt = HEADER
    for name, g, b, lds in launches:
        txt += "; @launch kernel=%s grid=(%d,1,1) block=(%d,1,1) lds=%d\n" % (name, g, b, lds)
    txt += '.amdgcn_target "amdgcn-amd-amdhsa--gfx950"\n'
    txt += ptxt + gen_main()
    open(out_path, "w").write(txt)

if __name__ == "__main__":
    main(sys.argv[1] if len(sys.argv) > 1 else "p.s")
```

```python
import sys, struct, os
import gen
from gen import Kern, f32bits, ws_srd, ONES_BF16, LOG2E, QSCALE, NEGBIG, stats_reduce_ops, HEADER

STAMP = int(os.environ.get('STAMP', '0'))
FORCE_SLOW = int(os.environ.get('FORCE_SLOW', '0'))
WQKV_F, WO_F, WGU_F, WD_F, CS_QKV, CS_GU = gen.WQKV_F, gen.WO_F, gen.WGU_F, gen.WD_F, gen.CS_QKV, gen.CS_GU
XT     = 0x0800000
STATS  = 0x1000000
FLAGS  = 0x1200000
LSTR   = 0x1400000
QF     = 0x1400000
KF     = 0x1600000
VF     = 0x1800000
KH     = 0x1A00000
VH     = 0x1C00000
OT     = 0x1E00000
HT     = 0x2000000
STAMPS = 0x6000000
H_TMAJOR = True
FL_CENSUS = 0x0000
FL_X   = 0x1000
FL_L   = 0x8000
FL_KV  = 0x0000
FL_KVH = 0x1000
FL_Q   = 0x2000
FL_O   = 0x3000
FL_H   = 0x5000
FLAGS_BYTES = 0x18000

S_WAVE, S_G, S_J = 3, 4, 5
S_MODE, S_LOFF, S_XIN, S_FLL, S_LAYER, S_STIN, S_FXIN, S_STI = 44, 45, 46, 47, 48, 49, 50, 51
SRD = "s[36:39]"
V_L4, V_ONE, V_ZERO = 125, 126, 127

a_ = list(range(10)); w_ = list(range(10, 20))
QMAP = [a_[8], w_[8], a_[9], w_[9], a_[0], w_[0], a_[1], w_[1], a_[2], w_[2], a_[3], w_[3]]
HB = [a_[4]*8192, w_[4]*8192]
SCRATCH = w_[7]*8192
QX = w_[7]*8192 + 4096 - 131072
WOW = [w_[0], w_[1], w_[2], w_[3], w_[8], w_[9], a_[8], a_[9]]
WOA = [a_[4], a_[5], a_[6], w_[4], w_[5], w_[6]]
GUR = [a_[0], a_[1], a_[2], a_[3], a_[7], a_[4], a_[5], a_[6], a_[8], a_[9], w_[8], w_[9]]
GU_PRE = 5
DN_PRE = 8
KVFLAG_AT = int(os.environ.get('KVFLAG_AT', '90'))
NPRE_X = int(os.environ.get('NPRE_X', '24'))
GU_LA = int(os.environ.get('GU_LA', '7'))

class PK(Kern):
    def stamp(self):
        if not STAMP: return
        self.e("s_memrealtime s[98:99]")
        self.e("s_waitcnt lgkmcnt(0)")
        self.lg = []
        self.e("s_mov_b32 m0, s%d" % S_STI)
        self.e("s_nop 0")
        self.e("v_writelane_b32 v0, s98, m0")
        self.e("s_add_u32 s%d, s%d, 1" % (S_STI, S_STI))

def stores(k, inss, tag=None):
    la, lb = k.newlabel(), k.newlabel()
    k.e("s_cmp_eq_u32 s%d, 1" % S_MODE)
    k.e("s_cbranch_scc1 %s" % la)
    for ins in inss: k.e(ins + " sc1")
    k.e("s_branch %s" % lb)
    k.label(la)
    for ins in inss: k.e(ins)
    k.label(lb)
    for ins in inss: k.vm.append(tag)

SPIN_LIMIT = 400000
def set_exec(k, nlanes):
    if nlanes >= 64: return
    assert nlanes <= 32
    k.e("s_mov_b32 exec_lo, 0x%x" % ((1 << nlanes) - 1))
    k.e("s_mov_b32 exec_hi, 0")

def poll(k, s_addr, nlanes, vtmp, val=1):
    lp, ld = k.newlabel(), k.newlabel()
    set_exec(k, nlanes)
    k.e("s_mov_b32 s53, 0")
    k.label(lp)
    k.e("buffer_load_dword v%d, v%d, %s, s%d offen sc1" % (vtmp, V_L4, SRD, s_addr))
    k.e("s_add_u32 s53, s53, 1")
    k.e("s_waitcnt vmcnt(0)")
    k.e("v_cmp_gt_u32 vcc, %d, v%d" % (val, vtmp))
    k.e("s_cbranch_vccz %s" % ld)
    k.e("s_cmp_lt_u32 s53, %d" % SPIN_LIMIT)
    k.e("s_cbranch_scc1 %s" % lp)
    k.label(ld)
    if nlanes < 64:
        k.e("s_mov_b64 exec, -1")
    k.vm = []

def flag_store(k, s_addr, v_val=V_ONE, extra_sc1=None):
    k.e("s_mov_b64 exec, 1")
    if extra_sc1 is not None:
        k.vmem("buffer_store_dword v%d, v%d, %s, s%d offen sc1" % (v_val, V_ZERO, SRD, extra_sc1), "flag")
    stores(k, ["buffer_store_dword v%d, v%d, %s, s%d offen" % (v_val, V_ZERO, SRD, s_addr)], "flag")
    k.e("s_mov_b64 exec, -1")

def census_check(k, vt):
    e = k.e
    lskip, lp, ld = k.newlabel(), k.newlabel(), k.newlabel()
    e("s_cmp_lg_u32 s%d, 0" % S_LAYER)
    e("s_cbranch_scc1 %s" % lskip)
    e("s_lshl_b32 s13, s%d, 7" % S_G)
    e("s_add_u32 s13, s13, 0x%x" % (FLAGS + FL_CENSUS))
    set_exec(k, 32)
    e("s_mov_b32 s53, 0")
    k.label(lp)
    e("buffer_load_dword v%d, v%d, %s, s13 offen sc1" % (vt, V_L4, SRD))
    e("s_add_u32 s53, s53, 1")
    e("s_waitcnt vmcnt(0)")
    e("v_cmp_eq_u32 vcc, 0, v%d" % vt)
    e("s_cbranch_vccz %s" % ld)
    e("s_cmp_lt_u32 s53, %d" % SPIN_LIMIT)
    e("s_cbranch_scc1 %s" % lp)
    k.label(ld)
    e("v_cmp_ne_u32 vcc, s52, v%d" % vt)
    e("s_mov_b64 exec, -1")
    e("s_cmp_eq_u64 vcc, 0")
    e("s_cselect_b32 s%d, %d, 0" % (S_MODE, 0 if FORCE_SLOW else 1))
    k.label(lskip)

FINE = int(os.environ.get('FINE', '0'))
NOQPRE = int(os.environ.get('NOQPRE', '0'))
TOUCH = int(os.environ.get('TOUCH', '1'))
def touch(k, s_base, off, vdst=9, vaddr=10):
    if not TOUCH: return
    k.e("s_add_u32 s14, s%d, %d" % (s_base, off))
    k.vmem("buffer_load_dword v%d, v%d, %s, s14 offen" % (vdst, vaddr, SRD), "touch")

def lds_addr(a):
    return 5 + a // 65536, a % 65536

QKV_ORDER = []
for c in range(4): QKV_ORDER += [(1, c), (2, c)]
for c in range(4): QKV_ORDER.append((0, c))
GU_ORDER = []
for c in range(4): GU_ORDER += [(0, c), (1, c)]
for t in range(2, 7):
    for c in range(4): GU_ORDER.append((t, c))

def loader_issue_qkv_w(k, ci, s_base, s_lw2k, tag="qw"):
    t, c = QKV_ORDER[ci]
    k.e("s_add_u32 m0, s%d, %d" % (s_lw2k, QMAP[ci]*8192))
    k.e("s_add_u32 s14, s%d, %d" % (s_base, t*32768 + c*8192))
    k.vmem("buffer_load_dwordx4 v5, %s, s14 offen lds" % SRD, (tag, ci))
    k.vmem("buffer_load_dwordx4 v5, %s, s14 offen offset:1024 lds" % SRD, (tag, ci))

def qkv_w_base(k, s_dst, s_lw2k):
    k.e("s_lshr_b32 s%d, s%d, 1" % (s_dst, S_J))
    k.e("s_mul_i32 s%d, s%d, %d" % (s_dst, s_dst, 3*32768))
    k.e("s_add_u32 s%d, s%d, s%d" % (s_dst, s_dst, s_lw2k))
    if WQKV_F: k.e("s_add_u32 s%d, s%d, 0x%x" % (s_dst, s_dst, WQKV_F))

def phase_rowgemm(k, kind):
    e = k.e
    k.vm = []; k.lg = []
    qkv = kind == "qkv"
    NT = 3 if qkv else 7
    CSB = CS_QKV if qkv else CS_GU
    NCH = NT*4
    ORDER = QKV_ORDER if qkv else GU_ORDER
    slot_of = (lambda ci: QMAP[ci]) if qkv else (lambda ci: GUR[ci % 12])
    P1 = (1, 2) if qkv else (0, 1)
    REST = [0] if qkv else [2, 3, 4, 5, 6]
    Lload, Ldone = k.newlabel("RL"), k.newlabel("RD")
    e("s_and_b32 s6, s%d, 1" % S_J)
    e("s_lshl_b32 s8, s%d, 1" % S_G)
    e("s_add_u32 s6, s6, s8")
    e("s_lshr_b32 s7, s%d, 1" % S_J)
    e("s_cmp_ge_u32 s%d, 4" % S_WAVE)
    e("s_cbranch_scc1 %s" % Lload)
    e("s_lshl_b32 s6, s6, 2")
    e("s_add_u32 s6, s6, s%d" % S_WAVE)
    e("s_lshl_b32 s8, s6, 15")
    e("s_add_u32 s8, s8, s%d" % S_XIN)
    if not qkv: e("s_add_u32 s8, s8, 0x200000")
    e("s_lshl_b32 s11, s6, 13")
    e("s_add_u32 s11, s11, s%d" % S_STIN)
    if not qkv: e("s_add_u32 s11, s11, 0x80000")
    e("s_mul_i32 s12, s7, %d" % (NT*1024))
    e("s_add_u32 s12, s12, 0x%x" % CSB)
    WF = 16
    ST = 64
    CSF = 96
    MFR = 8
    PKR = 80
    MEAN, RSTD, T0, T1, SC1, VAR = 12, 13, 14, 15, 1, 124
    for t in range(NT):
        if t == 4: e("s_add_u32 s12, s12, 4096")
        k.vmem("buffer_load_dwordx4 v[%d:%d], v5, %s, s12 offen offset:%d" % (CSF+4*t, CSF+4*t+3, SRD, (t % 4)*1024), "cs")
    e("s_lshl_b32 s13, s6, 6")
    e("s_add_u32 s13, s13, s%d" % S_FXIN)
    if not qkv: e("s_add_u32 s13, s13, 4096")
    if qkv:
        lskip = k.newlabel()
        e("s_cmp_eq_u32 s%d, 0" % S_LAYER)
        e("s_cbranch_scc1 %s" % lskip)
        keep = list(k.vm)
        poll(k, 13, 16, T0)
        k.label(lskip)
        k.vm = keep
    else:
        poll(k, 13, 16, T0)
    k.stamp()
    def mk_x(s):
        def f():
            if s % 4 == 0 and s > 0: e("s_add_u32 s8, s8, 4096")
            k.vmem("buffer_load_dwordx4 a[%d:%d], v5, %s, s8 offen offset:%d" % (4*s, 4*s+3, SRD, (s % 4)*1024), ("x", s))
        return f
    def mk_st(cq):
        def f():
            if cq == 4: e("s_add_u32 s11, s11, 4096")
            k.vmem("buffer_load_dwordx4 v[%d:%d], v5, %s, s11 offen offset:%d" % (ST+4*cq, ST+4*cq+3, SRD, (cq % 4)*1024), "stats")
        return f
    loads = [mk_x(s) for s in range(20)] + [mk_st(c) for c in range(8)] + [mk_x(s) for s in range(20, 32)]
    NPRE = NPRE_X
    for f in loads[:NPRE]: f()
    loads = loads[NPRE:]
    if qkv: census_check(k, T0)
    sched = []
    for s in range(32):
        sched.append((P1[0], s)); sched.append((P1[1], s))
    for t in REST:
        for s in range(32): sched.append((t, s))
    cidx = {tc: i for i, tc in enumerate(ORDER)}
    PF = 3
    total = len(sched)
    side = []
    nbar = [0]
    def rd(g):
        t, s = sched[g]
        ci = cidx[(t, s // 8)]
        while nbar[0] <= ci:
            e("s_barrier"); nbar[0] += 1
        va, off = lds_addr(slot_of(ci)*8192 + (s % 8)*1024)
        k.lds("ds_read_b128 v[%d:%d], v%d offset:%d" % (WF+4*(g % 4), WF+4*(g % 4)+3, va, off), ("wf", g))
    def cost(x):
        if callable(x): return 2
        return 2 if x.startswith(("v_exp", "v_rcp", "v_rsq")) else 1
    def run_side(budget):
        while side and budget > 0:
            x = side.pop(0)
            budget -= cost(x)
            if callable(x): x()
            else: e(x)
    if qkv: ACCM = {1: 32, 2: 48, 0: 108}
    else: ACCM = {t: [32, 48, 64][t % 3] for t in range(7)}
    def qkv_off():
        return ["s_lshl_b32 s15, s7, 17", "s_lshl_b32 s14, s6, 10", "s_add_u32 s15, s15, s14", "s_add_u32 s15, s15, s%d" % S_LOFF]
    def epi_k():
        acc = ACCM[1]; ops = []
        for r in range(16):
            ops.append("v_mul_f32 v%d, v%d, v%d" % (acc+r, RSTD, acc+r))
            if r % 2 == 1:
                ops.append("v_cvt_pk_bf16_f32 v%d, v%d, v%d" % (PKR + r//2, acc+r-1, acc+r))
        def st():
            for x in qkv_off(): e(x)
            e("s_add_u32 s13, s15, 0x%x" % KH)
            e("s_add_u32 s14, s13, 65536")
            k.vmem("buffer_store_dwordx4 v[%d:%d], v5, %s, s13 offen sc1" % (PKR, PKR+3, SRD), "st")
            k.vmem("buffer_store_dwordx4 v[%d:%d], v5, %s, s14 offen sc1" % (PKR+4, PKR+7, SRD), "st")
        def st2():
            e("s_add_u32 s13, s15, 0x%x" % KF)
            e("s_add_u32 s14, s13, 65536")
            stores(k, ["buffer_store_dwordx4 v[%d:%d], v5, %s, s13 offen" % (PKR, PKR+3, SRD),
                       "buffer_store_dwordx4 v[%d:%d], v5, %s, s14 offen" % (PKR+4, PKR+7, SRD)], "st")
        def lw():
            e("s_lshl_b32 s13, s%d, 10" % S_WAVE)
            e("v_add_u32 v%d, s13, v5" % T1)
            k.lds("ds_write_b128 v%d, v[%d:%d] offset:%d" % (T1, PKR, PKR+3, HB[0] + 8192), "kw")
            e("v_add_u32 v%d, 0x10000, v%d" % (T1, T1))
            k.lds("ds_write_b128 v%d, v[%d:%d] offset:%d" % (T1, PKR+4, PKR+7, HB[1] + 8192 - 65536), "kw")
        ops.append(st); ops.append(st2); ops.append(lw)
        return ops
    def epi_v():
        acc = ACCM[2]
        ops = [lambda: k.wait_lg("str")]
        for r in range(16):
            ops.append("v_mul_f32 v%d, v%d, v%d" % (acc+r, ST+r, acc+r))
            if r % 2 == 1:
                ops.append("v_cvt_pk_bf16_f32 v%d, v%d, v%d" % (PKR + 8 + r//2, acc+r-1, acc+r))
        ops += ["v_lshrrev_b32 v%d, 4, v3" % T0, "v_lshlrev_b32 v%d, 16, v%d" % (T0, T0), "v_and_b32 v%d, 15, v3" % T1,
                "v_lshl_add_u32 v%d, v%d, 4, v%d" % (T0, T1, T0), "v_lshl_add_u32 v%d, v4, 8, v%d" % (T0, T0)]
        def st():
            e("s_add_u32 s13, s15, 0x%x" % VH)
            k.vmem("buffer_store_dwordx4 v[%d:%d], v%d, %s, s13 offen sc1" % (PKR+8, PKR+11, T0, SRD), "st")
            k.vmem("buffer_store_dwordx4 v[%d:%d], v%d, %s, s13 offen offset:512 sc1" % (PKR+12, PKR+15, T0, SRD), "st")
        def st2():
            e("s_add_u32 s13, s15, 0x%x" % VF)
            stores(k, ["buffer_store_dwordx4 v[%d:%d], v%d, %s, s13 offen" % (PKR+8, PKR+11, T0, SRD),
                       "buffer_store_dwordx4 v[%d:%d], v%d, %s, s13 offen offset:512" % (PKR+12, PKR+15, T0, SRD)], "st")
        def lw():
            e("v_lshrrev_b32 v%d, 4, v3" % T1)
            e("s_mov_b32 s13, %d" % (HB[1] - HB[0]))
            e("v_mul_lo_u32 v%d, v%d, s13" % (T1, T1))
            e("v_and_b32 v%d, 0xffff, v%d" % (T0, T0))
            e("v_add_u32 v%d, v%d, v%d" % (T1, T1, T0))
            e("s_lshl_b32 s13, s%d, 10" % S_WAVE)
            e("v_add_u32 v%d, s13, v%d" % (T1, T1))
            k.lds("ds_write_b128 v%d, v[%d:%d] offset:%d" % (T1, PKR+8, PKR+11, HB[0] + 12288 + 8192), "kw")
            k.lds("ds_write_b128 v%d, v[%d:%d] offset:%d" % (T1, PKR+12, PKR+15, HB[0] + 12288 + 8192 + 512), "kw")
        ops.append(st); ops.append(st2); ops.append(lw)
        return ops
    def kv_flags():
        e("s_lshl_b32 s13, s7, 8")
        e("s_lshl_b32 s14, s6, 2")
        e("s_add_u32 s13, s13, s14")
        e("s_add_u32 s13, s13, s%d" % S_FLL)
        e("s_add_u32 s14, s13, 0x%x" % FL_KVH)
        k.wait_vm_all()
        flag_store(k, 13, V_ONE, extra_sc1=14)
    def stats_ops():
        ops = [lambda: k.wait_vm("stats")]
        ops += stats_reduce_ops(ST, MEAN, RSTD, T0, T1, VAR, MFR)
        if qkv:
            ops.append("v_mul_f32 v%d, 0x%x, v%d" % (SC1, f32bits(QSCALE), RSTD))
            def wr():
                e("s_lshl_b32 s15, s%d, 7" % S_WAVE)
                e("s_add_u32 s15, s15, %d" % SCRATCH)
                e("v_lshl_add_u32 v%d, v3, 2, s15" % T0)
                k.lds("ds_write_b32 v%d, v%d" % (T0, RSTD), "stw")
                e("v_lshl_add_u32 v%d, v4, 4, s15" % T0)
                k.wait_lg("stw")
                for g in range(4):
                    k.lds("ds_read_b128 v[%d:%d], v%d offset:%d" % (ST+4*g, ST+4*g+3, T0, g*32), "str")
            ops.append(wr)
        else:
            ops.append("v_mul_f32 v%d, 0x%x, v%d" % (SC1, f32bits(-LOG2E), RSTD))
        return ops
    def epi_gu(t):
        acc = ACCM[t]
        ops = []
        pk = PKR + 4*(t % 2)
        tm = PKR + 8
        for r in range(8):
            ops.append("v_mul_f32 v%d, v%d, v%d" % (tm+r, SC1, acc+r))
        for r in range(8):
            ops.append("v_exp_f32 v%d, v%d" % (tm+r, tm+r))
            ops.append("v_mul_f32 v%d, v%d, v%d" % (acc+r, acc+r, acc+8+r))
        for r in range(8):
            ops.append("v_fma_f32 v%d, v%d, v%d, v%d" % (tm+r, tm+r, VAR, VAR))
        for r in range(8):
            ops.append("v_rcp_f32 v%d, v%d" % (tm+r, tm+r))
        ops.append("s_nop 0")
        for r in range(8):
            ops.append("v_mul_f32 v%d, v%d, v%d" % (acc+r, acc+r, tm+r))
            if r % 2 == 1:
                ops.append("v_cvt_pk_bf16_f32 v%d, v%d, v%d" % (pk + r//2, acc+r-1, acc+r))
        def st():
            if t == 0:
                e("s_mul_i32 s13, s6, 112")
                e("s_add_u32 s13, s13, s7")
                e("s_lshl_b32 s13, s13, 10")
                e("s_add_u32 s13, s13, s%d" % S_LOFF)
                e("s_add_u32 s13, s13, 0x%x" % HT)
                e("s_lshl_b32 s15, s6, 6")
                e("s_lshl_b32 s14, s7, 2")
                e("s_add_u32 s15, s15, s14")
                e("s_add_u32 s15, s15, s%d" % S_FLL)
                e("s_add_u32 s15, s15, 0x%x" % FL_H)
            else:
                e("s_add_u32 s13, s13, 16384")
                if t >= 2:
                    k.wait_vm_all()
                    e("v_mov_b32 v%d, %d" % (T0, t))
                    flag_store(k, 15, T0)
            stores(k, ["buffer_store_dwordx4 v[%d:%d], v5, %s, s13 offen" % (pk, pk+3, SRD)], "st")
        ops.append(st)
        return ops
    def mf(acc, wf, xf, c, t):
        if qkv and t == 2:
            e("v_mfma_f32_32x32x16_bf16 v[%d:%d], %s, %s, %s" % (acc, acc+15, xf, wf, c))
        else:
            e("v_mfma_f32_32x32x16_bf16 v[%d:%d], %s, %s, %s" % (acc, acc+15, wf, xf, c))
    def corr(t):
        acc = ACCM[t]
        mf(acc, "v[%d:%d]" % (CSF+4*t, CSF+4*t+3), "v[%d:%d]" % (MFR, MFR+3), "v[%d:%d]" % (acc, acc+15), t)
    for g in range(PF):
        rd(g)
    for g in range(total):
        t, s = sched[g]
        if g + PF < total: rd(g + PF)
        if g == 36: side.extend(stats_ops())
        if g >= 64 and s == 3:
            if g < 96:
                if qkv: side.extend(epi_k() + epi_v())
                else: side.extend(epi_gu(0) + epi_gu(1))
            else:
                side.extend(epi_gu(t-1))
        if g < 64 and t == P1[0]: k.wait_vm(("x", s))
        if FINE == 1 and not qkv and g in (0, 16, 32, 48): k.stamp()
        k.wait_lg(("wf", g))
        acc = ACCM[t]
        mf(acc, "v[%d:%d]" % (WF+4*(g % 4), WF+4*(g % 4)+3), "a[%d:%d]" % (4*s, 4*s+3),
           "0" if s == 0 else "v[%d:%d]" % (acc, acc+15), t)
        if loads:
            loads.pop(0)()
        run_side(3 if g < 64 else (6 if qkv else (4 if g < 96 else 2)))
        if qkv and g == KVFLAG_AT:
            run_side(1000)
            kv_flags()
        if g == 63:
            run_side(1000)
            e("s_nop 1")
            corr(P1[0]); corr(P1[1])
            k.stamp()
        elif g > 63 and s == 31:
            run_side(1000)
            corr(t)
    if not qkv:
        k.wait_lg_all()
        e("s_barrier")
    k.stamp()
    if qkv:
        acc = ACCM[0]
        e("s_lshl_b32 s13, s%d, 10" % S_WAVE)
        e("v_add_u32 v%d, s13, v7" % T1)
        e("s_nop 9")
        for r in range(16):
            e("v_mul_f32 v%d, v%d, v%d" % (acc+r, SC1, acc+r))
            if r % 2 == 1:
                e("v_cvt_pk_bf16_f32 v%d, v%d, v%d" % (ST + r//2, acc+r-1, acc+r))
        k.lds("ds_write_b128 v%d, v[%d:%d] offset:%d" % (T1, ST+4, ST+7, QX), "qw")
        for r in range(4):
            e("v_accvgpr_write_b32 a%d, v%d" % (r, ST+r))
        k.wait_lg_all()
    else:
        e("s_nop 11")
        side.extend(epi_gu(NT-1))
        run_side(1000)
        e("v_mov_b32 v%d, 7" % T0)
        k.wait_vm_all()
        flag_store(k, 15, T0)
    e("s_branch %s" % Ldone)
    k.label(Lload)
    k.vm = []; k.lg = []
    e("s_sub_u32 s10, s%d, 4" % S_WAVE)
    e("s_lshl_b32 s10, s10, 11")
    if qkv:
        e("v_lshlrev_b32 v10, 7, v2")
        e("s_mul_i32 s19, s7, %d" % (7*32768))
        e("s_and_b32 s13, s%d, 1" % S_J)
        e("s_mul_i32 s13, s13, %d" % (7*16384))
        e("s_add_u32 s19, s19, s13")
        e("s_lshl_b32 s13, s10, 2")
        e("s_add_u32 s19, s19, s13")
        e("s_add_u32 s19, s19, 0x%x" % WGU_F)
        e("s_lshl_b32 s20, s%d, 14" % S_J)
        e("s_and_b32 s13, s13, 8192")
        e("s_add_u32 s20, s20, s13")
        e("s_add_u32 s20, s20, 0x%x" % WO_F)
        ntouch = 0
        for c in range(NCH):
            e("s_waitcnt vmcnt(%d)" % (2*(NCH-1-c) + ntouch))
            e("s_barrier")
            if TOUCH and c in (1, 3, 5, 7):
                q = (c - 1) // 2
                if q < 3:
                    touch(k, 19, q*32768); ntouch += 1
                else:
                    e("s_add_u32 s13, s19, %d" % (3*32768))
                    e("s_cmp_lt_u32 s10, 4096")
                    e("s_cselect_b32 s13, s13, s20")
                    touch(k, 13, 0); ntouch += 1
            if c == 8: census_check(k, 8)
        e("s_lshr_b32 s8, s10, 12")
        e("s_bfe_u32 s9, s10, 0x1000b")
        e("s_add_u32 s11, s6, s8")
        e("s_sub_i32 s11, s11, 2")
        e("s_mul_i32 s12, s9, %d" % (HB[1] - HB[0]))
        e("s_lshl_b32 s13, s8, 12")
        e("s_add_u32 s12, s12, s13")
        e("s_add_u32 s12, s12, %d" % HB[0])
        linv, lgo, lloc = k.newlabel(), k.newlabel(), k.newlabel()
        e("s_cmp_lt_i32 s11, 0")
        e("s_cbranch_scc1 %s" % linv)
        e("s_mov_b32 s15, 0"); e("s_mov_b32 s16, 0")
        e("s_lshr_b32 s13, s11, 1")
        e("s_cmp_eq_u32 s13, s%d" % S_G)
        e("s_cbranch_scc1 %s" % lloc)
        e("s_mov_b32 s15, 0x%x" % (KH - KF)); e("s_mov_b32 s16, 0x%x" % FL_KVH)
        k.label(lloc)
        e("s_lshl_b32 s13, s7, 8")
        e("s_lshl_b32 s14, s11, 4")
        e("s_add_u32 s13, s13, s14")
        e("s_add_u32 s13, s13, s%d" % S_FLL)
        e("s_add_u32 s13, s13, s16")
        e("s_lshl_b32 s17, s7, 1"); e("s_add_u32 s17, s17, s9"); e("s_lshl_b32 s17, s17, 6")
        e("s_lshl_b32 s14, s11, 2"); e("s_add_u32 s17, s17, s14"); e("s_lshl_b32 s17, s17, 10")
        e("s_add_u32 s17, s17, s%d" % S_LOFF); e("s_add_u32 s17, s17, s15")
        e("s_add_u32 s18, s17, 0x%x" % VF)
        e("s_add_u32 s17, s17, 0x%x" % KF)
        poll(k, 13, 4, 8)
        e("s_branch %s" % lgo)
        k.label(linv)
        e("s_mov_b32 s17, 0x%x" % WQKV_F)
        e("s_mov_b32 s18, 0x%x" % WQKV_F)
        k.label(lgo)
        e("s_mov_b32 m0, s12")
        e("s_nop 0")
        for q in range(4):
            k.vmem("buffer_load_dwordx4 v5, %s, s17 offen offset:%d lds" % (SRD, q*1024), "kv")
        e("s_add_u32 m0, s12, 12288")
        e("s_nop 0")
        for q in range(4):
            k.vmem("buffer_load_dwordx4 v5, %s, s18 offen offset:%d lds" % (SRD, q*1024), "kv")
    else:
        e("s_mul_i32 s9, s7, %d" % (NT*32768))
        e("s_add_u32 s9, s9, s10")
        e("s_add_u32 s9, s9, 0x%x" % WGU_F)
        e("s_lshr_b32 s11, s%d, 2" % S_J)
        e("s_lshl_b32 s11, s11, 1")
        e("s_lshr_b32 s12, s10, 12")
        e("s_add_u32 s11, s11, s12")
        e("s_mul_i32 s11, s11, %d" % (112*1024))
        e("s_and_b32 s12, s10, 2048")
        e("s_add_u32 s11, s11, s12")
        e("s_add_u32 s11, s11, 0x%x" % WD_F)
        nxt = GU_PRE
        ndw = 0
        def issue_w(ci):
            t, c = ORDER[ci]
            e("s_add_u32 m0, s10, %d" % (slot_of(ci)*8192))
            e("s_add_u32 s8, s9, %d" % (t*32768 + c*8192))
            k.vmem("buffer_load_dwordx4 v5, %s, s8 offen lds" % SRD, ("w", ci))
            k.vmem("buffer_load_dwordx4 v5, %s, s8 offen offset:1024 lds" % SRD, ("w", ci))
        def issue_dw(c):
            e("s_add_u32 m0, s10, %d" % (w_[c]*8192))
            e("s_add_u32 s8, s11, %d" % (c*4096))
            k.vmem("buffer_load_dwordx4 v5, %s, s8 offen lds" % SRD, ("dw", c))
            k.vmem("buffer_load_dwordx4 v5, %s, s8 offen offset:1024 lds" % SRD, ("dw", c))
        LA = GU_LA
        e("v_lshlrev_b32 v10, 7, v2")
        e("s_mul_i32 s19, s%d, %d" % (S_J, 56*1024))
        e("s_lshl_b32 s13, s10, 2")
        e("s_add_u32 s19, s19, s13")
        e("s_add_u32 s19, s19, 0x%x" % WD_F)
        e("s_mul_i32 s20, s%d, %d" % (S_J, 48*1024))
        e("s_add_u32 s20, s20, s13")
        e("s_add_u32 s20, s20, 0x%x" % WQKV_F)
        for c in range(NCH):
            if c == 8: touch(k, 19, 0)
            if c == 10: touch(k, 19, 24*1024)
            if c == 20: touch(k, 20, 0)
            if c == 22: touch(k, 20, 16*1024)
            lim = min(NCH-1, c - 1 + LA, max(11, c - 5 + 12))
            while nxt <= lim:
                issue_w(nxt); nxt += 1
            if c >= 11 and ndw < DN_PRE:
                issue_dw(ndw); ndw += 1
            k.wait_vm(("w", c))
            e("s_barrier")
        assert nxt == NCH and ndw == DN_PRE
        k.wait_vm_all()
        e("s_barrier")
    k.label(Ldone)
    k.vm = []; k.lg = []

def phase_attn(k):
    e = k.e
    k.vm = []; k.lg = []
    e("s_and_b32 s6, s%d, 1" % S_J)
    e("s_lshl_b32 s8, s%d, 1" % S_G)
    e("s_add_u32 s6, s6, s8")
    e("s_lshl_b32 s6, s6, 2")
    e("s_and_b32 s8, s%d, 3" % S_WAVE)
    e("s_add_u32 s6, s6, s8")
    e("s_lshr_b32 s9, s%d, 2" % S_WAVE)
    e("s_and_b32 s7, s%d, 0xfe" % S_J)
    e("s_add_u32 s7, s7, s9")
    S = [8, 24]
    MF, MD, NM, NB = 40, 56, 72, 88
    P = [104, 112]
    M, T0, VK, VV = 120, 121, 122, 123
    AQ, AK, AV, AO = 0, 4, 40, 56
    e("v_lshlrev_b32 v%d, 2, v4" % M)
    e("v_sub_u32 v%d, v3, v%d" % (M, M))
    e("s_mov_b32 s13, 0x%x" % NEGBIG)
    e("v_mov_b32 v%d, s13" % T0)
    for r in range(16):
        a = (r & 3) + 8*(r >> 2)
        e("v_cmp_gt_i32 s[%d:%d], %d, v%d" % (64+2*r, 65+2*r, a, M))
    for r in range(16):
        e("v_cndmask_b32 v%d, v%d, 0, s[%d:%d]" % (MF+r, T0, 64+2*r, 65+2*r))
        e("v_cndmask_b32 v%d, 0, v%d, s[%d:%d]" % (MD+r, T0, 64+2*r, 65+2*r))
        e("v_mov_b32 v%d, v%d" % (NB+r, T0))
    e("v_cmp_eq_u32 s[64:65], 16, v3")
    e("v_cmp_eq_u32 s[66:67], 20, v3")
    e("s_mov_b32 s14, 0x%x" % ONES_BF16)
    e("v_mov_b32 v%d, s14" % T0)
    e("s_or_b64 s[64:65], s[64:65], s[66:67]")
    e("s_nop 0")
    e("v_cndmask_b32 v%d, 0, v%d, s[64:65]" % (T0, T0))
    for r in range(16):
        e("v_accvgpr_write_b32 a%d, v%d" % (AV+r, T0))
    e("s_mov_b32 s64, 0x0000ffff")
    e("s_mov_b32 s65, 0x0000ffff")
    e("s_mul_i32 s13, s9, %d" % (HB[1] - HB[0]))
    e("s_lshl_b32 s14, s8, 10")
    e("s_add_u32 s13, s13, s14")
    e("s_add_u32 s13, s13, %d" % HB[0])
    e("v_add_u32 v%d, s13, v5" % VK)
    e("v_and_b32 v%d, 15, v3" % VV)
    e("v_lshlrev_b32 v%d, 4, v%d" % (VV, VV))
    e("v_lshl_add_u32 v%d, v4, 8, v%d" % (VV, VV))
    e("v_add_u32 v%d, s13, v%d" % (VV, VV))
    e("v_add_u32 v%d, s14, v7" % M)
    k.stamp()
    e("s_waitcnt vmcnt(0)")
    e("s_barrier")
    k.stamp()
    lq = k.newlabel()
    e("s_cmp_lt_u32 s%d, 4" % S_WAVE)
    e("s_cbranch_scc1 %s" % lq)
    e("ds_read_b128 a[%d:%d], v%d offset:%d" % (AQ, AQ+3, M, QX))
    k.label(lq)
    for i in range(9):
        k.lds("ds_read_b128 a[%d:%d], v%d offset:%d" % (AK+4*i, AK+4*i+3, VK, i*1024), ("k", i))
    e("s_lshl_b32 s13, s%d, 10" % S_WAVE)
    e("s_lshr_b32 s18, s%d, 2" % S_J)
    e("s_lshl_b32 s18, s18, 1")
    e("s_lshr_b32 s14, s%d, 2" % S_WAVE)
    e("s_add_u32 s18, s18, s14")
    e("s_lshl_b32 s18, s18, 15")
    e("s_and_b32 s14, s%d, 3" % S_WAVE)
    e("s_lshl_b32 s14, s14, 10")
    e("s_add_u32 s18, s18, s14")
    e("s_add_u32 s18, s18, 0x%x" % WO_F)
    e("s_lshr_b32 s19, s%d, 1" % S_J)
    e("s_mul_i32 s19, s19, %d" % (7*32768))
    e("s_add_u32 s19, s19, s13")
    e("s_add_u32 s19, s19, 0x%x" % WGU_F)
    pre = [("wo", c) for c in range(8)] + [("gu", c) for c in range(GU_PRE)]
    def issue_pre():
        if not pre: return
        kind, c = pre.pop(0)
        if kind == "wo":
            e("s_add_u32 m0, s13, %d" % (WOW[c]*8192))
            e("s_add_u32 s14, s18, %d" % (c*4096))
        else:
            t, cc = GU_ORDER[c]
            e("s_add_u32 m0, s13, %d" % (GUR[c]*8192))
            e("s_add_u32 s14, s19, %d" % (t*32768 + cc*8192))
        k.vmem("buffer_load_dwordx4 v5, %s, s14 offen lds" % SRD, "pre")
    def rdv(i):
        b = AV + 8*(i % 2)
        e("s_mov_b64 exec, s[64:65]")
        k.lds("ds_read_b128 a[%d:%d], v%d offset:%d" % (b, b+3, VV, 12288 + i*1024), ("v", i))
        k.lds("ds_read_b128 a[%d:%d], v%d offset:%d" % (b+4, b+7, VV, 12288 + i*1024 + 512), ("v", i))
        e("s_mov_b64 exec, -1")
    def smfma(i, cval):
        d = S[i % 2]
        kf = "a[%d:%d]" % (AK+4*i, AK+4*i+3)
        q = "a[%d:%d]" % (AQ, AQ+3)
        if i < 8:
            la, lb = k.newlabel(), k.newlabel()
            e("s_cmp_lt_u32 s6, %d" % (8 - i))
            e("s_cbranch_scc1 %s" % la)
            e("v_mfma_f32_32x32x16_bf16 v[%d:%d], %s, %s, %s" % (d, d+15, kf, q, cval))
            e("s_branch %s" % lb)
            k.label(la)
            e("v_mfma_f32_32x32x16_bf16 v[%d:%d], %s, %s, v[%d:%d]" % (d, d+15, kf, q, NB, NB+15))
            k.label(lb)
        else:
            e("v_mfma_f32_32x32x16_bf16 v[%d:%d], %s, %s, %s" % (d, d+15, kf, q, cval))
    def c1(i):
        if i == 0: return "v[%d:%d]" % (MF, MF+15)
        if i == 8: return "v[%d:%d]" % (MD, MD+15)
        return "0"
    def c2(i):
        if i == 0: return "v[%d:%d]" % (MF, MF+15)
        if i == 8: return "v[%d:%d]" % (MD, MD+15)
        return "v[%d:%d]" % (NM, NM+15)
    k.wait_lg(("k", 0))
    smfma(0, c1(0))
    for i in range(9):
        if i + 1 < 9:
            k.wait_lg(("k", i+1))
            smfma(i+1, c1(i+1))
            if i == 0: e("s_nop 7")
        else:
            e("s_nop 3")
        d = S[i % 2]
        for j in range(8):
            if i == 0 and j == 0:
                e("v_max_f32 v%d, v%d, v%d" % (M, d, d+1))
            else:
                e("v_max3_f32 v%d, v%d, v%d, v%d" % (M, M, d+2*j, d+2*j+1))
        if i % 2 == 1: issue_pre()
    rdv(0)
    e("v_mov_b32 v%d, v%d" % (T0, M))
    e("s_nop 1")
    e("v_permlane32_swap_b32 v%d, v%d" % (M, T0))
    e("s_nop 1")
    e("v_max_f32 v%d, v%d, v%d" % (M, M, T0))
    for r in range(16):
        e("v_sub_f32 v%d, v%d, v%d" % (MF+r, MF+r, M))
    for r in range(16):
        e("v_sub_f32 v%d, 0, v%d" % (NM+r, M))
    smfma(0, c2(0))
    for r in range(16):
        e("v_sub_f32 v%d, v%d, v%d" % (MD+r, MD+r, M))
    for i in range(9):
        if i + 1 < 9:
            smfma(i+1, c2(i+1))
            rdv(i+1)
        d = S[i % 2]; p = P[i % 2]
        for r in range(16):
            e("v_exp_f32 v%d, v%d" % (d+r, d+r))
            if r % 2 == 1 and r >= 3:
                e("v_cvt_pk_bf16_f32 v%d, v%d, v%d" % (p + (r-3)//2, d+r-3, d+r-2))
            if r in (5, 11): issue_pre()
        k.wait_lg(("v", i))
        e("v_cvt_pk_bf16_f32 v%d, v%d, v%d" % (p + 7, d+14, d+15))
        b = AV + 8*(i % 2)
        c = "0" if i == 0 else "a[%d:%d]" % (AO, AO+15)
        e("v_mfma_f32_32x32x16_bf16 a[%d:%d], a[%d:%d], v[%d:%d], %s" % (AO, AO+15, b, b+3, p, p+3, c))
        e("s_nop 0")
        e("v_mfma_f32_32x32x16_bf16 a[%d:%d], a[%d:%d], v[%d:%d], a[%d:%d]" % (AO, AO+15, b+4, b+7, p+4, p+7, AO, AO+15))
    assert not pre
    k.stamp()
    e("s_lshl_b32 s13, s6, 5")
    e("s_add_u32 s13, s13, s7")
    e("s_lshl_b32 s14, s13, 2")
    e("s_lshl_b32 s13, s13, 10")
    e("s_add_u32 s13, s13, s%d" % S_LOFF)
    e("s_add_u32 s13, s13, 0x%x" % OT)
    e("s_add_u32 s14, s14, s%d" % S_FLL)
    e("s_add_u32 s14, s14, 0x%x" % FL_O)
    e("s_nop 7")
    for r in range(9):
        e("v_accvgpr_read_b32 v%d, a%d" % (S[0]+r, AO+r))
    e("v_rcp_f32 v%d, v%d" % (T0, S[0]+8))
    e("s_nop 0")
    for r in range(8):
        e("v_mul_f32 v%d, v%d, v%d" % (S[0]+r, T0, S[0]+r))
        if r % 2 == 1:
            e("v_cvt_pk_bf16_f32 v%d, v%d, v%d" % (P[0] + r//2, S[0]+r-1, S[0]+r))
    stores(k, ["buffer_store_dwordx4 v[%d:%d], v5, %s, s13 offen" % (P[0], P[0]+3, SRD)], "st")
    k.wait_vm_all()
    flag_store(k, 14)
    e("s_barrier")

def phase_ldsgemm(k, kind):
    e = k.e
    k.vm = []; k.lg = []
    wo = kind == "wo"
    KS = 32 if wo else 112
    NC = KS // 4
    AMAP = WOA if wo else a_
    WMAP = WOW if wo else w_
    NA, NW = len(AMAP), len(WMAP)
    ABASE, WBASE = (OT, WO_F) if wo else (HT, WD_F)
    Lload, Ldone = k.newlabel("GL"), k.newlabel("GD")
    e("s_and_b32 s6, s%d, 3" % S_J)
    e("s_lshl_b32 s8, s%d, 2" % S_G)
    e("s_add_u32 s6, s6, s8")
    e("s_lshr_b32 s7, s%d, 2" % S_J)
    e("s_cmp_ge_u32 s%d, 4" % S_WAVE)
    e("s_cbranch_scc1 %s" % Lload)
    e("s_lshr_b32 s8, s%d, 1" % S_WAVE)
    e("s_and_b32 s9, s%d, 1" % S_WAVE)
    e("s_lshl_b32 s10, s6, 1"); e("s_add_u32 s10, s10, s8")
    e("s_lshl_b32 s12, s7, 1"); e("s_add_u32 s12, s12, s9")
    e("s_lshl_b32 s20, s10, 15")
    e("s_lshl_b32 s21, s12, 11")
    e("s_add_u32 s20, s20, s21")
    e("s_add_u32 s20, s20, s%d" % S_XIN)
    if not wo: e("s_add_u32 s20, s20, 0x200000")
    RES = 8; ACC = 16; AF = 32; WFR = 48; TMP = 64
    k.vmem("buffer_load_dwordx4 v[%d:%d], v5, %s, s20 offen" % (RES, RES+3, SRD), "res")
    k.vmem("buffer_load_dwordx4 v[%d:%d], v5, %s, s20 offen offset:1024" % (RES+4, RES+7, SRD), "res")
    e("s_add_u32 s20, s20, 0x200000")
    VA, VW = 112, 116
    e("s_lshl_b32 s13, s8, 12")
    e("s_lshl_b32 s14, s9, 12")
    for n in range(3):
        e("v_add_u32 v%d, s13, v%d" % (VA+n, 5+n))
        e("v_add_u32 v%d, s14, v%d" % (VW+n, 5+n))
    e("s_lshl_b32 s21, s10, 13")
    e("s_lshl_b32 s22, s7, 10")
    e("s_add_u32 s21, s21, s22")
    e("s_lshl_b32 s22, s9, 3")
    e("s_add_u32 s21, s21, s22")
    e("s_add_u32 s21, s21, s%d" % S_STIN)
    e("s_add_u32 s21, s21, 0x%x" % (0x80000 if wo else 0x100000))
    e("s_lshl_b32 s23, s10, 6")
    e("s_lshl_b32 s22, s12, 2")
    e("s_add_u32 s23, s23, s22")
    e("s_add_u32 s23, s23, s%d" % S_FXIN)
    e("s_add_u32 s23, s23, %d" % (4096 if wo else 8192))
    e("s_mov_b32 s22, 0x%x" % ONES_BF16)
    k.wait_vm("res")
    for j in range(8):
        e("v_lshlrev_b32 v%d, 16, v%d" % (ACC+2*j, RES+j))
        e("v_and_b32 v%d, 0xffff0000, v%d" % (ACC+2*j+1, RES+j))
    PF = 3
    def rd(s):
        c = s // 4
        if s % 4 == 0:
            k.wait_lg_all()
            e("s_barrier")
        aa = AMAP[c % NA]*8192 + (s % 4)*1024
        ww = WMAP[c % NW]*8192 + (s % 4)*1024
        k.lds("ds_read_b128 v[%d:%d], v%d offset:%d" % (AF+4*(s % 4), AF+4*(s % 4)+3, VA + aa // 65536, aa % 65536), ("f", s))
        k.lds("ds_read_b128 v[%d:%d], v%d offset:%d" % (WFR+4*(s % 4), WFR+4*(s % 4)+3, VW + ww // 65536, ww % 65536), ("f", s))
    for s in range(PF):
        rd(s)
        if s == 0: k.stamp()
    for s in range(KS):
        if s + PF < KS: rd(s + PF)
        k.wait_lg(("f", s))
        if FINE == 2 and not wo and s % 16 == 0 and s > 0: k.stamp()
        e("v_mfma_f32_32x32x16_bf16 v[%d:%d], v[%d:%d], v[%d:%d], v[%d:%d]" % (ACC, ACC+15, WFR+4*(s % 4), WFR+4*(s % 4)+3, AF+4*(s % 4), AF+4*(s % 4)+3, ACC, ACC+15))
    e("s_barrier")
    k.stamp()
    e("s_nop 10")
    for j in range(8):
        e("v_cvt_pk_bf16_f32 v%d, v%d, v%d" % (RES+j, ACC+2*j, ACC+2*j+1))
    lfin = k.newlabel()
    if not wo:
        e("s_cmp_eq_u32 s%d, 1" % S_LAYER)
        e("s_cbranch_scc1 %s" % lfin)
    stores(k, ["buffer_store_dwordx4 v[%d:%d], v5, %s, s20 offen" % (RES, RES+3, SRD),
               "buffer_store_dwordx4 v[%d:%d], v5, %s, s20 offen offset:1024" % (RES+4, RES+7, SRD)], "st")
    e("v_mov_b32 v%d, 0" % TMP); e("v_mov_b32 v%d, 0" % (TMP+1))
    for j in range(8):
        e("v_dot2_f32_bf16 v%d, v%d, s22, v%d" % (TMP, RES+j, TMP))
        e("v_dot2_f32_bf16 v%d, v%d, v%d, v%d" % (TMP+1, RES+j, RES+j, TMP+1))
    e("s_nop 2")
    stores(k, ["buffer_store_dwordx2 v[%d:%d], v5, %s, s21 offen" % (TMP, TMP+1, SRD)], "st")
    k.wait_vm_all()
    flag_store(k, 23)
    e("s_branch %s" % Ldone)
    if not wo:
        k.label(lfin)
        e("v_lshlrev_b32 v%d, 10, v3" % TMP)
        e("v_lshl_add_u32 v%d, v4, 4, v%d" % (TMP, TMP))
        e("s_lshl_b32 s21, s10, 15")
        e("s_lshl_b32 s22, s12, 6")
        e("s_add_u32 s21, s21, s22")
        for c in range(2):
            b = RES + 4*c
            e("v_permlane32_swap_b32 v%d, v%d" % (b, b+2))
            e("v_permlane32_swap_b32 v%d, v%d" % (b+1, b+3))
        e("s_nop 1")
        for c in range(2):
            b = RES + 4*c
            e("buffer_store_dwordx4 v[%d:%d], v%d, s[40:43], s21 offen offset:%d" % (b, b+3, TMP, 32*c))
        e("s_branch %s" % Ldone)
    k.label(Lload)
    k.vm = []; k.lg = []
    e("s_sub_u32 s10, s%d, 4" % S_WAVE)
    e("s_lshr_b32 s8, s10, 1")
    e("s_and_b32 s9, s10, 1")
    e("s_lshl_b32 s10, s10, 11")
    e("s_lshl_b32 s9, s9, 11")
    e("s_lshl_b32 s11, s6, 1"); e("s_add_u32 s11, s11, s8"); e("s_mul_i32 s11, s11, %d" % (KS*1024))
    e("s_add_u32 s11, s11, s9"); e("s_add_u32 s11, s11, s%d" % S_LOFF); e("s_add_u32 s11, s11, 0x%x" % ABASE)
    e("s_lshl_b32 s12, s7, 1"); e("s_add_u32 s12, s12, s8"); e("s_mul_i32 s12, s12, %d" % (KS*1024))
    e("s_add_u32 s12, s12, s9"); e("s_add_u32 s12, s12, 0x%x" % WBASE)
    def issue(which, c):
        sreg, mp = (11, AMAP) if which == "a" else (12, WMAP)
        e("s_add_u32 m0, s10, %d" % (mp[c % len(mp)]*8192))
        e("s_add_u32 s8, s%d, %d" % (sreg, c*4096))
        k.vmem("buffer_load_dwordx4 v5, %s, s8 offen lds" % SRD, (which, c))
        k.vmem("buffer_load_dwordx4 v5, %s, s8 offen offset:1024 lds" % SRD, (which, c))
    nw = NC if wo else DN_PRE
    na = 0
    if wo:
        e("s_lshl_b32 s13, s6, 8")
        e("s_add_u32 s13, s13, s%d" % S_FLL)
        e("s_add_u32 s13, s13, 0x%x" % FL_O)
        poll(k, 13, 64, 8)
    else:
        e("s_lshl_b32 s13, s6, 7")
        e("s_add_u32 s13, s13, s%d" % S_FLL)
        e("s_add_u32 s13, s13, 0x%x" % FL_H)
        poll(k, 13, 32, 8, val=6)
        qkv_w_base(k, 15, 10)
    nq = 0
    qfree = []
    for c in range(18, 24): qfree += [("a", c), ("w", c)]
    if not wo:
        for i, (kd, c) in enumerate(qfree):
            assert QMAP[i] == (a_[c % 10] if kd == "a" else w_[c % 10])
    for c in range(NC):
        while True:
            prog = False
            if na < NC and na - NA <= c - 2 and len(k.vm) + 2 <= 62:
                if not wo and na == 24:
                    poll(k, 13, 32, 8, val=7)
                issue("a", na); na += 1; prog = True
            if nw < NC and nw - NW <= c - 2 and len(k.vm) + 2 <= 62:
                issue("w", nw); nw += 1; prog = True
            if not prog: break
        k.wait_vm(("w", c)); k.wait_vm(("a", c))
        if not wo and na == NC and nw == NC:
            todo = []
            while nq < 12 and qfree[nq][1] <= c - 2:
                todo.append(nq); nq += 1
            if NOQPRE: nq -= len(todo); todo = []
            for q in todo: loader_issue_qkv_w(k, q, 15, 10)
        e("s_barrier")
    assert na == NC and nw == NC
    e("s_barrier")
    if not wo:
        while nq < 12:
            loader_issue_qkv_w(k, nq, 15, 10); nq += 1
    k.label(Ldone)
    k.vm = []; k.lg = []

def gen_main():
    k = PK("main_kernel")
    e = k.e
    e("s_cmp_ge_u32 s2, 256")
    e("s_cbranch_scc1 L_main_end")
    e("s_load_dwordx2 s[32:33], s[0:1], 72")
    e("s_load_dwordx2 s[30:31], s[0:1], 56")
    e("s_getreg_b32 s52, hwreg(HW_REG_XCC_ID)")
    e("v_lshrrev_b32 v1, 6, v0")
    e("v_and_b32 v2, 63, v0")
    e("v_and_b32 v3, 31, v0")
    e("v_readfirstlane_b32 s%d, v1" % S_WAVE)
    e("v_bfe_u32 v4, v0, 5, 1")
    e("v_lshlrev_b32 v5, 4, v2")
    e("v_add_u32 v6, 0x10000, v5")
    e("v_add_u32 v7, 0x20000, v5")
    e("v_lshlrev_b32 v%d, 2, v2" % V_L4)
    e("v_mov_b32 v%d, 1" % V_ONE)
    e("v_mov_b32 v%d, 0" % V_ZERO)
    e("s_and_b32 s%d, s2, 7" % S_G)
    e("s_lshr_b32 s%d, s2, 3" % S_J)
    e("s_and_b32 s52, s52, 15")
    e("s_add_u32 s52, s52, 1")
    e("s_mov_b32 s%d, 0" % S_MODE)
    e("s_mov_b32 s%d, 0" % S_LOFF)
    e("s_mov_b32 s%d, 0x%x" % (S_XIN, XT))
    e("s_mov_b32 s%d, 0x%x" % (S_FLL, FLAGS + FL_L))
    e("s_mov_b32 s%d, 0" % S_LAYER)
    e("s_mov_b32 s%d, 0x%x" % (S_STIN, STATS))
    e("s_mov_b32 s%d, 0x%x" % (S_FXIN, FLAGS + FL_X))
    e("s_mov_b32 s%d, 0" % S_STI)
    e("s_waitcnt lgkmcnt(0)")
    ws_srd(k, 32, 36)
    e("s_mov_b32 s40, s30"); e("s_mov_b32 s41, s31"); e("s_mov_b32 s42, %d" % (2048*512*2)); e("s_mov_b32 s43, 0x20000")
    k.stamp()
    lc, ln = k.newlabel(), k.newlabel()
    e("s_cmp_lt_u32 s%d, 4" % S_WAVE)
    e("s_cbranch_scc1 %s" % ln)
    e("s_cmp_lg_u32 s%d, 7" % S_WAVE)
    e("s_cbranch_scc1 %s" % lc)
    e("s_lshl_b32 s13, s%d, 5" % S_G)
    e("s_add_u32 s13, s13, s%d" % S_J)
    e("s_lshl_b32 s13, s13, 2")
    e("s_add_u32 s13, s13, 0x%x" % (FLAGS + FL_CENSUS))
    e("v_mov_b32 v8, s52")
    e("s_mov_b64 exec, 1")
    e("buffer_store_dword v8, v%d, %s, s13 offen sc1" % (V_ZERO, SRD))
    e("s_mov_b64 exec, -1")
    k.label(lc)
    e("s_sub_u32 s10, s%d, 4" % S_WAVE)
    e("s_lshl_b32 s10, s10, 11")
    qkv_w_base(k, 15, 10)
    for q in range(12): loader_issue_qkv_w(k, q, 15, 10)
    k.label(ln)
    k.label("L_layer")
    phase_rowgemm(k, "qkv"); k.stamp()
    phase_attn(k); k.stamp()
    phase_ldsgemm(k, "wo"); k.stamp()
    phase_rowgemm(k, "gateup"); k.stamp()
    phase_ldsgemm(k, "down"); k.stamp()
    e("s_add_u32 s%d, s%d, 1" % (S_LAYER, S_LAYER))
    e("s_add_u32 s%d, s%d, 0x%x" % (S_LOFF, S_LOFF, LSTR))
    e("s_add_u32 s%d, s%d, 0x400000" % (S_XIN, S_XIN))
    e("s_add_u32 s%d, s%d, 0x8000" % (S_FLL, S_FLL))
    e("s_add_u32 s%d, s%d, 0x100000" % (S_STIN, S_STIN))
    e("s_add_u32 s%d, s%d, 8192" % (S_FXIN, S_FXIN))
    e("s_cmp_lt_u32 s%d, 2" % S_LAYER)
    e("s_cbranch_scc1 L_layer")
    if STAMP:
        e("s_waitcnt vmcnt(0)")
        k.stamp()
        e("s_lshl_b32 s13, s2, 3")
        e("s_add_u32 s13, s13, s%d" % S_WAVE)
        e("s_lshl_b32 s13, s13, 8")
        e("s_add_u32 s13, s13, 0x%x" % STAMPS)
        e("buffer_store_dword v0, v%d, %s, s13 offen" % (V_L4, SRD))
    k.label("L_main_end")
    e("s_endpgm")
    return k.text(128, 128)

def main(out_path):
    import gen_prep
    ptxt, nprep = gen_prep.gen_prep(sys.modules[__name__])
    launches = [("prep_kernel", nprep, 64, 16384), ("main_kernel", 256, 512, 163840)]
    txt = HEADER
    for name, g, b, lds in launches:
        txt += "; @launch kernel=%s grid=(%d,1,1) block=(%d,1,1) lds=%d\n" % (name, g, b, lds)
    txt += '.amdgcn_target "amdgcn-amd-amdhsa--gfx950"\n'
    txt += ptxt + gen_main()
    open(out_path, "w").write(txt)

if __name__ == "__main__":
    main(sys.argv[1] if len(sys.argv) > 1 else "p.s")
```

```python
import gen
from gen import Kern, ws_srd, ONES_BF16
def gen_prep(G):
    k = Kern("prep_kernel"); e = k.e
    NQ, NG, NO, ND = 24*4, 28*4, 8*4, 8*14
    B_G = NQ; B_U = B_G + NG; B_O = B_U + NG; B_D = B_O + NO; B_X = B_D + ND
    NX = 256
    B_Z = B_X + NX
    NZ = G.FLAGS_BYTES // 1024
    B_T = B_Z + NZ
    assert B_T % 8 == 0
    NTCH = 256 if G.PREPT else 0
    NTOT = B_T + NTCH
    e("s_cmp_ge_u32 s2, %d" % NTOT)
    e("s_cbranch_scc1 L_prep_end")
    e("s_load_dwordx16 s[16:31], s[0:1], 0")
    e("s_load_dwordx2 s[32:33], s[0:1], 72")
    e("v_and_b32 v3, 31, v0")
    e("v_lshrrev_b32 v4, 5, v0")
    e("v_lshlrev_b32 v2, 4, v0")
    e("s_mov_b32 s53, 0x%x" % ONES_BF16)
    e("s_waitcnt lgkmcnt(0)")
    ws_srd(k, 32, 36)
    e("s_mov_b32 s43, 0x20000")
    e("s_cmp_ge_u32 s2, %d" % B_T)
    e("s_cbranch_scc1 L_prep_touch")
    e("s_cmp_ge_u32 s2, %d" % B_Z)
    e("s_cbranch_scc1 L_prep_zero")
    e("s_cmp_ge_u32 s2, %d" % B_X)
    e("s_cbranch_scc1 L_prep_x")
    e("s_mov_b32 s47, 256"); e("s_mov_b32 s48, 0"); e("s_mov_b32 s50, 128"); e("s_mov_b32 s59, 0")
    e("s_cmp_lt_u32 s2, %d" % B_G)
    e("s_cbranch_scc0 L_prep_n1")
    e("s_mov_b32 s40, s18"); e("s_mov_b32 s41, s19"); e("s_mov_b32 s42, %d" % (512*1536*2)); e("s_mov_b32 s44, 3072")
    e("s_lshr_b32 s45, s2, 2"); e("s_and_b32 s52, s2, 3")
    e("s_lshr_b32 s55, s45, 3")
    e("s_and_b32 s56, s45, 7")
    e("s_mul_i32 s56, s56, 6")
    e("s_add_u32 s56, s56, s55")
    e("s_lshl_b32 s46, s56, 15"); e("s_add_u32 s46, s46, 0x%x" % G.WQKV_F); e("s_mov_b32 s51, %d" % (3*32768))
    e("s_lshl_b32 s49, s56, 10"); e("s_add_u32 s49, s49, 0x%x" % G.CS_QKV); e("s_mov_b32 s54, 3072")
    e("s_branch L_prep_strip")
    k.label("L_prep_n1")
    e("s_cmp_lt_u32 s2, %d" % B_O)
    e("s_cbranch_scc0 L_prep_n2")
    e("s_mov_b32 s42, %d" % (512*1792*2)); e("s_mov_b32 s44, 3584")
    e("s_mov_b32 s47, 32768"); e("s_mov_b32 s50, 1024")
    e("s_sub_u32 s55, s2, %d" % B_G)
    e("s_mov_b32 s40, s24"); e("s_mov_b32 s41, s25")
    e("s_cmp_lt_u32 s2, %d" % B_U)
    e("s_cbranch_scc1 L_prep_gu")
    e("s_sub_u32 s55, s2, %d" % B_U)
    e("s_mov_b32 s40, s26"); e("s_mov_b32 s41, s27"); e("s_mov_b32 s48, 256")
    k.label("L_prep_gu")
    e("s_lshr_b32 s45, s55, 2"); e("s_and_b32 s52, s55, 3")
    e("s_lshl_b32 s46, s45, 17"); e("s_add_u32 s46, s46, 0x%x" % G.WGU_F); e("s_mov_b32 s51, 65536")
    e("s_lshl_b32 s49, s45, 12"); e("s_add_u32 s49, s49, 0x%x" % G.CS_GU); e("s_mov_b32 s54, 2048")
    e("s_branch L_prep_strip")
    k.label("L_prep_n2")
    e("s_mov_b32 s44, 1024"); e("s_mov_b32 s49, 0x%x" % G.CS_DUM); e("s_mov_b32 s54, 1024")
    e("s_cmp_lt_u32 s2, %d" % B_D)
    e("s_cbranch_scc0 L_prep_n3")
    e("s_mov_b32 s40, s20"); e("s_mov_b32 s41, s21"); e("s_mov_b32 s42, %d" % (512*512*2))
    e("s_sub_u32 s55, s2, %d" % B_O)
    e("s_lshr_b32 s45, s55, 2"); e("s_and_b32 s52, s55, 3")
    e("s_lshl_b32 s46, s45, 16"); e("s_add_u32 s46, s46, 0x%x" % G.WO_F); e("s_mov_b32 s51, 32768")
    e("s_branch L_prep_strip")
    k.label("L_prep_n3")
    e("s_mov_b32 s40, s28"); e("s_mov_b32 s41, s29"); e("s_mov_b32 s42, %d" % (1792*512*2))
    e("s_sub_u32 s55, s2, %d" % B_D)
    e("s_and_b32 s45, s55, 7"); e("s_lshr_b32 s52, s55, 3")
    if getattr(G, "H_TMAJOR", False): e("s_mov_b32 s59, 1")
    e("s_mul_i32 s46, s45, %d" % (2*112*1024)); e("s_add_u32 s46, s46, 0x%x" % G.WD_F); e("s_mov_b32 s51, %d" % (112*1024))
    k.label("L_prep_strip")
    e("v_lshrrev_b32 v5, 3, v0")
    e("v_mul_lo_u32 v5, v5, s44")
    e("v_and_b32 v6, 7, v0")
    e("v_lshl_add_u32 v5, v6, 4, v5")
    e("s_lshl_b32 s55, s52, 7"); e("s_mul_i32 s55, s55, s44")
    e("s_lshl_b32 s56, s45, 7"); e("s_add_u32 s55, s55, s56")
    e("s_lshl_b32 s56, s44, 3")
    for i in range(16):
        e("s_mov_b32 m0, %d" % (i*1024))
        if i: e("s_add_u32 s55, s55, s56")
        else: e("s_nop 0")
        k.vmem("buffer_load_dwordx4 v5, s[40:43], s55 offen lds", ("ld", i))
    e("v_bfe_u32 v7, v0, 2, 2")
    e("v_lshl_add_u32 v7, v4, 2, v7")
    e("v_lshlrev_b32 v7, 7, v7")
    e("v_bfe_u32 v8, v0, 4, 1")
    e("v_lshl_add_u32 v7, v8, 5, v7")
    e("v_and_b32 v8, 3, v0")
    e("v_lshl_add_u32 v7, v8, 3, v7")
    e("v_lshrrev_b32 v9, 4, v3")
    e("v_and_b32 v8, 15, v3")
    e("v_lshlrev_b32 v8, 4, v8")
    e("v_mul_lo_u32 v6, v9, s47")
    e("v_add_u32 v6, v6, v8")
    e("v_lshl_add_u32 v6, v4, 9, v6")
    e("v_add_u32 v6, s48, v6")
    e("v_mul_lo_u32 v10, v9, s50")
    e("v_lshrrev_b32 v8, 1, v8")
    e("v_add_u32 v10, v10, v8")
    e("s_and_b32 s57, s52, 3"); e("s_lshl_b32 s57, s57, 8")
    e("s_lshr_b32 s58, s48, 1")
    e("s_add_u32 s57, s57, s58"); e("s_add_u32 s57, s57, s49")
    e("v_add_u32 v10, s57, v10")
    e("v_mov_b32 v11, 0"); e("v_mov_b32 v12, 0")
    KPERM = getattr(G, "kstep_dest", None)
    for ks in range(8):
        e("s_lshl_b32 s57, s52, 3")
        e("s_add_u32 s57, s57, %d" % ks)
        e("s_mul_i32 s58, s57, 9363")
        e("s_lshr_b32 s58, s58, 16")
        e("s_mul_i32 s60, s58, 7")
        e("s_sub_u32 s60, s57, s60")
        e("s_lshl_b32 s60, s60, 4")
        e("s_add_u32 s60, s60, s58")
        e("s_cmp_eq_u32 s59, 1")
        e("s_cselect_b32 s57, s60, s57")
        e("s_lshl_b32 s57, s57, 10")
        e("s_add_u32 s%d, s57, s46" % (64+2*ks))
        e("s_add_u32 s%d, s%d, s51" % (65+2*ks, 64+2*ks))
    for ks in range(8):
        k.wait_vm(("ld", 2*ks+1))
        for hh in range(2):
            b = 16 + 8*ks + 4*hh
            k.lds("ds_read_b64_tr_b16 v[%d:%d], v7 offset:%d" % (b, b+1, ks*2048 + hh*64), ("t", ks))
            k.lds("ds_read_b64_tr_b16 v[%d:%d], v7 offset:%d" % (b+2, b+3, ks*2048 + 1024 + hh*64), ("t", ks))
    for ks in range(8):
        k.wait_lg(("t", ks))
        for hh in range(2):
            b = 16 + 8*ks + 4*hh
            k.vmem("buffer_store_dwordx4 v[%d:%d], v6, s[36:39], s%d offen" % (b, b+3, 64+2*ks+hh), "st")
            for j in range(4):
                e("v_dot2_f32_bf16 v%d, v%d, s53, v%d" % (11+hh, b+j, 11+hh))
    e("s_nop 2")
    e("v_mov_b32 v13, v11"); e("v_mov_b32 v14, v12")
    e("s_nop 1")
    e("v_permlane32_swap_b32 v11, v13"); e("v_permlane32_swap_b32 v12, v14")
    e("s_nop 1")
    e("v_add_f32 v11, v11, v13"); e("v_add_f32 v12, v12, v14")
    for hh in range(2):
        c = 11 + hh
        e("v_cvt_pk_bf16_f32 v13, v%d, v%d" % (c, c))
        e("v_lshlrev_b32 v13, 16, v13")
        e("v_sub_f32 v13, v%d, v13" % c)
        e("v_cvt_pk_bf16_f32 v%d, v%d, v13" % (80+2*hh, c))
        e("v_mov_b32 v%d, v%d" % (81+2*hh, 80+2*hh))
    e("s_mov_b32 exec_hi, 0")
    e("buffer_store_dwordx2 v[80:81], v10, s[36:39], 0 offen")
    e("buffer_store_dwordx2 v[82:83], v10, s[36:39], s54 offen")
    e("s_endpgm")
    k.label("L_prep_x")
    k.vm = []; k.lg = []
    e("s_mov_b32 s40, s16"); e("s_mov_b32 s41, s17"); e("s_mov_b32 s42, %d" % (2048*512*2))
    e("s_sub_u32 s54, s2, %d" % B_X)
    e("s_lshr_b32 s55, s54, 2")
    e("s_and_b32 s56, s54, 3")
    e("s_lshl_b32 s57, s55, 15")
    e("s_lshl_b32 s58, s56, 8")
    e("s_add_u32 s58, s58, s57")
    e("v_lshlrev_b32 v5, 10, v3")
    e("v_lshl_add_u32 v5, v4, 4, v5")
    for ks in range(8):
        k.vmem("buffer_load_dwordx4 v[%d:%d], v5, s[40:43], s58 offen offset:%d" % (16+4*ks, 19+4*ks, 32*ks), ("x", ks))
    e("s_lshl_b32 s59, s56, 13")
    e("s_add_u32 s59, s59, s57")
    e("s_add_u32 s59, s59, 0x%x" % G.XT)
    e("s_lshl_b32 s60, s55, 13")
    e("s_lshl_b32 s61, s56, 11")
    e("s_add_u32 s60, s60, s61")
    e("s_add_u32 s60, s60, 0x%x" % G.STATS)
    for r in range(8): e("v_mov_b32 v%d, 0" % (64+r))
    for ks in range(8):
        k.wait_vm(("x", ks))
        b = 16 + 4*ks
        e("v_permlane32_swap_b32 v%d, v%d" % (b, b+2))
        e("v_permlane32_swap_b32 v%d, v%d" % (b+1, b+3))
        if ks == 4: e("s_add_u32 s59, s59, 4096")
        else: e("s_nop 0")
        e("s_nop 0")
        k.vmem("buffer_store_dwordx4 v[%d:%d], v2, s[36:39], s59 offen offset:%d" % (b, b+3, (ks % 4)*1024), "st")
        ct = ks // 2
        for j in range(4):
            e("v_dot2_f32_bf16 v%d, v%d, s53, v%d" % (64+2*ct, b+j, 64+2*ct))
            e("v_dot2_f32_bf16 v%d, v%d, v%d, v%d" % (65+2*ct, b+j, b+j, 65+2*ct))
    e("s_nop 3")
    e("buffer_store_dwordx4 v[64:67], v2, s[36:39], s60 offen")
    e("buffer_store_dwordx4 v[68:71], v2, s[36:39], s60 offen offset:1024")
    e("s_endpgm")
    k.label("L_prep_zero")
    e("s_sub_u32 s4, s2, %d" % B_Z)
    e("s_lshl_b32 s4, s4, 10")
    e("s_add_u32 s4, s4, 0x%x" % G.ZBASE)
    for r in range(4): e("v_mov_b32 v%d, 0" % (4+r))
    e("buffer_store_dwordx4 v[4:7], v2, s[36:39], s4 offen")
    e("s_endpgm")
    k.label("L_prep_touch")
    e("s_sub_u32 s4, s2, %d" % B_T)
    e("s_and_b32 s5, s4, 7"); e("s_lshr_b32 s6, s4, 3")
    e("s_lshl_b32 s7, s5, 5"); e("s_add_u32 s7, s7, s6")
    e("v_lshlrev_b32 v8, 7, v0")
    e("s_mul_i32 s8, s7, %d" % (28*1024)); e("s_add_u32 s8, s8, 0x%x" % G.HT)
    for q in range(4):
        e("s_add_u32 s9, s8, %d" % min(q*8192, 20*1024))
        e("buffer_load_dword v9, v8, s[36:39], s9 offen")
    e("s_lshl_b32 s8, s7, 13"); e("s_add_u32 s9, s8, 0x%x" % G.OT)
    e("buffer_load_dword v9, v8, s[36:39], s9 offen")
    if G.PREPT > 1:
        e("s_lshl_b32 s8, s6, 16"); e("s_lshl_b32 s9, s5, 13"); e("s_add_u32 s8, s8, s9")
        for base in (G.KH, G.VH, G.KH+G.LSTR, G.VH+G.LSTR):
            e("s_add_u32 s9, s8, 0x%x" % base)
            e("buffer_load_dword v9, v8, s[36:39], s9 offen")
    k.label("L_prep_end")
    e("s_endpgm")
    return k.text(96, 0), NTOT
```

```python
import sys, struct, os
import gen
from gen import Kern, f32bits, ws_srd, ONES_BF16, LOG2E, QSCALE, NEGBIG, stats_reduce_ops, HEADER

KNAME = "main_kernel"
STAMP = int(os.environ.get('STAMP', '0'))
FORCE_SLOW = int(os.environ.get('FORCE_SLOW', '0'))
FINE = int(os.environ.get('FINE', '0'))
NPRE_X = int(os.environ.get('NPRE_X', '16'))
GU_LA = int(os.environ.get('GU_LA', '4'))
KVFLAG_AT = int(os.environ.get('KVFLAG_AT', '92'))
WO_F   = 0x000000
WGU_F  = 0x080000
WD_F   = 0x400000
CS_GU  = 0x5C0000
CS_DUM = 0x5DC000
FLAGS  = 0x5F0000
CENW   = 0x5E2000
PDW    = 0x5E0000
XT     = 0x0800000
STATS  = 0x1000000
LSTR   = 0x1100000
KF     = 0x1200000
VF     = 0x1400000
KH     = 0x1600000
VH     = 0x1800000
OT     = 0x1A00000
HT     = 0x1C00000
WQKV_F = 0x3400000
CS_QKV = WQKV_F + 0x180000
STAMPS = 0x6000000
H_TMAJOR = True
FL_KV, FL_KVH, FL_O, FL_H = 0, 512, 1024, 2048
FL_LSTR = 2560
FLAGS_BYTES = 0x20000
ZBASE = 0x5E0000

S_WAVE, S_G, S_J = 3, 4, 5
S_MODE, S_LOFF, S_XIN, S_FLL, S_LAYER, S_STIN, S_FXIN, S_STI = 44, 45, 46, 47, 48, 49, 50, 51
S_NONCE, S_GQ = 54, 55
SRD = "s[36:39]"
SRD_OUT = "s[40:43]"
SRD_WQ = "s[56:59]"
SRD_X = "s[60:63]"
SRD_DBG = "s[96:99]"
V_L4, V_ONE, V_ZERO = 125, 126, 127

a_ = list(range(10)); w_ = list(range(10, 20))
QMAP = [a_[8], a_[9], w_[0], w_[1], w_[2], w_[3], w_[8], w_[9], a_[0], a_[1], a_[2], a_[3]]
HB = [a_[4]*8192, w_[4]*8192]
EXCH = a_[7]*8192
CSX = w_[7]*8192
QX = w_[7]*8192 + 4096 - 131072
WOA = [a_[4], a_[5], a_[6], a_[7], w_[4], w_[5], w_[6], w_[7]]
GU_PRE = 12
GUR = list(QMAP)
DN_A = [a_[4], a_[5], a_[6], a_[7], w_[4], w_[5], w_[6], w_[7], a_[0], a_[1], a_[2], a_[3]]
RED = a_[4]*8192

DN_PRE = int(os.environ.get('DN_PRE', '30'))
DW_PER_STEP = (DN_PRE + 9) // 10
def dn_wreg(i):
    if i >= 42: i -= 42
    return "a[%d:%d]" % (4*i, 4*i+3) if i < 32 else "v[%d:%d]" % (72 + 4*(i-32), 75 + 4*(i-32))

class PK(Kern):
    def stamp(self):
        if not STAMP: return
        self.e("s_memrealtime s[100:101]" if STAMP == 1 else "s_memtime s[100:101]")
        self.e("s_waitcnt lgkmcnt(0)")
        self.lg = []
        self.e("s_mov_b32 m0, s%d" % S_STI)
        self.e("s_nop 0")
        self.e("v_writelane_b32 v0, s100, m0")
        self.e("s_add_u32 s%d, s%d, 1" % (S_STI, S_STI))

def stores(k, inss, tag=None):
    la, lb = k.newlabel(), k.newlabel()
    k.e("s_cmp_eq_u32 s%d, 1" % S_MODE)
    k.e("s_cbranch_scc1 %s" % la)
    for ins in inss: k.e(ins + " sc1")
    k.e("s_branch %s" % lb)
    k.label(la)
    for ins in inss: k.e(ins)
    k.label(lb)
    for ins in inss: k.vm.append(tag)

SPIN_LIMIT = 400000
DEFER = int(os.environ.get('DEFER', '0'))
GSLEEP = int(os.environ.get('GSLEEP', '12'))
def set_exec(k, nlanes):
    if nlanes >= 64: return
    assert nlanes <= 32
    k.e("s_mov_b32 exec_lo, 0x%x" % ((1 << nlanes) - 1))
    k.e("s_mov_b32 exec_hi, 0")

def spin(k, load, test, sleep=0):
    lp, ld = k.newlabel(), k.newlabel()
    k.e("s_mov_b32 s53, 0")
    k.label(lp)
    k.e(load)
    k.e("s_add_u32 s53, s53, 1")
    k.e("s_waitcnt vmcnt(0)")
    for t in test: k.e(t)
    k.e("s_cbranch_vccz %s" % ld)
    if sleep: k.e("s_sleep %d" % sleep)
    k.e("s_cmp_lt_u32 s53, %d" % SPIN_LIMIT)
    k.e("s_cbranch_scc1 %s" % lp)
    k.label(ld)

def poll(k, s_addr, nlanes, vtmp, val=1):
    set_exec(k, nlanes)
    k.e("s_add_u32 s31, s%d, %d" % (S_NONCE, val))
    spin(k, "buffer_load_dword v%d, v%d, %s, s%d offen sc1" % (vtmp, V_L4, SRD, s_addr),
         ["v_subrev_u32 v%d, s31, v%d" % (vtmp, vtmp), "v_cmp_lt_u32 vcc, 15, v%d" % vtmp])
    if nlanes < 64: k.e("s_mov_b64 exec, -1")
    k.vm = []

def flag_val(k, vdst, val):
    k.e("s_add_u32 s31, s%d, %d" % (S_NONCE, val))
    k.e("v_mov_b32 v%d, s31" % vdst)

def flag_store(k, s_addr, v_val=V_ONE, extra_sc1=None):
    k.e("s_mov_b64 exec, 1")
    if extra_sc1 is not None:
        k.vmem("buffer_store_dword v%d, v%d, %s, s%d offen sc1" % (v_val, V_ZERO, SRD, extra_sc1), "flag")
    stores(k, ["buffer_store_dword v%d, v%d, %s, s%d offen" % (v_val, V_ZERO, SRD, s_addr)], "flag")
    k.e("s_mov_b64 exec, -1")

def census_check(k, vt, vt2):
    e = k.e
    lskip = k.newlabel()
    e("s_cmp_lg_u32 s%d, 0" % S_LAYER)
    e("s_cbranch_scc1 %s" % lskip)
    e("s_lshl_b32 s13, s%d, 9" % S_G)
    e("s_add_u32 s13, s13, 0x%x" % CENW)
    e("v_lshrrev_b32 v%d, 3, v2" % vt2)
    e("v_lshlrev_b32 v%d, 7, v%d" % (vt2, vt2))
    e("v_and_b32 v%d, 7, v2" % vt)
    e("v_lshl_add_u32 v%d, v%d, 2, v%d" % (vt2, vt, vt2))
    set_exec(k, 32)
    spin(k, "buffer_load_dword v%d, v%d, %s, s13 offen sc1" % (vt, vt2, SRD), ["v_cmp_eq_u32 vcc, 0, v%d" % vt])
    e("v_cmp_ne_u32 vcc, s52, v%d" % vt)
    e("s_mov_b64 exec, -1")
    e("s_cmp_eq_u64 vcc, 0")
    e("s_cselect_b32 s%d, %d, 0" % (S_MODE, 0 if FORCE_SLOW else 1))
    k.label(lskip)

def prep_wait(k, vt):
    e = k.e
    lskip = k.newlabel()
    e("s_cmp_lg_u32 s%d, 0" % S_LAYER)
    e("s_cbranch_scc1 %s" % lskip)
    e("v_lshrrev_b32 v%d, 1, v2" % (vt+4))
    e("v_lshlrev_b32 v%d, 7, v%d" % (vt+4, vt+4))
    e("v_and_b32 v%d, 1, v2" % vt)
    e("v_lshl_add_u32 v%d, v%d, 4, v%d" % (vt+4, vt, vt+4))
    e("s_and_b32 s13, s%d, 1" % S_WAVE)
    e("s_lshl_b32 s13, s13, 12")
    e("s_add_u32 s13, s13, 0x%x" % PDW)
    e("s_add_u32 s31, s%d, 16" % S_NONCE)
    t = []
    for q in range(4): t.append("v_subrev_u32 v%d, s31, v%d" % (vt+q, vt+q))
    t += ["v_max_u32 v%d, v%d, v%d" % (vt, vt, vt+1), "v_max_u32 v%d, v%d, v%d" % (vt+2, vt+2, vt+3), "v_max_u32 v%d, v%d, v%d" % (vt, vt, vt+2),
          "v_cmp_lt_u32 vcc, 15, v%d" % vt]
    spin(k, "buffer_load_dwordx4 v[%d:%d], v%d, %s, s13 offen sc1" % (vt, vt+3, vt+4, SRD), t, sleep=2)
    k.label(lskip)

TOUCH = int(os.environ.get('TOUCH', '0'))
PT = int(os.environ.get('PT', '1'))
INPLACE = 1
PREPT = int(os.environ.get('PREPT', '1'))
DUALKV = int(os.environ.get('DUALKV', '0'))
PT0 = int(os.environ.get('PT0', '0'))
PTQ = 0
PTKV = int(os.environ.get('PTKV', '0'))
LATEDEF = int(os.environ.get('LATEDEF', '1'))
SPLITFIN = int(os.environ.get('SPLITFIN', '1'))
def touch_set(k, which, nxt, vaddr, vdst):
    if not TOUCH: return
    e = k.e
    e("v_lshlrev_b32 v%d, 7, v2" % vaddr)
    e("s_lshl_b32 s13, s%d, 5" % S_G)
    e("s_add_u32 s13, s13, s%d" % S_J)
    def t(sreg):
        k.vmem("buffer_load_dword v%d, v%d, %s, s%d offen sc1" % (vdst, vaddr, SRD, sreg), "touch")
    lo = LSTR*nxt; xo = 0x400000*nxt; so = 0x100000*nxt
    if which == 'a':
        e("s_lshl_b32 s14, s%d, 16" % S_J); e("s_lshl_b32 s15, s%d, 13" % S_G); e("s_add_u32 s14, s14, s15"); e("s_add_u32 s14, s14, s%d" % S_LOFF)
        e("s_add_u32 s15, s14, 0x%x" % (KF + lo)); t(15)
        e("s_add_u32 s15, s14, 0x%x" % (VF + lo)); t(15)
        e("s_lshl_b32 s14, s13, 13")
        e("s_add_u32 s15, s14, s%d" % S_LOFF); e("s_add_u32 s15, s15, 0x%x" % (OT + lo)); t(15)
        e("s_add_u32 s15, s14, s%d" % S_XIN); e("s_add_u32 s15, s15, 0x%x" % (0x200000 + xo)); t(15)
        e("s_and_b32 s14, s%d, 7" % S_J); e("s_lshl_b32 s14, s14, 13"); e("s_lshl_b32 s15, s%d, 16" % S_G); e("s_add_u32 s14, s14, s15")
        e("s_add_u32 s15, s14, s%d" % S_STIN); e("s_add_u32 s15, s15, 0x%x" % (0x80000 + so)); t(15)
    else:
        e("s_mul_i32 s14, s13, %d" % (28*1024)); e("s_add_u32 s14, s14, s%d" % S_LOFF); e("s_add_u32 s14, s14, 0x%x" % (HT + lo))
        for q in range(4):
            e("s_add_u32 s15, s14, %d" % min(q*8192, 20*1024)); t(15)
        e("s_lshl_b32 s14, s13, 13")
        e("s_add_u32 s15, s14, s%d" % S_XIN); e("s_add_u32 s15, s15, 0x%x" % (0x400000 + xo)); t(15)
        e("s_and_b32 s14, s%d, 7" % S_J); e("s_lshl_b32 s14, s14, 13"); e("s_lshl_b32 s15, s%d, 16" % S_G); e("s_add_u32 s14, s14, s15")
        e("s_add_u32 s15, s14, s%d" % S_STIN); e("s_add_u32 s15, s15, 0x%x" % (0x100000 + so)); t(15)

def lds_addr(a):
    return 5 + a // 65536, a % 65536

QKV_ORDER = []
for c in range(4): QKV_ORDER += [(1, c), (2, c)]
for c in range(4): QKV_ORDER.append((0, c))
GU_ORDER = []
for c in range(4): GU_ORDER += [(0, c), (1, c)]
for t in range(2, 7):
    for c in range(4): GU_ORDER.append((t, c))

def qkv_w_base(k, s_dst, s_lw2k):
    k.e("s_lshr_b32 s%d, s%d, 1" % (s_dst, S_J))
    k.e("s_mul_i32 s%d, s%d, %d" % (s_dst, s_dst, 3*32768))
    k.e("s_add_u32 s%d, s%d, s%d" % (s_dst, s_dst, s_lw2k))
    k.e("s_add_u32 s%d, s%d, 0x%x" % (s_dst, s_dst, WQKV_F))
    k.e("s_add_u32 s%d, s%d, s%d" % (s_dst, s_dst, S_GQ))

def issue_qkv_w(k, ci, s_base, s_lw2k):
    t, c = QKV_ORDER[ci]
    k.e("s_add_u32 m0, s%d, %d" % (s_lw2k, QMAP[ci]*8192))
    k.e("s_add_u32 s14, s%d, %d" % (s_base, t*32768 + c*8192))
    k.vmem("buffer_load_dwordx4 v5, %s, s14 offen lds" % SRD, ("w", ci))
    k.vmem("buffer_load_dwordx4 v5, %s, s14 offen offset:1024 lds" % SRD, ("w", ci))

def gu_math(acc, pk, tm, SC1, VAR):
    ops = []
    for r in range(8):
        ops.append("v_mul_f32 v%d, v%d, v%d" % (tm+r, SC1, acc+r))
    for r in range(8):
        ops.append("v_exp_f32 v%d, v%d" % (tm+r, tm+r))
        ops.append("v_mul_f32 v%d, v%d, v%d" % (acc+r, acc+r, acc+8+r))
    for r in range(8):
        ops.append("v_fma_f32 v%d, v%d, v%d, v%d" % (tm+r, tm+r, VAR, VAR))
    for r in range(8):
        ops.append("v_rcp_f32 v%d, v%d" % (tm+r, tm+r))
    ops.append("s_nop 0")
    for r in range(8):
        ops.append("v_mul_f32 v%d, v%d, v%d" % (acc+r, acc+r, tm+r))
        if r % 2 == 1:
            ops.append("v_cvt_pk_bf16_f32 v%d, v%d, v%d" % (pk + r//2, acc+r-1, acc+r))
    return ops

def tr_addr(k, vdst, vtmp, rowstride_shift):
    e = k.e
    e("v_bfe_u32 v%d, v2, 2, 2" % vdst)
    e("v_lshl_add_u32 v%d, v4, 2, v%d" % (vdst, vdst))
    e("v_lshlrev_b32 v%d, %d, v%d" % (vdst, rowstride_shift, vdst))
    e("v_bfe_u32 v%d, v2, 4, 1" % vtmp)
    e("v_lshl_add_u32 v%d, v%d, 5, v%d" % (vdst, vtmp, vdst))
    e("v_and_b32 v%d, 3, v2" % vtmp)
    e("v_lshl_add_u32 v%d, v%d, 3, v%d" % (vdst, vtmp, vdst))

def prep_unit_issue(k, lds_base_sgpr):
    e = k.e
    ln1, ln2, ln3, lgo, lgu, lnone = [k.newlabel() for _ in range(6)]
    e("s_mov_b32 s30, 0")
    e("s_cmp_ge_u32 s28, 464")
    e("s_cbranch_scc1 %s" % lnone)
    e("s_mov_b32 s30, 1")
    e("s_load_dwordx16 s[64:79], s[0:1], 0")
    e("s_mov_b32 s27, 0x20000")
    e("s_mov_b32 s87, 256"); e("s_mov_b32 s88, 0"); e("s_mov_b32 s90, 128"); e("s_mov_b32 s93, 0")
    e("s_waitcnt lgkmcnt(0)")
    e("s_cmp_lt_u32 s28, 368")
    e("s_cbranch_scc1 %s" % ln1)
    e("s_mov_b32 s24, s66"); e("s_mov_b32 s25, s67"); e("s_mov_b32 s26, %d" % (512*1536*2)); e("s_mov_b32 s84, 3072")
    e("s_sub_u32 s29, s28, 368")
    e("s_lshr_b32 s85, s29, 2"); e("s_and_b32 s92, s29, 3")
    e("s_lshr_b32 s29, s85, 3")
    e("s_and_b32 s31, s85, 7")
    e("s_mul_i32 s31, s31, 6")
    e("s_add_u32 s31, s31, s29")
    e("s_lshl_b32 s86, s31, 15"); e("s_add_u32 s86, s86, 0x%x" % WQKV_F); e("s_add_u32 s86, s86, s%d" % S_GQ); e("s_mov_b32 s91, %d" % (3*32768))
    e("s_lshl_b32 s89, s31, 10"); e("s_add_u32 s89, s89, 0x%x" % CS_QKV); e("s_add_u32 s89, s89, s%d" % S_GQ); e("s_mov_b32 s94, 3072")
    e("s_branch %s" % lgo)
    k.label(ln1)
    e("s_cmp_lt_u32 s28, 224")
    e("s_cbranch_scc0 %s" % ln2)
    e("s_mov_b32 s26, %d" % (512*1792*2)); e("s_mov_b32 s84, 3584")
    e("s_mov_b32 s87, 32768"); e("s_mov_b32 s90, 1024")
    e("s_mov_b32 s29, s28")
    e("s_mov_b32 s24, s72"); e("s_mov_b32 s25, s73")
    e("s_cmp_lt_u32 s28, 112")
    e("s_cbranch_scc1 %s" % lgu)
    e("s_sub_u32 s29, s28, 112")
    e("s_mov_b32 s24, s74"); e("s_mov_b32 s25, s75"); e("s_mov_b32 s88, 256")
    k.label(lgu)
    e("s_lshr_b32 s85, s29, 2"); e("s_and_b32 s92, s29, 3")
    e("s_lshl_b32 s86, s85, 17"); e("s_add_u32 s86, s86, 0x%x" % WGU_F); e("s_mov_b32 s91, 65536")
    e("s_lshl_b32 s89, s85, 12"); e("s_add_u32 s89, s89, 0x%x" % CS_GU); e("s_mov_b32 s94, 2048")
    e("s_branch %s" % lgo)
    k.label(ln2)
    e("s_mov_b32 s84, 1024"); e("s_mov_b32 s89, 0x%x" % CS_DUM); e("s_mov_b32 s94, 1024")
    e("s_cmp_lt_u32 s28, 256")
    e("s_cbranch_scc0 %s" % ln3)
    e("s_mov_b32 s24, s68"); e("s_mov_b32 s25, s69"); e("s_mov_b32 s26, %d" % (512*512*2))
    e("s_sub_u32 s29, s28, 224")
    e("s_lshr_b32 s85, s29, 2"); e("s_and_b32 s92, s29, 3")
    e("s_lshl_b32 s86, s85, 16"); e("s_add_u32 s86, s86, 0x%x" % WO_F); e("s_mov_b32 s91, 32768")
    e("s_branch %s" % lgo)
    k.label(ln3)
    e("s_mov_b32 s24, s76"); e("s_mov_b32 s25, s77"); e("s_mov_b32 s26, %d" % (1792*512*2))
    e("s_sub_u32 s29, s28, 256")
    e("s_and_b32 s85, s29, 7"); e("s_lshr_b32 s92, s29, 3"); e("s_mov_b32 s93, 1")
    e("s_mul_i32 s86, s85, %d" % (2*112*1024)); e("s_add_u32 s86, s86, 0x%x" % WD_F); e("s_mov_b32 s91, %d" % (112*1024))
    k.label(lgo)
    e("v_lshrrev_b32 v9, 3, v2")
    e("v_mul_lo_u32 v9, v9, s84")
    e("v_and_b32 v8, 7, v2")
    e("v_lshl_add_u32 v9, v8, 4, v9")
    e("s_lshl_b32 s29, s92, 7"); e("s_mul_i32 s29, s29, s84")
    e("s_lshl_b32 s28, s85, 7"); e("s_add_u32 s29, s29, s28")
    e("s_lshl_b32 s28, s84, 3")
    for i in range(16):
        e("s_add_u32 m0, s%d, %d" % (lds_base_sgpr, i*1024))
        if i: e("s_add_u32 s29, s29, s28")
        else: e("s_nop 0")
        e("buffer_load_dwordx4 v9, s[24:27], s29 offen lds")
    k.label(lnone)

def prep_unit_finish(k, lds_base_sgpr, local=False, part=0):
    e = k.e
    lnone = k.newlabel()
    e("s_cmp_eq_u32 s30, 0")
    e("s_cbranch_scc1 %s" % lnone)
    B = 48
    if part in (0, 1):
        tr_addr(k, 8, 9, 7)
        e("v_add_u32 v8, s%d, v8" % lds_base_sgpr)
        for ks in range(8):
            for hh in range(2):
                b = B + 8*ks + 4*hh
                e("ds_read_b64_tr_b16 v[%d:%d], v8 offset:%d" % (b, b+1, ks*2048 + hh*64))
                e("ds_read_b64_tr_b16 v[%d:%d], v8 offset:%d" % (b+2, b+3, ks*2048 + 1024 + hh*64))
            if ks % 2 == 1: e("s_waitcnt lgkmcnt(0)")
    if part == 1:
        k.label(lnone)
        return
    e("v_lshrrev_b32 v9, 4, v3")
    e("v_and_b32 v8, 15, v3")
    e("v_lshlrev_b32 v8, 4, v8")
    e("v_mul_lo_u32 v10, v9, s87")
    e("v_add_u32 v10, v10, v8")
    e("v_lshl_add_u32 v10, v4, 9, v10")
    e("v_add_u32 v10, s88, v10")
    e("v_mul_lo_u32 v11, v9, s90")
    e("v_lshrrev_b32 v8, 1, v8")
    e("v_add_u32 v11, v11, v8")
    e("s_and_b32 s28, s92, 3"); e("s_lshl_b32 s28, s28, 8")
    e("s_lshr_b32 s29, s88, 1")
    e("s_add_u32 s28, s28, s29"); e("s_add_u32 s28, s28, s89")
    e("v_add_u32 v11, s28, v11")
    e("v_mov_b32 v12, 0"); e("v_mov_b32 v13, 0")
    e("s_mov_b32 s95, 0x%x" % ONES_BF16)
    for ks in range(8):
        e("s_lshl_b32 s28, s92, 3")
        e("s_add_u32 s28, s28, %d" % ks)
        e("s_mul_i32 s29, s28, 9363")
        e("s_lshr_b32 s29, s29, 16")
        e("s_mul_i32 s31, s29, 7")
        e("s_sub_u32 s31, s28, s31")
        e("s_lshl_b32 s31, s31, 4")
        e("s_add_u32 s31, s31, s29")
        e("s_cmp_eq_u32 s93, 1")
        e("s_cselect_b32 s28, s31, s28")
        e("s_lshl_b32 s28, s28, 10")
        e("s_add_u32 s28, s28, s86")
        e("s_add_u32 s29, s28, s91")
        if local:
            stores(k, ["buffer_store_dwordx4 v[%d:%d], v10, %s, s%d offen" % (B+8*ks+4*hh, B+8*ks+4*hh+3, SRD, 28+hh) for hh in range(2)])
        for hh in range(2):
            b = B + 8*ks + 4*hh
            if not local: e("buffer_store_dwordx4 v[%d:%d], v10, %s, s%d offen sc1" % (b, b+3, SRD, 28+hh))
            for j in range(4):
                e("v_dot2_f32_bf16 v%d, v%d, s95, v%d" % (12+hh, b+j, 12+hh))
    e("s_cmp_eq_u32 s89, 0x%x" % CS_DUM)
    e("s_cbranch_scc1 %s" % lnone)
    e("s_nop 2")
    e("v_mov_b32 v14, v12"); e("v_mov_b32 v15, v13")
    e("s_nop 1")
    e("v_permlane32_swap_b32 v12, v14"); e("v_permlane32_swap_b32 v13, v15")
    e("s_nop 1")
    e("v_add_f32 v12, v12, v14"); e("v_add_f32 v13, v13, v15")
    for hh in range(2):
        c = 12 + hh
        e("v_cvt_pk_bf16_f32 v14, v%d, v%d" % (c, c))
        e("v_lshlrev_b32 v14, 16, v14")
        e("v_sub_f32 v14, v%d, v14" % c)
        e("v_cvt_pk_bf16_f32 v%d, v%d, v14" % (112+2*hh, c))
        e("v_mov_b32 v%d, v%d" % (113+2*hh, 112+2*hh))
    e("s_mov_b32 exec_hi, 0")
    if local:
        stores(k, ["buffer_store_dwordx2 v[112:113], v11, %s, 0 offen" % SRD, "buffer_store_dwordx2 v[114:115], v11, %s, s94 offen" % SRD])
    else:
        e("buffer_store_dwordx2 v[112:113], v11, %s, 0 offen sc1" % SRD)
        e("buffer_store_dwordx2 v[114:115], v11, %s, s94 offen sc1" % SRD)
    e("s_mov_b64 exec, -1")
    k.label(lnone)

def xpoll(k, qkv, vt):
    if not qkv:
        poll(k, 13, 16, vt); return
    lskip = k.newlabel()
    k.e("s_cmp_eq_u32 s%d, 0" % S_LAYER)
    k.e("s_cbranch_scc1 %s" % lskip)
    keep = list(k.vm)
    poll(k, 13, 16, vt)
    k.label(lskip)
    k.vm = keep

def phase_rowgemm(k, kind):
    e = k.e
    k.vm = []; k.lg = []
    qkv = kind == "qkv"
    NT = 3 if qkv else 7
    NCH = NT*4
    NSTEP = NCH // 2
    ORDER = QKV_ORDER if qkv else GU_ORDER
    P1 = (1, 2) if qkv else (0, 1)
    REST = [0] if qkv else [2, 3, 4, 5, 6]
    if qkv:
        wslot = list(QMAP); wfree = [0]*12
    else:
        wslot = list(GUR); wfree = [0]*12
        free_at = {s_: -1 for s_ in [a_[4], a_[5], a_[6], w_[4], w_[5], w_[6], w_[7]]}
        for ci in range(12): free_at[wslot[ci]] = ci//2 + 1
        for ci in range(12, NCH):
            s_ = min(free_at, key=lambda x: (free_at[x], x))
            wslot.append(s_); wfree.append(free_at[s_] + 1)
            free_at[s_] = ci//2 + 1
    Lload, Ldone = k.newlabel("RL"), k.newlabel("RD")
    e("s_and_b32 s6, s%d, 1" % S_J)
    e("s_lshl_b32 s8, s%d, 1" % S_G)
    e("s_add_u32 s21, s6, s8")
    e("s_lshr_b32 s7, s%d, 1" % S_J)
    e("s_and_b32 s9, s%d, 3" % S_WAVE)
    e("s_lshl_b32 s6, s21, 2")
    e("s_add_u32 s6, s6, s9")
    e("s_and_b32 s22, s6, 7")
    e("s_lshl_b32 s13, s22, 6")
    e("s_add_u32 s13, s13, s%d" % S_FXIN)
    if not qkv: e("s_add_u32 s13, s13, 512")
    e("s_cmp_ge_u32 s%d, 4" % S_WAVE)
    e("s_cbranch_scc1 %s" % Lload)
    WF = 16; CSF = 96; MFR = 8; PKR = 80; RR = 64
    SC1, VAR, T0, T1 = 12, 13, 14, 15
    RSTD = 1
    VE = 124
    e("s_lshl_b32 s14, s9, 11")
    e("s_add_u32 s14, s14, %d" % EXCH)
    e("v_add_u32 v%d, s14, v5" % VE)
    e("s_mul_i32 s12, s7, %d" % (NT*1024))
    e("s_add_u32 s12, s12, 0x%x" % (CS_QKV if qkv else CS_GU))
    if qkv: e("s_add_u32 s12, s12, s%d" % S_GQ)
    e("v_lshlrev_b32 v%d, 3, v3" % T1)
    e("v_lshl_add_u32 v%d, v4, 9, v%d" % (T1, T1))
    for t in range(NT):
        if t == 4: e("s_add_u32 s12, s12, 4096")
        for q in range(2):
            k.vmem("buffer_load_dwordx2 v[%d:%d], v%d, %s, s12 offen offset:%d" % (CSF+4*t+2*q, CSF+4*t+2*q+1, T1, SRD, (t % 4)*1024 + q*256), "cs")
    e("s_lshl_b32 s8, s6, 15")
    e("s_add_u32 s8, s8, s%d" % S_XIN)
    VPT = 119 if qkv else RSTD
    if qkv:
        e("s_lshl_b32 s15, s7, 17"); e("s_lshl_b32 s14, s6, 10"); e("s_add_u32 s15, s15, s14"); e("s_add_u32 s15, s15, s%d" % S_LOFF)
        if PT:
            e("v_and_b32 v%d, 7, v2" % VPT); e("v_lshlrev_b32 v%d, 7, v%d" % (VPT, VPT))
            e("v_bfe_u32 v%d, v2, 3, 1" % T0); e("v_lshl_add_u32 v%d, v%d, 16, v%d" % (VPT, T0, VPT))
            e("v_bfe_u32 v%d, v2, 4, 1" % T0); e("v_lshl_add_u32 v%d, v%d, 21, v%d" % (VPT, T0, VPT))
            assert VF - KF == 1 << 21 and KH - KF == 1 << 22 and VH - KH == 1 << 21
        def pt():
            e("s_add_u32 s14, s15, 0x%x" % KH)
            set_exec(k, 32)
            k.vmem("buffer_load_dword v120, v%d, %s, s14 offen sc1" % (VPT, SRD), "pt")
            e("s_mov_b64 exec, -1")
    else:
        e("s_mul_i32 s16, s6, 112")
        e("s_add_u32 s16, s16, s7")
        e("s_lshl_b32 s16, s16, 10")
        e("s_add_u32 s16, s16, 0x%x" % HT)
        if PT:
            e("v_and_b32 v%d, 7, v2" % VPT); e("v_lshlrev_b32 v%d, 7, v%d" % (VPT, VPT))
            e("v_lshrrev_b32 v%d, 3, v2" % T0); e("v_lshl_add_u32 v%d, v%d, 14, v%d" % (VPT, T0, VPT))
        def pt():
            e("s_mov_b32 exec_hi, 0x00ffffff")
            k.vmem("buffer_load_dword v%d, v%d, %s, s16 offen sc1" % (T1, VPT, SRD), "pt")
            e("s_mov_b64 exec, -1")
    xpoll(k, qkv, T0)
    def mk_x(s):
        def f():
            if s % 4 == 0 and s > 0: e("s_add_u32 s8, s8, 4096")
            k.vmem("buffer_load_dwordx4 a[%d:%d], v5, %s, s8 offen offset:%d sc1" % (4*s, 4*s+3, SRD, (s % 4)*1024), ("x", s))
        return f
    k.stamp()
    loads = [mk_x(s) for s in range(32)] + ([pt] if PTKV and qkv else [])
    for f in loads[:NPRE_X]: f()
    loads = loads[NPRE_X:]
    sched = []
    for s in range(32):
        sched.append((P1[0], s)); sched.append((P1[1], s))
    for t in REST:
        for s in range(32): sched.append((t, s))
    cidx = {tc: i for i, tc in enumerate(ORDER)}
    PF = 3
    total = len(sched)
    side = []
    if qkv: ACCM = {1: 32, 2: 48, 0: 32}
    if qkv: ACCM = {1: 32, 2: 48, 0: 96+12-12+0}
    if qkv:
        ACCM = {1: 32, 2: 48, 0: 64}
        RR = 80; PKR = 16+16+0
    else:
        ACCM = {t: [32, 48, 64][t % 3] for t in range(7)}
    def rd(g):
        t, s = sched[g]
        if g % 16 == 0:
            n = g // 16
            k.wait_lg_all()
            e("s_barrier")
            if n == 4:
                k.lds("ds_read_b128 v[%d:%d], v%d" % (MFR, MFR+3, VE), "ex")
                k.lds("ds_read_b64 v[%d:%d], v%d offset:1024" % (SC1, VAR, VE), "ex")
                if qkv:
                    k.lds("ds_read_b32 v%d, v%d offset:1032" % (RSTD, VE), "ex")
        ci = cidx[(t, s // 8)]
        ad = wslot[ci]*8192 + (s % 8)*1024
        b = WF + 4*(g % 4)
        va, off = lds_addr(ad)
        k.lds("ds_read_b128 v[%d:%d], v%d offset:%d" % (b, b+3, va, off), ("wf", g))
    def cost(x):
        if callable(x): return 2
        return 2 if x.startswith(("v_exp", "v_rcp", "v_rsq")) else 1
    def run_side(budget):
        while side and budget > 0:
            x = side.pop(0)
            budget -= cost(x)
            if callable(x): x()
            else: e(x)
    def epi_kv():
        ops = []
        aK, aV = ACCM[1], ACCM[2]
        def rr():
            e("s_lshl_b32 s14, s9, 11")
            e("s_add_u32 s14, s14, %d" % (EXCH + 1024 + 8))
            e("v_lshl_add_u32 v%d, v4, 6, s14" % T0)
            for r in range(16):
                row = (r & 3) + 8*(r >> 2)
                k.lds("ds_read_b32 v%d, v%d offset:%d" % (RR+r, T0, row*16), "rr")
        ops.append(rr)
        for r in range(16):
            ops.append("v_mul_f32 v%d, v%d, v%d" % (aK+r, RSTD, aK+r))
            if r % 2 == 1:
                ops.append("v_cvt_pk_bf16_f32 v%d, v%d, v%d" % (aK + r//2, aK+r-1, aK+r))
        def stk():
            e("s_add_u32 s13, s15, 0x%x" % KH)
            e("s_add_u32 s14, s13, 65536")
            k.vmem("buffer_store_dwordx4 v[%d:%d], v5, %s, s13 offen sc1" % (aK, aK+3, SRD), "st")
            k.vmem("buffer_store_dwordx4 v[%d:%d], v5, %s, s14 offen sc1" % (aK+4, aK+7, SRD), "st")
        ops.append(stk)
        ops.append(lambda: k.wait_lg("rr"))
        for r in range(16):
            ops.append("v_mul_f32 v%d, v%d, v%d" % (aV+r, RR+r, aV+r))
            if r % 2 == 1:
                ops.append("v_cvt_pk_bf16_f32 v%d, v%d, v%d" % (aV + r//2, aV+r-1, aV+r))
        ops += ["v_lshrrev_b32 v%d, 4, v3" % T0, "v_lshlrev_b32 v%d, 16, v%d" % (T0, T0), "v_and_b32 v%d, 15, v3" % T1,
                "v_lshl_add_u32 v%d, v%d, 4, v%d" % (T0, T1, T0), "v_lshl_add_u32 v%d, v4, 8, v%d" % (T0, T0)]
        def stv():
            e("s_add_u32 s13, s15, 0x%x" % VH)
            k.vmem("buffer_store_dwordx4 v[%d:%d], v%d, %s, s13 offen sc1" % (aV, aV+3, T0, SRD), "st")
            k.vmem("buffer_store_dwordx4 v[%d:%d], v%d, %s, s13 offen offset:512 sc1" % (aV+4, aV+7, T0, SRD), "st")
        def stl():
            e("s_add_u32 s13, s15, 0x%x" % KF)
            e("s_add_u32 s14, s13, 65536")
            e("s_add_u32 s16, s15, 0x%x" % VF)
            stores(k, ["buffer_store_dwordx4 v[%d:%d], v5, %s, s13 offen" % (aK, aK+3, SRD),
                       "buffer_store_dwordx4 v[%d:%d], v5, %s, s14 offen" % (aK+4, aK+7, SRD),
                       "buffer_store_dwordx4 v[%d:%d], v%d, %s, s16 offen" % (aV, aV+3, T0, SRD),
                       "buffer_store_dwordx4 v[%d:%d], v%d, %s, s16 offen offset:512" % (aV+4, aV+7, T0, SRD)], "st")
        def lw():
            e("s_lshl_b32 s13, s9, 10")
            e("v_add_u32 v%d, s13, v5" % T1)
            k.lds("ds_write_b128 v%d, v[%d:%d] offset:%d" % (T1, aK, aK+3, HB[0] + 8192), "kw")
            e("v_add_u32 v%d, 0x10000, v%d" % (T1, T1))
            k.lds("ds_write_b128 v%d, v[%d:%d] offset:%d" % (T1, aK+4, aK+7, HB[1] + 8192 - 65536), "kw")
            e("v_lshrrev_b32 v%d, 4, v3" % T1)
            e("s_mov_b32 s14, %d" % (HB[1] - HB[0]))
            e("v_mul_lo_u32 v%d, v%d, s14" % (T1, T1))
            e("v_and_b32 v%d, 0xffff, v%d" % (T0, T0))
            e("v_add_u32 v%d, v%d, v%d" % (T1, T1, T0))
            e("v_add_u32 v%d, s13, v%d" % (T1, T1))
            k.lds("ds_write_b128 v%d, v[%d:%d] offset:%d" % (T1, aV, aV+3, HB[0] + 12288 + 8192), "kw")
            k.lds("ds_write_b128 v%d, v[%d:%d] offset:%d" % (T1, aV+4, aV+7, HB[0] + 12288 + 8192 + 512), "kw")
        ops += [stv, stl, lw] if DUALKV else [stv, lw]
        return ops
    def kv_flags():
        e("s_lshl_b32 s13, s7, 5")
        e("s_lshl_b32 s14, s22, 2")
        e("s_add_u32 s13, s13, s14")
        e("s_add_u32 s13, s13, s%d" % S_FLL)
        e("s_add_u32 s14, s13, %d" % FL_KVH)
        k.wait_vm_all()
        if DUALKV:
            flag_store(k, 13, V_ONE, extra_sc1=14)
        else:
            e("s_mov_b64 exec, 1")
            k.vmem("buffer_store_dword v%d, v%d, %s, s14 offen sc1" % (V_ONE, V_ZERO, SRD), "flag")
            e("s_mov_b64 exec, -1")
    def epi_gu(t):
        pk = PKR + 4*(t % 2)
        ops = gu_math(ACCM[t], pk, PKR+8, SC1, VAR)
        def st():
            if t == 0:
                e("s_lshl_b32 s15, s22, 6")
                e("s_lshl_b32 s14, s7, 2")
                e("s_add_u32 s15, s15, s14")
                e("s_add_u32 s15, s15, s%d" % S_FLL)
                e("s_add_u32 s15, s15, %d" % FL_H)
            else:
                e("s_add_u32 s16, s16, 16384")
                if t >= 2:
                    k.wait_vm(("st", t-1))
                    flag_val(k, T0, t)
                    flag_store(k, 15, T0)
            stores(k, ["buffer_store_dwordx4 v[%d:%d], v5, %s, s16 offen" % (pk, pk+3, SRD)], ("st", t))
            if False:
                e("s_add_u32 s14, s16, 32768")
                set_exec(k, 8)
                k.vmem("buffer_load_dword v%d, v%d, %s, s14 offen sc1" % (T1, VPT, SRD), "pt")
                e("s_mov_b64 exec, -1")
        ops.append(st)
        return ops
    def mf(acc, wf, xf, c, t):
        if qkv and t == 2:
            e("v_mfma_f32_32x32x16_bf16 v[%d:%d], %s, %s, %s" % (acc, acc+15, xf, wf, c))
        else:
            e("v_mfma_f32_32x32x16_bf16 v[%d:%d], %s, %s, %s" % (acc, acc+15, wf, xf, c))
    def corr(t):
        acc = ACCM[t]
        mf(acc, "v[%d:%d]" % (CSF+4*t, CSF+4*t+3), "v[%d:%d]" % (MFR, MFR+3), "v[%d:%d]" % (acc, acc+15), t)
    for g in range(PF):
        rd(g)
    for g in range(total):
        t, s = sched[g]
        if g + PF < total: rd(g + PF)
        if g >= 64 and s == 3:
            if g < 96:
                side.extend(epi_kv() if qkv else epi_gu(0) + epi_gu(1))
            else:
                side.extend(epi_gu(t-1))
        if g < 64 and t == P1[0]: k.wait_vm(("x", s))
        k.wait_lg(("wf", g))
        acc = ACCM[t]
        mf(acc, "v[%d:%d]" % (WF+4*(g % 4), WF+4*(g % 4)+3), "a[%d:%d]" % (4*s, 4*s+3),
           "0" if s == 0 else "v[%d:%d]" % (acc, acc+15), t)
        if loads:
            loads.pop(0)()
        if qkv and g == 48: census_check(k, T0, T1)
        run_side(6 if qkv else (4 if g < 96 else 2))
        if qkv and g == KVFLAG_AT:
            run_side(1000)
            kv_flags()
        if g == 63:
            k.wait_lg("ex")
            corr(P1[0]); corr(P1[1])
            k.stamp()
        elif g > 63 and s == 31:
            run_side(1000)
            corr(t)
    if qkv:
        k.stamp()
        acc = ACCM[0]
        e("s_lshl_b32 s13, s9, 10")
        e("v_add_u32 v%d, s13, v7" % T1)
        e("s_nop 9")
        for r in range(16):
            e("v_mul_f32 v%d, v%d, v%d" % (acc+r, SC1, acc+r))
            if r % 2 == 1:
                e("v_cvt_pk_bf16_f32 v%d, v%d, v%d" % (acc + r//2, acc+r-1, acc+r))
        k.lds("ds_write_b128 v%d, v[%d:%d] offset:%d" % (T1, acc+4, acc+7, QX), "qw")
        for r in range(4):
            e("v_accvgpr_write_b32 a%d, v%d" % (r, acc+r))
        k.wait_lg_all()
    else:
        k.wait_lg_all()
        e("s_barrier")
        k.stamp()
        e("s_nop 9")
        side.extend(epi_gu(NT-1))
        run_side(1000)
        flag_val(k, T0, 7)
        k.wait_vm_all()
        flag_store(k, 15, T0)
    e("s_branch %s" % Ldone)
    k.label(Lload)
    k.vm = []; k.lg = []
    e("s_lshl_b32 s10, s9, 11")
    ST = 16; MEAN, RSTD, T0, T1, SC1, VAR, MFR = 8, 14, 10, 11, 12, 13, 116
    VE = 120
    e("s_add_u32 s14, s10, %d" % EXCH)
    e("v_add_u32 v%d, s14, v5" % VE)
    e("s_lshl_b32 s11, s6, 13")
    e("s_add_u32 s11, s11, s%d" % S_STIN)
    def stats_partials():
        for cq in range(8):
            if cq == 4: e("s_add_u32 s11, s11, 4096")
            k.vmem("buffer_load_dwordx4 v[%d:%d], v5, %s, s11 offen offset:%d sc1" % (ST+4*cq, ST+4*cq+3, SRD, (cq % 4)*1024), "stats")
    def stats_publish():
        for x in stats_reduce_ops(ST, MEAN, RSTD, T0, T1, VAR, MFR): e(x)
        e("v_mul_f32 v%d, 0x%x, v%d" % (SC1, f32bits(QSCALE if qkv else -LOG2E), RSTD))
        k.lds("ds_write_b128 v%d, v[%d:%d]" % (VE, MFR, MFR+3), "ex")
        k.lds("ds_write_b96 v%d, v[%d:%d] offset:1024" % (VE, SC1, RSTD), "ex")
    if qkv:
        xpoll(k, qkv, T0)
        stats_partials()
        for n in range(NSTEP):
            if n < 2: e("s_waitcnt vmcnt(%d)" % (24 - 4*(n+1) + 8))
            if n == 2:
                k.wait_vm("stats")
                stats_publish()
                k.wait_lg_all()
            if n == 4: census_check(k, T0, T1)
            e("s_barrier")
            if PTQ and n < 5:
                l6 = k.newlabel()
                e("s_cmp_lg_u32 s%d, 0" % S_LAYER)
                e("s_cbranch_scc1 %s" % l6)
                e("s_lshl_b32 s13, s%d, 5" % S_G)
                e("s_add_u32 s13, s13, s%d" % S_J)
                e("s_add_u32 s14, s10, %d" % (n*8192))
                e("s_mul_i32 s15, s13, %d" % (28*1024)); e("s_add_u32 s15, s15, s14"); e("s_add_u32 s15, s15, 0x%x" % HT)
                e("s_lshl_b32 s13, s13, 13"); e("s_add_u32 s13, s13, s14"); e("s_add_u32 s13, s13, 0x%x" % (OT - 14*2048))
                e("s_cmp_lt_u32 s14, %d" % (14*2048))
                e("s_cselect_b32 s15, s15, s13")
                e("s_cmp_ge_u32 s14, %d" % (18*2048))
                e("s_cbranch_scc1 %s" % l6)
                e("v_lshlrev_b32 v121, 7, v2")
                set_exec(k, 16)
                e("buffer_load_dword v122, v121, %s, s15 offen sc1" % SRD)
                e("s_mov_b64 exec, -1")
                k.label(l6)
        e("s_lshr_b32 s8, s9, 1")
        e("s_and_b32 s17, s9, 1")
        e("s_add_u32 s11, s21, s8")
        e("s_sub_i32 s11, s11, 2")
        e("s_mul_i32 s12, s17, %d" % (HB[1] - HB[0]))
        e("s_lshl_b32 s13, s8, 12")
        e("s_add_u32 s12, s12, s13")
        e("s_add_u32 s12, s12, %d" % HB[0])
        linv, lgo, lloc = k.newlabel(), k.newlabel(), k.newlabel()
        e("s_cmp_lt_i32 s11, 0")
        e("s_cbranch_scc1 %s" % linv)
        if DUALKV: e("s_mov_b32 s15, 0"); e("s_mov_b32 s16, 0")
        else: e("s_mov_b32 s15, 0x%x" % (KH - KF)); e("s_mov_b32 s16, %d" % FL_KVH)
        e("s_lshr_b32 s13, s11, 1")
        e("s_cmp_eq_u32 s13, s%d" % S_G)
        e("s_cbranch_scc1 %s" % lloc)
        e("s_mov_b32 s15, 0x%x" % (KH - KF)); e("s_mov_b32 s16, %d" % (FL_KVH - 8192))
        k.label(lloc)
        e("s_lshl_b32 s13, s7, 5")
        e("s_and_b32 s14, s11, 1")
        e("s_lshl_b32 s14, s14, 4")
        e("s_add_u32 s13, s13, s14")
        e("s_add_u32 s13, s13, s%d" % S_FLL)
        e("s_add_u32 s13, s13, s16")
        e("s_lshl_b32 s18, s7, 1"); e("s_add_u32 s17, s18, s17"); e("s_lshl_b32 s17, s17, 6")
        e("s_lshl_b32 s14, s11, 2"); e("s_add_u32 s17, s17, s14"); e("s_lshl_b32 s17, s17, 10")
        e("s_add_u32 s17, s17, s%d" % S_LOFF); e("s_add_u32 s17, s17, s15")
        e("s_add_u32 s18, s17, 0x%x" % VF)
        e("s_add_u32 s17, s17, 0x%x" % KF)
        poll(k, 13, 4, T0)
        e("s_mov_b32 m0, s12")
        e("s_nop 0")
        for q in range(4):
            e("buffer_load_dwordx4 v5, %s, s17 offen offset:%d sc1 lds" % (SRD, q*1024))
        e("s_add_u32 m0, s12, 12288")
        e("s_nop 0")
        for q in range(4):
            e("buffer_load_dwordx4 v5, %s, s18 offen offset:%d sc1 lds" % (SRD, q*1024))
        e("s_branch %s" % lgo)
        k.label(linv)
        e("s_mov_b32 m0, s12")
        e("s_nop 0")
        for q in range(4):
            e("buffer_load_dwordx4 v5, %s, 0 offen offset:%d lds" % (SRD_WQ, q*1024))
        e("s_add_u32 m0, s12, 12288")
        e("s_nop 0")
        for q in range(4):
            e("buffer_load_dwordx4 v5, %s, 0 offen offset:%d lds" % (SRD_WQ, q*1024))
        k.label(lgo)
    else:
        e("s_mul_i32 s19, s7, %d" % (NT*32768))
        e("s_add_u32 s19, s19, s10")
        e("s_add_u32 s19, s19, 0x%x" % WGU_F)
        poll(k, 13, 16, T0)
        stats_partials()
        def issue_w(ci):
            t, c = ORDER[ci]
            e("s_add_u32 m0, s10, %d" % (wslot[ci]*8192))
            e("s_add_u32 s14, s19, %d" % (t*32768 + c*8192))
            k.vmem("buffer_load_dwordx4 v5, %s, s14 offen lds" % SRD, ("w", ci))
            k.vmem("buffer_load_dwordx4 v5, %s, s14 offen offset:1024 lds" % SRD, ("w", ci))
        e("s_lshr_b32 s20, s%d, 2" % S_J)
        e("s_lshl_b32 s20, s20, 1")
        e("s_and_b32 s14, s9, 1")
        e("s_add_u32 s20, s20, s14")
        e("s_mul_i32 s20, s20, %d" % (112*1024))
        e("s_lshr_b32 s14, s9, 1")
        e("s_lshl_b32 s14, s14, 11")
        e("s_add_u32 s20, s20, s14")
        e("s_add_u32 s20, s20, 0x%x" % WD_F)
        ndw = 0
        nxt = GU_PRE
        for n in range(NSTEP):
            while nxt < NCH and wfree[nxt] <= n and nxt // 2 <= n - 1 + GU_LA:
                issue_w(nxt); nxt += 1
            if n >= 4:
                for _ in range(DW_PER_STEP):
                    if ndw < DN_PRE:
                        c, h = divmod(ndw, 2)
                        if h == 0: e("s_add_u32 s14, s20, %d" % (c*4096))
                        elif _ == 0: e("s_add_u32 s14, s20, %d" % (c*4096))
                        k.vmem("buffer_load_dwordx4 %s, v5, %s, s14 offen offset:%d" % (dn_wreg(ndw), SRD, h*1024), ("dw", ndw))
                        ndw += 1
            if n == 2:
                k.wait_vm("stats")
                stats_publish()
            k.wait_vm(("w", 2*n)); k.wait_vm(("w", 2*n+1))
            k.wait_lg_all()
            e("s_barrier")
        assert nxt == NCH and ndw == DN_PRE
        e("s_barrier")
    k.label(Ldone)
    k.vm = []; k.lg = []

def phase_attn(k):
    e = k.e
    k.vm = []; k.lg = []
    e("s_and_b32 s6, s%d, 1" % S_J)
    e("s_lshl_b32 s8, s%d, 1" % S_G)
    e("s_add_u32 s6, s6, s8")
    e("s_lshl_b32 s6, s6, 2")
    e("s_and_b32 s8, s%d, 3" % S_WAVE)
    e("s_add_u32 s6, s6, s8")
    e("s_lshr_b32 s9, s%d, 2" % S_WAVE)
    e("s_and_b32 s7, s%d, 0xfe" % S_J)
    e("s_add_u32 s7, s7, s9")
    S = [8, 24]
    MF, MD, NM, NB = 40, 56, 72, 88
    P = [104, 112]
    M, T0, VK, VV = 120, 121, 122, 123
    AQ, AK, AV, AO = 0, 4, 40, 56
    e("v_lshlrev_b32 v%d, 2, v4" % M)
    e("v_sub_u32 v%d, v3, v%d" % (M, M))
    e("s_mov_b32 s13, 0x%x" % NEGBIG)
    e("v_mov_b32 v%d, s13" % T0)
    for r in range(16):
        a = (r & 3) + 8*(r >> 2)
        e("v_cmp_gt_i32 s[%d:%d], %d, v%d" % (64+2*r, 65+2*r, a, M))
    for r in range(16):
        e("v_cndmask_b32 v%d, v%d, 0, s[%d:%d]" % (MF+r, T0, 64+2*r, 65+2*r))
        e("v_cndmask_b32 v%d, 0, v%d, s[%d:%d]" % (MD+r, T0, 64+2*r, 65+2*r))
        e("v_mov_b32 v%d, v%d" % (NB+r, T0))
    e("v_cmp_eq_u32 s[64:65], 16, v3")
    e("v_cmp_eq_u32 s[66:67], 20, v3")
    e("s_mov_b32 s14, 0x%x" % ONES_BF16)
    e("v_mov_b32 v%d, s14" % T0)
    e("s_or_b64 s[64:65], s[64:65], s[66:67]")
    e("s_nop 0")
    e("v_cndmask_b32 v%d, 0, v%d, s[64:65]" % (T0, T0))
    for r in range(16):
        e("v_accvgpr_write_b32 a%d, v%d" % (AV+r, T0))
    e("s_mov_b32 s64, 0x0000ffff")
    e("s_mov_b32 s65, 0x0000ffff")
    e("s_mul_i32 s13, s9, %d" % (HB[1] - HB[0]))
    e("s_lshl_b32 s14, s8, 10")
    e("s_add_u32 s13, s13, s14")
    e("s_add_u32 s13, s13, %d" % HB[0])
    e("v_add_u32 v%d, s13, v5" % VK)
    e("v_and_b32 v%d, 15, v3" % VV)
    e("v_lshlrev_b32 v%d, 4, v%d" % (VV, VV))
    e("v_lshl_add_u32 v%d, v4, 8, v%d" % (VV, VV))
    e("v_add_u32 v%d, s13, v%d" % (VV, VV))
    e("v_add_u32 v%d, s14, v7" % M)
    k.stamp()
    e("s_waitcnt vmcnt(0)")
    if PT:
        e("s_lshl_b32 s13, s6, 5")
        e("s_add_u32 s13, s13, s7")
        e("s_lshl_b32 s13, s13, 10")
        e("s_add_u32 s13, s13, 0x%x" % OT)
        e("v_lshlrev_b32 v%d, 7, v2" % T0)
        set_exec(k, 8)
        e("buffer_load_dword v124, v%d, %s, s13 offen sc1" % (T0, SRD))
        e("s_mov_b64 exec, -1")
    e("s_barrier")
    k.stamp()
    lq = k.newlabel()
    e("s_cmp_lt_u32 s%d, 4" % S_WAVE)
    e("s_cbranch_scc1 %s" % lq)
    e("ds_read_b128 a[%d:%d], v%d offset:%d" % (AQ, AQ+3, M, QX))
    k.label(lq)
    for i in range(9):
        k.lds("ds_read_b128 a[%d:%d], v%d offset:%d" % (AK+4*i, AK+4*i+3, VK, i*1024), ("k", i))
    lt = k.newlabel()
    e("s_cmp_lg_u32 s%d, 0" % S_WAVE)
    e("s_cbranch_scc1 %s" % lt)
    touch_set(k, 'f', 0, T0, 124)
    k.label(lt)
    e("s_lshl_b32 s13, s%d, 10" % S_WAVE)
    e("s_lshr_b32 s19, s%d, 1" % S_J)
    e("s_mul_i32 s19, s19, %d" % (7*32768))
    e("s_add_u32 s19, s19, s13")
    e("s_add_u32 s19, s19, 0x%x" % WGU_F)
    pre = list(range(GU_PRE))
    def issue_pre():
        if not pre: return
        c = pre.pop(0)
        t, cc = GU_ORDER[c]
        e("s_add_u32 m0, s13, %d" % (GUR[c]*8192))
        e("s_add_u32 s14, s19, %d" % (t*32768 + cc*8192))
        k.vmem("buffer_load_dwordx4 v5, %s, s14 offen lds" % SRD, "pre")
    def rdv(i):
        b = AV + 8*(i % 2)
        e("s_mov_b64 exec, s[64:65]")
        k.lds("ds_read_b128 a[%d:%d], v%d offset:%d" % (b, b+3, VV, 12288 + i*1024), ("v", i))
        k.lds("ds_read_b128 a[%d:%d], v%d offset:%d" % (b+4, b+7, VV, 12288 + i*1024 + 512), ("v", i))
        e("s_mov_b64 exec, -1")
    def smfma(i, cval):
        d = S[i % 2]
        kf = "a[%d:%d]" % (AK+4*i, AK+4*i+3)
        q = "a[%d:%d]" % (AQ, AQ+3)
        if i < 8:
            la, lb = k.newlabel(), k.newlabel()
            e("s_cmp_lt_u32 s6, %d" % (8 - i))
            e("s_cbranch_scc1 %s" % la)
            e("v_mfma_f32_32x32x16_bf16 v[%d:%d], %s, %s, %s" % (d, d+15, kf, q, cval))
            e("s_branch %s" % lb)
            k.label(la)
            e("v_mfma_f32_32x32x16_bf16 v[%d:%d], %s, %s, v[%d:%d]" % (d, d+15, kf, q, NB, NB+15))
            k.label(lb)
        else:
            e("v_mfma_f32_32x32x16_bf16 v[%d:%d], %s, %s, %s" % (d, d+15, kf, q, cval))
    def c1(i):
        if i == 0: return "v[%d:%d]" % (MF, MF+15)
        if i == 8: return "v[%d:%d]" % (MD, MD+15)
        return "0"
    def c2(i):
        if i == 0: return "v[%d:%d]" % (MF, MF+15)
        if i == 8: return "v[%d:%d]" % (MD, MD+15)
        return "v[%d:%d]" % (NM, NM+15)
    k.wait_lg(("k", 0))
    smfma(0, c1(0))
    for i in range(9):
        if i + 1 < 9:
            k.wait_lg(("k", i+1))
            smfma(i+1, c1(i+1))
            if i == 0: e("s_nop 7")
        else:
            e("s_nop 3")
        d = S[i % 2]
        for j in range(8):
            if i == 0 and j == 0:
                e("v_max_f32 v%d, v%d, v%d" % (M, d, d+1))
            else:
                e("v_max3_f32 v%d, v%d, v%d, v%d" % (M, M, d+2*j, d+2*j+1))
        if i % 2 == 1: issue_pre()
    rdv(0)
    e("v_mov_b32 v%d, v%d" % (T0, M))
    e("s_nop 1")
    e("v_permlane32_swap_b32 v%d, v%d" % (M, T0))
    e("s_nop 1")
    e("v_max_f32 v%d, v%d, v%d" % (M, M, T0))
    for r in range(16):
        e("v_sub_f32 v%d, v%d, v%d" % (MF+r, MF+r, M))
    for r in range(16):
        e("v_sub_f32 v%d, 0, v%d" % (NM+r, M))
    smfma(0, c2(0))
    for r in range(16):
        e("v_sub_f32 v%d, v%d, v%d" % (MD+r, MD+r, M))
    for i in range(9):
        if i + 1 < 9:
            smfma(i+1, c2(i+1))
            rdv(i+1)
        d = S[i % 2]; p = P[i % 2]
        for r in range(16):
            e("v_exp_f32 v%d, v%d" % (d+r, d+r))
            if r % 2 == 1 and r >= 3:
                e("v_cvt_pk_bf16_f32 v%d, v%d, v%d" % (p + (r-3)//2, d+r-3, d+r-2))
            if r in (5, 11): issue_pre()
        k.wait_lg(("v", i))
        e("v_cvt_pk_bf16_f32 v%d, v%d, v%d" % (p + 7, d+14, d+15))
        b = AV + 8*(i % 2)
        c = "0" if i == 0 else "a[%d:%d]" % (AO, AO+15)
        e("v_mfma_f32_32x32x16_bf16 a[%d:%d], a[%d:%d], v[%d:%d], %s" % (AO, AO+15, b, b+3, p, p+3, c))
        e("s_nop 0")
        e("v_mfma_f32_32x32x16_bf16 a[%d:%d], a[%d:%d], v[%d:%d], a[%d:%d]" % (AO, AO+15, b+4, b+7, p+4, p+7, AO, AO+15))
    assert not pre
    k.stamp()
    e("s_lshl_b32 s13, s6, 5")
    e("s_add_u32 s13, s13, s7")
    e("s_and_b32 s14, s13, 255")
    e("s_lshl_b32 s14, s14, 2")
    e("s_lshl_b32 s13, s13, 10")
    e("s_add_u32 s13, s13, 0x%x" % OT)
    e("s_add_u32 s14, s14, s%d" % S_FLL)
    e("s_add_u32 s14, s14, %d" % FL_O)
    e("s_nop 6")
    for r in range(9):
        e("v_accvgpr_read_b32 v%d, a%d" % (S[0]+r, AO+r))
    e("v_rcp_f32 v%d, v%d" % (T0, S[0]+8))
    e("s_nop 0")
    for r in range(8):
        e("v_mul_f32 v%d, v%d, v%d" % (S[0]+r, T0, S[0]+r))
        if r % 2 == 1:
            e("v_cvt_pk_bf16_f32 v%d, v%d, v%d" % (P[0] + r//2, S[0]+r-1, S[0]+r))
    stores(k, ["buffer_store_dwordx4 v[%d:%d], v5, %s, s13 offen" % (P[0], P[0]+3, SRD)], "st")
    k.wait_vm_all()
    flag_store(k, 14)

def phase_ldsgemm(k, kind):
    e = k.e
    k.vm = []; k.lg = []
    wo = kind == "wo"
    KS = 32 if wo else 112
    NC = KS // 4
    NS = KS // 8
    AMAP = WOA if wo else DN_A
    NA = len(AMAP)
    ABASE, WBASE = (OT, WO_F) if wo else (HT, WD_F)
    POLLB = 4
    Lload, Ldone = k.newlabel("GL"), k.newlabel("GD")
    e("s_and_b32 s22, s%d, 3" % S_J)
    e("s_lshl_b32 s8, s%d, 2" % S_G)
    e("s_add_u32 s6, s22, s8")
    e("s_lshr_b32 s7, s%d, 2" % S_J)
    e("s_lshl_b32 s13, s22, %d" % (8 if wo else 7))
    e("s_add_u32 s13, s13, s%d" % S_FLL)
    e("s_add_u32 s13, s13, %d" % (FL_O if wo else FL_H))
    e("s_and_b32 s17, s%d, 3" % S_WAVE)
    e("s_cmp_ge_u32 s%d, 4" % S_WAVE)
    e("s_cbranch_scc%d %s" % (1 if wo else 0, Lload))
    e("s_lshr_b32 s8, s17, 1")
    e("s_and_b32 s9, s17, 1")
    e("s_lshl_b32 s10, s6, 1"); e("s_add_u32 s10, s10, s8")
    e("s_lshl_b32 s12, s7, 1"); e("s_add_u32 s12, s12, s9")
    e("s_mul_i32 s11, s12, %d" % (KS*1024))
    e("s_lshl_b32 s14, s8, 11")
    e("s_add_u32 s11, s11, s14")
    e("s_add_u32 s11, s11, 0x%x" % WBASE)
    NO = KS // 2
    def issue_w(i):
        c, h = divmod(i, 2)
        e("s_add_u32 s14, s11, %d" % (c*4096))
        k.vmem("buffer_load_dwordx4 %s, v5, %s, s14 offen offset:%d" % (dn_wreg(i), SRD, h*1024), ("w", i))
    RES = 8; ACC = [16, 32]; AF = 48; TMP = 122
    e("s_lshl_b32 s20, s10, 15")
    e("s_lshl_b32 s21, s12, 11")
    e("s_add_u32 s20, s20, s21")
    e("s_add_u32 s20, s20, s%d" % S_XIN)
    k.vmem("buffer_load_dwordx4 v[%d:%d], v5, %s, s20 offen sc1" % (RES, RES+3, SRD), "res")
    k.vmem("buffer_load_dwordx4 v[%d:%d], v5, %s, s20 offen offset:1024 sc1" % (RES+4, RES+7, SRD), "res")
    NA0 = 6
    if not wo:
        e("s_lshl_b32 s18, s17, 11")
        e("s_mul_i32 s19, s10, %d" % (KS*1024))
        e("s_lshl_b32 s14, s9, 11")
        e("s_add_u32 s19, s19, s14"); e("s_add_u32 s19, s19, 0x%x" % ABASE)
        poll(k, 13, 32, TMP, val=5)
        for c in range(NA0):
            e("s_add_u32 m0, s18, %d" % (AMAP[c]*8192))
            e("s_add_u32 s14, s19, %d" % (c*4096))
            k.vmem("buffer_load_dwordx4 v5, %s, s14 offen sc1 lds" % SRD, ("a", c))
            k.vmem("buffer_load_dwordx4 v5, %s, s14 offen offset:1024 sc1 lds" % SRD, ("a", c))
    nw = 0 if wo else DN_PRE
    while nw < min(NO, 42):
        issue_w(nw); nw += 1
    VA0, VA1 = 112, 116
    e("s_mul_i32 s14, s8, 6144")
    e("s_xor_b32 s15, s8, 1")
    e("s_lshl_b32 s15, s15, 12")
    e("s_lshl_b32 s16, s8, 11")
    e("s_add_u32 s15, s15, s16")
    for n in range(3):
        e("v_add_u32 v%d, s14, v%d" % (VA0+n, 5+n))
        e("v_add_u32 v%d, s15, v%d" % (VA1+n, 5+n))
    e("s_lshl_b32 s21, s10, 13")
    e("s_lshl_b32 s16, s7, 10")
    e("s_add_u32 s21, s21, s16")
    e("s_lshl_b32 s16, s9, 3")
    e("s_add_u32 s21, s21, s16")
    e("s_add_u32 s21, s21, s%d" % S_STIN)
    e("s_and_b32 s23, s10, 7")
    e("s_lshl_b32 s23, s23, 6")
    e("s_lshl_b32 s16, s12, 2")
    e("s_add_u32 s23, s23, s16")
    e("s_add_u32 s23, s23, s%d" % S_FXIN)
    e("s_add_u32 s23, s23, %d" % (512 if wo else 1024))
    e("s_xor_b32 s16, s17, 2")
    e("s_lshl_b32 s16, s16, 12")
    e("v_add_u32 v120, s16, v5")
    e("s_lshl_b32 s16, s17, 12")
    e("v_add_u32 v121, s16, v5")
    e("s_mov_b32 s16, 0x%x" % ONES_BF16)
    k.wait_vm("res")
    for j in range(8):
        e("v_lshlrev_b32 v%d, 16, v%d" % (ACC[0]+2*j, RES+j))
        e("v_and_b32 v%d, 0xffff0000, v%d" % (ACC[0]+2*j+1, RES+j))
    PF = 2
    if wo: e("s_barrier")
    def rd(i):
        c, h = divmod(i, 2)
        if i % 4 == 0:
            if not wo and i // 4 == POLLB:
                poll(k, 13, 32, TMP, val=7)
            k.wait_vm(("a", c)); k.wait_vm(("a", c+1))
            k.wait_lg_all()
            e("s_barrier")
        aa = AMAP[c % NA]*8192 + h*1024
        b = AF + 8*(i % 3)
        k.lds("ds_read_b128 v[%d:%d], v%d offset:%d" % (b, b+3, VA0 + aa // 65536, aa % 65536), ("f", i))
        k.lds("ds_read_b128 v[%d:%d], v%d offset:%d" % (b+4, b+7, VA1 + aa // 65536, aa % 65536), ("f", i))
    for i in range(PF):
        rd(i)
        if i == 0: k.stamp()
    for i in range(NO):
        if i + PF < NO: rd(i + PF)
        k.wait_vm(("w", i))
        k.wait_lg(("f", i))
        if FINE == 2 and not wo and i % 8 == 0 and i > 0: k.stamp()
        b = AF + 8*(i % 3)
        wf = dn_wreg(i)
        e("v_mfma_f32_32x32x16_bf16 v[%d:%d], %s, v[%d:%d], v[%d:%d]" % (ACC[0], ACC[0]+15, wf, b, b+3, ACC[0], ACC[0]+15))
        e("v_mfma_f32_32x32x16_bf16 v[%d:%d], %s, v[%d:%d], %s" % (ACC[1], ACC[1]+15, wf, b+4, b+7, "0" if i == 0 else "v[%d:%d]" % (ACC[1], ACC[1]+15)))
        if nw < NO and nw - 42 <= i: issue_w(nw); nw += 1
    assert nw == NO
    e("s_barrier")
    k.stamp()
    e("s_nop 11")
    for q in range(4):
        k.lds("ds_write_b128 v120, v[%d:%d] offset:%d" % (ACC[1]+4*q, ACC[1]+4*q+3, RED + q*1024), "rw")
    k.wait_lg_all()
    e("s_barrier")
    for q in range(4):
        k.lds("ds_read_b128 v[%d:%d], v121 offset:%d" % (ACC[1]+4*q, ACC[1]+4*q+3, RED + q*1024), ("rr", q))
    for q in range(4):
        k.wait_lg(("rr", q))
        for r in range(4*q, 4*q+4):
            e("v_add_f32 v%d, v%d, v%d" % (ACC[0]+r, ACC[0]+r, ACC[1]+r))
    e("s_barrier")
    for j in range(8):
        e("v_cvt_pk_bf16_f32 v%d, v%d, v%d" % (RES+j, ACC[0]+2*j, ACC[0]+2*j+1))
    lfin = k.newlabel()
    if not wo:
        e("s_cmp_eq_u32 s%d, 1" % S_LAYER)
        e("s_cbranch_scc1 %s" % lfin)
    stores(k, ["buffer_store_dwordx4 v[%d:%d], v5, %s, s20 offen" % (RES, RES+3, SRD),
               "buffer_store_dwordx4 v[%d:%d], v5, %s, s20 offen offset:1024" % (RES+4, RES+7, SRD)], "st")
    e("v_mov_b32 v%d, 0" % TMP); e("v_mov_b32 v%d, 0" % (TMP+1))
    for j in range(8):
        e("v_dot2_f32_bf16 v%d, v%d, s16, v%d" % (TMP, RES+j, TMP))
        e("v_dot2_f32_bf16 v%d, v%d, v%d, v%d" % (TMP+1, RES+j, RES+j, TMP+1))
    e("s_nop 2")
    stores(k, ["buffer_store_dwordx2 v[%d:%d], v5, %s, s21 offen" % (TMP, TMP+1, SRD)], "st")
    k.wait_vm_all()
    flag_store(k, 23)
    e("s_branch %s" % Ldone)
    if not wo:
        k.label(lfin)
        e("v_lshlrev_b32 v%d, 10, v3" % TMP)
        e("v_lshl_add_u32 v%d, v4, 4, v%d" % (TMP, TMP))
        e("s_lshl_b32 s21, s10, 15")
        e("s_lshl_b32 s16, s12, 6")
        e("s_add_u32 s21, s21, s16")
        for c in range(2):
            b = RES + 4*c
            e("v_permlane32_swap_b32 v%d, v%d" % (b, b+2))
            e("v_permlane32_swap_b32 v%d, v%d" % (b+1, b+3))
        e("s_nop 1")
        for c in range(2):
            b = RES + 4*c
            e("buffer_store_dwordx4 v[%d:%d], v%d, %s, s21 offen offset:%d" % (b, b+3, TMP, SRD_OUT, 32*c))
        e("s_branch %s" % Ldone)
    k.label(Lload)
    k.vm = []; k.lg = []
    e("s_mov_b32 s9, s17")
    e("s_lshr_b32 s8, s9, 1")
    e("s_and_b32 s12, s9, 1")
    e("s_lshl_b32 s10, s9, 11")
    e("s_lshl_b32 s12, s12, 11")
    e("s_lshl_b32 s11, s6, 1"); e("s_add_u32 s11, s11, s8"); e("s_mul_i32 s11, s11, %d" % (KS*1024))
    e("s_add_u32 s11, s11, s12"); e("s_add_u32 s11, s11, 0x%x" % ABASE)
    def issue_a(c):
        e("s_add_u32 m0, s10, %d" % (AMAP[c % NA]*8192))
        e("s_add_u32 s8, s11, %d" % (c*4096))
        k.vmem("buffer_load_dwordx4 v5, %s, s8 offen sc1 lds" % SRD, ("a", c))
        k.vmem("buffer_load_dwordx4 v5, %s, s8 offen offset:1024 sc1 lds" % SRD, ("a", c))
    na = 0 if wo else NA0
    if wo:
        e("s_barrier")
        poll(k, 13, 64, 8)
    else:
        qkv_w_base(k, 15, 10)
        poll(k, 13, 32, 8, val=5)
    nq = 0
    for n in range(NS):
        while na < NC and (na < NA or (na - NA) // 2 <= n - 2) and (wo or na < 20 or n > POLLB):
            issue_a(na); na += 1
        if not wo and n == 3:
            lt = k.newlabel()
            e("s_cmp_lg_u32 s9, 3")
            e("s_cbranch_scc1 %s" % lt)
            e("s_mov_b32 s18, s13"); e("s_mov_b32 s19, s15")
            keep = list(k.vm)
            touch_set(k, 'a', 1, 9, 10)
            k.vm = keep
            e("s_mov_b32 s13, s18"); e("s_mov_b32 s15, s19")
            k.label(lt)
        if not wo and na == NC:
            cnt = 0
            while nq < 12 and cnt < 3 and (nq < 8 or (10 + (nq - 8)//2) + 1 <= n - 1):
                issue_qkv_w(k, nq, 15, 10); nq += 1; cnt += 1
        for c in (2*n, 2*n+1):
            k.wait_vm(("a", c))
        e("s_barrier")
    assert na == NC
    e("s_barrier")
    if not wo:
        while nq < 12:
            issue_qkv_w(k, nq, 15, 10); nq += 1
    e("s_barrier")
    e("s_barrier")
    k.label(Ldone)
    k.vm = []; k.lg = []

def gen_main():
    k = PK(KNAME)
    e = k.e
    e("s_cmp_ge_u32 s2, 256")
    e("s_cbranch_scc1 L_main_end")
    e("s_load_dwordx4 s[64:67], s[0:1], 0")
    e("s_load_dwordx2 s[68:69], s[0:1], 56")
    e("s_load_dwordx4 s[72:75], s[0:1], 64")
    e("s_getreg_b32 s52, hwreg(HW_REG_XCC_ID)")
    e("v_lshrrev_b32 v1, 6, v0")
    e("v_and_b32 v2, 63, v0")
    e("v_and_b32 v3, 31, v0")
    e("v_readfirstlane_b32 s%d, v1" % S_WAVE)
    e("v_bfe_u32 v4, v0, 5, 1")
    e("v_lshlrev_b32 v5, 4, v2")
    e("v_add_u32 v6, 0x10000, v5")
    e("v_add_u32 v7, 0x20000, v5")
    e("v_lshlrev_b32 v%d, 2, v2" % V_L4)
    e("v_mov_b32 v%d, 1" % V_ONE)
    e("v_mov_b32 v%d, 0" % V_ZERO)
    e("s_and_b32 s%d, s2, 7" % S_G)
    e("s_lshr_b32 s%d, s2, 3" % S_J)
    e("s_and_b32 s52, s52, 15")
    e("s_add_u32 s52, s52, 1")
    e("s_mov_b32 s%d, 0" % S_MODE)
    e("s_mov_b32 s%d, 0" % S_GQ)
    e("s_mov_b32 s%d, 0" % S_LOFF)
    e("s_mov_b32 s%d, 0x%x" % (S_XIN, XT))
    e("s_lshl_b32 s%d, s%d, 13" % (S_FXIN, S_G))
    e("s_add_u32 s%d, s%d, 0x%x" % (S_FXIN, S_FXIN, FLAGS))
    e("s_add_u32 s%d, s%d, 2048" % (S_FLL, S_FXIN))
    e("s_mov_b32 s%d, 0" % S_LAYER)
    e("s_mov_b32 s%d, 0x%x" % (S_STIN, STATS))
    e("s_mov_b32 s%d, 0" % S_STI)
    e("s_waitcnt lgkmcnt(0)")
    ws_srd(k, 74, 36)
    e("s_mov_b32 s40, s68"); e("s_mov_b32 s41, s69"); e("s_mov_b32 s42, %d" % (2048*512*2)); e("s_mov_b32 s43, 0x20000")
    e("s_mov_b32 s56, s66"); e("s_mov_b32 s57, s67"); e("s_mov_b32 s58, %d" % (512*1536*2)); e("s_mov_b32 s59, 0x20000")
    e("s_mov_b32 s60, s64"); e("s_mov_b32 s61, s65"); e("s_mov_b32 s62, %d" % (2048*512*2)); e("s_mov_b32 s63, 0x20000")
    e("s_mov_b32 s96, s72"); e("s_mov_b32 s97, s73"); e("s_mov_b32 s98, 256"); e("s_mov_b32 s99, 0x20000")
    k.stamp()
    e("s_mov_b32 s%d, 0" % S_NONCE)
    ln, lc = k.newlabel(), k.newlabel()
    e("s_cmp_lt_u32 s%d, 4" % S_WAVE)
    e("s_cbranch_scc1 %s" % ln)
    e("s_cmp_lg_u32 s%d, 7" % S_WAVE)
    e("s_cbranch_scc1 %s" % lc)
    e("s_lshl_b32 s13, s%d, 9" % S_G)
    e("s_lshr_b32 s14, s%d, 3" % S_J)
    e("s_lshl_b32 s14, s14, 7")
    e("s_and_b32 s15, s%d, 7" % S_J)
    e("s_lshl_b32 s15, s15, 2")
    e("s_add_u32 s14, s14, s15")
    e("s_add_u32 s14, s14, s13")
    e("s_add_u32 s14, s14, 0x%x" % CENW)
    e("v_mov_b32 v9, s52")
    e("s_mov_b64 exec, 1")
    e("buffer_store_dword v9, v%d, %s, s14 offen sc1" % (V_ZERO, SRD))
    e("s_mov_b64 exec, -1")
    k.label(lc)
    e("s_sub_u32 s9, s%d, 4" % S_WAVE)
    e("s_lshl_b32 s10, s9, 11")
    qkv_w_base(k, 15, 10)
    for q in range(12): issue_qkv_w(k, q, 15, 10)
    k.label(ln)
    k.label("L_layer")
    phase_rowgemm(k, "qkv"); k.stamp()
    phase_attn(k); k.stamp()
    phase_ldsgemm(k, "wo"); k.stamp()
    phase_rowgemm(k, "gateup"); k.stamp()
    phase_ldsgemm(k, "down"); k.stamp()
    e("s_add_u32 s%d, s%d, 1" % (S_LAYER, S_LAYER))
    e("s_add_u32 s%d, s%d, 0x%x" % (S_LOFF, S_LOFF, LSTR))
    e("s_add_u32 s%d, s%d, %d" % (S_FLL, S_FLL, FL_LSTR))
    e("s_add_u32 s%d, s%d, 1024" % (S_FXIN, S_FXIN))
    e("s_cmp_lt_u32 s%d, 2" % S_LAYER)
    e("s_cbranch_scc1 L_layer")
    if STAMP:
        e("s_waitcnt vmcnt(0)")
        k.stamp()
        e("s_lshl_b32 s13, s2, 3")
        e("s_add_u32 s13, s13, s%d" % S_WAVE)
        e("s_lshl_b32 s13, s13, 8")
        e("s_add_u32 s13, s13, 0x%x" % STAMPS)
        e("buffer_store_dword v0, v%d, %s, s13 offen" % (V_L4, SRD))
    k.label("L_main_end")
    e("s_endpgm")
    return k.text(128, 128)

def main(out_path):
    import gen_prep2
    ptxt, nprep = gen_prep2.gen_prep(sys.modules[__name__])
    txt = HEADER
    txt += "; @launch kernel=prep_kernel grid=(%d,1,1) block=(64,1,1) lds=16384\n" % nprep
    txt += "; @launch kernel=%s grid=(256,1,1) block=(512,1,1) lds=163840\n" % KNAME
    txt += '.amdgcn_target "amdgcn-amd-amdhsa--gfx950"\n'
    txt += ptxt + gen_main()
    open(out_path, "w").write(txt)

if __name__ == "__main__":
    main(sys.argv[1] if len(sys.argv) > 1 else "p.s")
```

```python
import sys, struct, os
import gen
from gen import Kern, f32bits, ws_srd, ONES_BF16, LOG2E, QSCALE, NEGBIG, stats_reduce_ops, HEADER

KNAME = "main_kernel"
STAMP = int(os.environ.get('STAMP', '0'))
FORCE_SLOW = int(os.environ.get('FORCE_SLOW', '0'))
FINE = int(os.environ.get('FINE', '0'))
NPRE_X = int(os.environ.get('NPRE_X', '16'))
GU_LA = int(os.environ.get('GU_LA', '3'))
KVFLAG_AT = int(os.environ.get('KVFLAG_AT', '92'))
WO_F   = 0x000000
WGU_F  = 0x080000
WD_F   = 0x400000
CS_GU  = 0x5C0000
CS_DUM = 0x5DC000
FLAGS  = 0x5F0000
CENW   = 0x5E2000
PDW    = 0x5E0000
XT     = 0x0800000
STATS  = 0x1000000
LSTR   = 0x1100000
KF     = 0x1200000
VF     = 0x1400000
KH     = 0x1600000
VH     = 0x1800000
OT     = 0x1A00000
HT     = 0x1C00000
WQKV_F = 0x3400000
CS_QKV = WQKV_F + 0x180000
STAMPS = 0x6000000
H_TMAJOR = True
FL_KV, FL_KVH, FL_O, FL_H = 0, 512, 1024, 2048
FL_LSTR = 2560
FLAGS_BYTES = 0x20000
ZBASE = 0x5E0000

S_WAVE, S_G, S_J = 3, 4, 5
S_MODE, S_LOFF, S_XIN, S_FLL, S_LAYER, S_STIN, S_FXIN, S_STI = 44, 45, 46, 47, 48, 49, 50, 51
S_NONCE, S_GQ = 54, 55
SRD = "s[36:39]"
SRD_OUT = "s[40:43]"
SRD_WQ = "s[56:59]"
SRD_X = "s[60:63]"
SRD_DBG = "s[96:99]"
V_L4, V_ONE, V_ZERO = 125, 126, 127

a_ = list(range(10)); w_ = list(range(10, 20))
QMAP = [a_[8], a_[9], w_[0], w_[1], w_[2], w_[3], w_[8], w_[9], a_[0], a_[1], a_[2], a_[3]]
HB = [a_[4]*8192, w_[4]*8192]
EXCH = a_[7]*8192
CSX = w_[7]*8192
QX = w_[7]*8192 + 4096 - 131072
WOA = [a_[4], a_[5], a_[6], a_[7], w_[4], w_[5], w_[6], w_[7]]
GU_PRE = 12
GUR = list(QMAP)
DN_A = [a_[4], a_[5], a_[6], a_[7], w_[4], w_[5], w_[6], w_[7], a_[0], a_[1], a_[2], a_[3]]
RED = a_[4]*8192

DN_PRE = int(os.environ.get('DN_PRE', '30'))
DW_PER_STEP = (DN_PRE + 3) // 4
def dn_wreg(i):
    if i >= 42: i -= 42
    return "a[%d:%d]" % (4*i, 4*i+3) if i < 32 else "v[%d:%d]" % (72 + 4*(i-32), 75 + 4*(i-32))

class PK(Kern):
    def stamp(self):
        if not STAMP: return
        self.e("s_memrealtime s[100:101]" if STAMP == 1 else "s_memtime s[100:101]")
        self.e("s_waitcnt lgkmcnt(0)")
        self.lg = []
        self.e("s_mov_b32 m0, s%d" % S_STI)
        self.e("s_nop 0")
        self.e("v_writelane_b32 v0, s100, m0")
        self.e("s_add_u32 s%d, s%d, 1" % (S_STI, S_STI))

def stores(k, inss, tag=None):
    la, lb = k.newlabel(), k.newlabel()
    k.e("s_cmp_eq_u32 s%d, 1" % S_MODE)
    k.e("s_cbranch_scc1 %s" % la)
    for ins in inss: k.e(ins + " sc1")
    k.e("s_branch %s" % lb)
    k.label(la)
    for ins in inss: k.e(ins)
    k.label(lb)
    for ins in inss: k.vm.append(tag)

SPIN_LIMIT = 400000
DEFER = int(os.environ.get('DEFER', '0'))
GSLEEP = int(os.environ.get('GSLEEP', '12'))
def set_exec(k, nlanes):
    if nlanes >= 64: return
    assert nlanes <= 32
    k.e("s_mov_b32 exec_lo, 0x%x" % ((1 << nlanes) - 1))
    k.e("s_mov_b32 exec_hi, 0")

def spin(k, load, test, sleep=0):
    lp, ld = k.newlabel(), k.newlabel()
    k.e("s_mov_b32 s53, 0")
    k.label(lp)
    k.e(load)
    k.e("s_add_u32 s53, s53, 1")
    k.e("s_waitcnt vmcnt(0)")
    for t in test: k.e(t)
    k.e("s_cbranch_vccz %s" % ld)
    if sleep: k.e("s_sleep %d" % sleep)
    k.e("s_cmp_lt_u32 s53, %d" % SPIN_LIMIT)
    k.e("s_cbranch_scc1 %s" % lp)
    k.label(ld)

def poll(k, s_addr, nlanes, vtmp, val=1):
    set_exec(k, nlanes)
    k.e("s_add_u32 s31, s%d, %d" % (S_NONCE, val))
    spin(k, "buffer_load_dword v%d, v%d, %s, s%d offen sc1" % (vtmp, V_L4, SRD, s_addr),
         ["v_subrev_u32 v%d, s31, v%d" % (vtmp, vtmp), "v_cmp_lt_u32 vcc, 15, v%d" % vtmp])
    if nlanes < 64: k.e("s_mov_b64 exec, -1")
    k.vm = []

def flag_val(k, vdst, val):
    k.e("s_add_u32 s31, s%d, %d" % (S_NONCE, val))
    k.e("v_mov_b32 v%d, s31" % vdst)

def flag_store(k, s_addr, v_val=V_ONE, extra_sc1=None):
    k.e("s_mov_b64 exec, 1")
    if extra_sc1 is not None:
        k.vmem("buffer_store_dword v%d, v%d, %s, s%d offen sc1" % (v_val, V_ZERO, SRD, extra_sc1), "flag")
    stores(k, ["buffer_store_dword v%d, v%d, %s, s%d offen" % (v_val, V_ZERO, SRD, s_addr)], "flag")
    k.e("s_mov_b64 exec, -1")

def census_check(k, vt, vt2):
    e = k.e
    lskip = k.newlabel()
    e("s_cmp_lg_u32 s%d, 0" % S_LAYER)
    e("s_cbranch_scc1 %s" % lskip)
    e("s_lshl_b32 s13, s%d, 9" % S_G)
    e("s_add_u32 s13, s13, 0x%x" % CENW)
    e("v_lshrrev_b32 v%d, 3, v2" % vt2)
    e("v_lshlrev_b32 v%d, 7, v%d" % (vt2, vt2))
    e("v_and_b32 v%d, 7, v2" % vt)
    e("v_lshl_add_u32 v%d, v%d, 2, v%d" % (vt2, vt, vt2))
    set_exec(k, 32)
    spin(k, "buffer_load_dword v%d, v%d, %s, s13 offen sc1" % (vt, vt2, SRD), ["v_cmp_eq_u32 vcc, 0, v%d" % vt])
    e("v_cmp_ne_u32 vcc, s52, v%d" % vt)
    e("s_mov_b64 exec, -1")
    e("s_cmp_eq_u64 vcc, 0")
    e("s_cselect_b32 s%d, %d, 0" % (S_MODE, 0 if FORCE_SLOW else 1))
    k.label(lskip)

def prep_wait(k, vt):
    e = k.e
    lskip = k.newlabel()
    e("s_cmp_lg_u32 s%d, 0" % S_LAYER)
    e("s_cbranch_scc1 %s" % lskip)
    e("v_lshrrev_b32 v%d, 1, v2" % (vt+4))
    e("v_lshlrev_b32 v%d, 7, v%d" % (vt+4, vt+4))
    e("v_and_b32 v%d, 1, v2" % vt)
    e("v_lshl_add_u32 v%d, v%d, 4, v%d" % (vt+4, vt, vt+4))
    e("s_and_b32 s13, s%d, 1" % S_WAVE)
    e("s_lshl_b32 s13, s13, 12")
    e("s_add_u32 s13, s13, 0x%x" % PDW)
    e("s_add_u32 s31, s%d, 16" % S_NONCE)
    t = []
    for q in range(4): t.append("v_subrev_u32 v%d, s31, v%d" % (vt+q, vt+q))
    t += ["v_max_u32 v%d, v%d, v%d" % (vt, vt, vt+1), "v_max_u32 v%d, v%d, v%d" % (vt+2, vt+2, vt+3), "v_max_u32 v%d, v%d, v%d" % (vt, vt, vt+2),
          "v_cmp_lt_u32 vcc, 15, v%d" % vt]
    spin(k, "buffer_load_dwordx4 v[%d:%d], v%d, %s, s13 offen sc1" % (vt, vt+3, vt+4, SRD), t, sleep=2)
    k.label(lskip)

TOUCH = int(os.environ.get('TOUCH', '0'))
PT = int(os.environ.get('PT', '1'))
INPLACE = 1
HOFF = int(os.environ.get('HOFF', '0'))
PTH = int(os.environ.get('PTH', '0'))
EARLYA = int(os.environ.get('EARLYA', '1'))
NA0 = int(os.environ.get('NA0', '6'))
HPT = int(os.environ.get('HPT', '1'))
HPT0 = int(os.environ.get('HPT0', '5'))
PREPT = int(os.environ.get('PREPT', '0'))
DUALKV = int(os.environ.get('DUALKV', '0'))
PT0 = int(os.environ.get('PT0', '0'))
PTQ = 0
PTKV = int(os.environ.get('PTKV', '0'))
LATEDEF = int(os.environ.get('LATEDEF', '1'))
SPLITFIN = int(os.environ.get('SPLITFIN', '1'))
def touch_set(k, which, nxt, vaddr, vdst):
    if not TOUCH: return
    e = k.e
    e("v_lshlrev_b32 v%d, 7, v2" % vaddr)
    e("s_lshl_b32 s13, s%d, 5" % S_G)
    e("s_add_u32 s13, s13, s%d" % S_J)
    def t(sreg):
        k.vmem("buffer_load_dword v%d, v%d, %s, s%d offen sc1" % (vdst, vaddr, SRD, sreg), "touch")
    lo = LSTR*nxt; xo = 0x400000*nxt; so = 0x100000*nxt
    if which == 'a':
        e("s_lshl_b32 s14, s%d, 16" % S_J); e("s_lshl_b32 s15, s%d, 13" % S_G); e("s_add_u32 s14, s14, s15"); e("s_add_u32 s14, s14, s%d" % S_LOFF)
        e("s_add_u32 s15, s14, 0x%x" % (KF + lo)); t(15)
        e("s_add_u32 s15, s14, 0x%x" % (VF + lo)); t(15)
        e("s_lshl_b32 s14, s13, 13")
        e("s_add_u32 s15, s14, s%d" % S_LOFF); e("s_add_u32 s15, s15, 0x%x" % (OT + lo)); t(15)
        e("s_add_u32 s15, s14, s%d" % S_XIN); e("s_add_u32 s15, s15, 0x%x" % (0x200000 + xo)); t(15)
        e("s_and_b32 s14, s%d, 7" % S_J); e("s_lshl_b32 s14, s14, 13"); e("s_lshl_b32 s15, s%d, 16" % S_G); e("s_add_u32 s14, s14, s15")
        e("s_add_u32 s15, s14, s%d" % S_STIN); e("s_add_u32 s15, s15, 0x%x" % (0x80000 + so)); t(15)
    else:
        e("s_mul_i32 s14, s13, %d" % (28*1024)); e("s_add_u32 s14, s14, s%d" % S_LOFF); e("s_add_u32 s14, s14, 0x%x" % (HT + lo))
        for q in range(4):
            e("s_add_u32 s15, s14, %d" % min(q*8192, 20*1024)); t(15)
        e("s_lshl_b32 s14, s13, 13")
        e("s_add_u32 s15, s14, s%d" % S_XIN); e("s_add_u32 s15, s15, 0x%x" % (0x400000 + xo)); t(15)
        e("s_and_b32 s14, s%d, 7" % S_J); e("s_lshl_b32 s14, s14, 13"); e("s_lshl_b32 s15, s%d, 16" % S_G); e("s_add_u32 s14, s14, s15")
        e("s_add_u32 s15, s14, s%d" % S_STIN); e("s_add_u32 s15, s15, 0x%x" % (0x100000 + so)); t(15)

def lds_addr(a):
    return 5 + a // 65536, a % 65536

QKV_ORDER = []
for c in range(4): QKV_ORDER += [(1, c), (2, c)]
for c in range(4): QKV_ORDER.append((0, c))
GU_ORDER = []
for c in range(4): GU_ORDER += [(0, c), (1, c)]
for t in range(2, 7):
    for c in range(4): GU_ORDER.append((t, c))

def qkv_w_base(k, s_dst, s_lw2k):
    k.e("s_lshr_b32 s%d, s%d, 1" % (s_dst, S_J))
    k.e("s_mul_i32 s%d, s%d, %d" % (s_dst, s_dst, 3*32768))
    k.e("s_add_u32 s%d, s%d, s%d" % (s_dst, s_dst, s_lw2k))
    k.e("s_add_u32 s%d, s%d, 0x%x" % (s_dst, s_dst, WQKV_F))
    k.e("s_add_u32 s%d, s%d, s%d" % (s_dst, s_dst, S_GQ))

def issue_qkv_w(k, ci, s_base, s_lw2k):
    t, c = QKV_ORDER[ci]
    k.e("s_add_u32 m0, s%d, %d" % (s_lw2k, QMAP[ci]*8192))
    k.e("s_add_u32 s14, s%d, %d" % (s_base, t*32768 + c*8192))
    k.vmem("buffer_load_dwordx4 v5, %s, s14 offen lds" % SRD, ("w", ci))
    k.vmem("buffer_load_dwordx4 v5, %s, s14 offen offset:1024 lds" % SRD, ("w", ci))

def gu_math(acc, pk, tm, SC1, VAR):
    ops = []
    for r in range(8):
        ops.append("v_mul_f32 v%d, v%d, v%d" % (tm+r, SC1, acc+r))
    for r in range(8):
        ops.append("v_exp_f32 v%d, v%d" % (tm+r, tm+r))
        ops.append("v_mul_f32 v%d, v%d, v%d" % (acc+r, acc+r, acc+8+r))
    for r in range(8):
        ops.append("v_fma_f32 v%d, v%d, v%d, v%d" % (tm+r, tm+r, VAR, VAR))
    for r in range(8):
        ops.append("v_rcp_f32 v%d, v%d" % (tm+r, tm+r))
    ops.append("s_nop 0")
    for r in range(8):
        ops.append("v_mul_f32 v%d, v%d, v%d" % (acc+r, acc+r, tm+r))
        if r % 2 == 1:
            ops.append("v_cvt_pk_bf16_f32 v%d, v%d, v%d" % (pk + r//2, acc+r-1, acc+r))
    return ops

def tr_addr(k, vdst, vtmp, rowstride_shift):
    e = k.e
    e("v_bfe_u32 v%d, v2, 2, 2" % vdst)
    e("v_lshl_add_u32 v%d, v4, 2, v%d" % (vdst, vdst))
    e("v_lshlrev_b32 v%d, %d, v%d" % (vdst, rowstride_shift, vdst))
    e("v_bfe_u32 v%d, v2, 4, 1" % vtmp)
    e("v_lshl_add_u32 v%d, v%d, 5, v%d" % (vdst, vtmp, vdst))
    e("v_and_b32 v%d, 3, v2" % vtmp)
    e("v_lshl_add_u32 v%d, v%d, 3, v%d" % (vdst, vtmp, vdst))

def prep_unit_issue(k, lds_base_sgpr):
    e = k.e
    ln1, ln2, ln3, lgo, lgu, lnone = [k.newlabel() for _ in range(6)]
    e("s_mov_b32 s30, 0")
    e("s_cmp_ge_u32 s28, 464")
    e("s_cbranch_scc1 %s" % lnone)
    e("s_mov_b32 s30, 1")
    e("s_load_dwordx16 s[64:79], s[0:1], 0")
    e("s_mov_b32 s27, 0x20000")
    e("s_mov_b32 s87, 256"); e("s_mov_b32 s88, 0"); e("s_mov_b32 s90, 128"); e("s_mov_b32 s93, 0")
    e("s_waitcnt lgkmcnt(0)")
    e("s_cmp_lt_u32 s28, 368")
    e("s_cbranch_scc1 %s" % ln1)
    e("s_mov_b32 s24, s66"); e("s_mov_b32 s25, s67"); e("s_mov_b32 s26, %d" % (512*1536*2)); e("s_mov_b32 s84, 3072")
    e("s_sub_u32 s29, s28, 368")
    e("s_lshr_b32 s85, s29, 2"); e("s_and_b32 s92, s29, 3")
    e("s_lshr_b32 s29, s85, 3")
    e("s_and_b32 s31, s85, 7")
    e("s_mul_i32 s31, s31, 6")
    e("s_add_u32 s31, s31, s29")
    e("s_lshl_b32 s86, s31, 15"); e("s_add_u32 s86, s86, 0x%x" % WQKV_F); e("s_add_u32 s86, s86, s%d" % S_GQ); e("s_mov_b32 s91, %d" % (3*32768))
    e("s_lshl_b32 s89, s31, 10"); e("s_add_u32 s89, s89, 0x%x" % CS_QKV); e("s_add_u32 s89, s89, s%d" % S_GQ); e("s_mov_b32 s94, 3072")
    e("s_branch %s" % lgo)
    k.label(ln1)
    e("s_cmp_lt_u32 s28, 224")
    e("s_cbranch_scc0 %s" % ln2)
    e("s_mov_b32 s26, %d" % (512*1792*2)); e("s_mov_b32 s84, 3584")
    e("s_mov_b32 s87, 32768"); e("s_mov_b32 s90, 1024")
    e("s_mov_b32 s29, s28")
    e("s_mov_b32 s24, s72"); e("s_mov_b32 s25, s73")
    e("s_cmp_lt_u32 s28, 112")
    e("s_cbranch_scc1 %s" % lgu)
    e("s_sub_u32 s29, s28, 112")
    e("s_mov_b32 s24, s74"); e("s_mov_b32 s25, s75"); e("s_mov_b32 s88, 256")
    k.label(lgu)
    e("s_lshr_b32 s85, s29, 2"); e("s_and_b32 s92, s29, 3")
    e("s_lshl_b32 s86, s85, 17"); e("s_add_u32 s86, s86, 0x%x" % WGU_F); e("s_mov_b32 s91, 65536")
    e("s_lshl_b32 s89, s85, 12"); e("s_add_u32 s89, s89, 0x%x" % CS_GU); e("s_mov_b32 s94, 2048")
    e("s_branch %s" % lgo)
    k.label(ln2)
    e("s_mov_b32 s84, 1024"); e("s_mov_b32 s89, 0x%x" % CS_DUM); e("s_mov_b32 s94, 1024")
    e("s_cmp_lt_u32 s28, 256")
    e("s_cbranch_scc0 %s" % ln3)
    e("s_mov_b32 s24, s68"); e("s_mov_b32 s25, s69"); e("s_mov_b32 s26, %d" % (512*512*2))
    e("s_sub_u32 s29, s28, 224")
    e("s_lshr_b32 s85, s29, 2"); e("s_and_b32 s92, s29, 3")
    e("s_lshl_b32 s86, s85, 16"); e("s_add_u32 s86, s86, 0x%x" % WO_F); e("s_mov_b32 s91, 32768")
    e("s_branch %s" % lgo)
    k.label(ln3)
    e("s_mov_b32 s24, s76"); e("s_mov_b32 s25, s77"); e("s_mov_b32 s26, %d" % (1792*512*2))
    e("s_sub_u32 s29, s28, 256")
    e("s_and_b32 s85, s29, 7"); e("s_lshr_b32 s92, s29, 3"); e("s_mov_b32 s93, 1")
    e("s_mul_i32 s86, s85, %d" % (2*112*1024)); e("s_add_u32 s86, s86, 0x%x" % WD_F); e("s_mov_b32 s91, %d" % (112*1024))
    k.label(lgo)
    e("v_lshrrev_b32 v9, 3, v2")
    e("v_mul_lo_u32 v9, v9, s84")
    e("v_and_b32 v8, 7, v2")
    e("v_lshl_add_u32 v9, v8, 4, v9")
    e("s_lshl_b32 s29, s92, 7"); e("s_mul_i32 s29, s29, s84")
    e("s_lshl_b32 s28, s85, 7"); e("s_add_u32 s29, s29, s28")
    e("s_lshl_b32 s28, s84, 3")
    for i in range(16):
        e("s_add_u32 m0, s%d, %d" % (lds_base_sgpr, i*1024))
        if i: e("s_add_u32 s29, s29, s28")
        else: e("s_nop 0")
        e("buffer_load_dwordx4 v9, s[24:27], s29 offen lds")
    k.label(lnone)

def prep_unit_finish(k, lds_base_sgpr, local=False, part=0):
    e = k.e
    lnone = k.newlabel()
    e("s_cmp_eq_u32 s30, 0")
    e("s_cbranch_scc1 %s" % lnone)
    B = 48
    if part in (0, 1):
        tr_addr(k, 8, 9, 7)
        e("v_add_u32 v8, s%d, v8" % lds_base_sgpr)
        for ks in range(8):
            for hh in range(2):
                b = B + 8*ks + 4*hh
                e("ds_read_b64_tr_b16 v[%d:%d], v8 offset:%d" % (b, b+1, ks*2048 + hh*64))
                e("ds_read_b64_tr_b16 v[%d:%d], v8 offset:%d" % (b+2, b+3, ks*2048 + 1024 + hh*64))
            if ks % 2 == 1: e("s_waitcnt lgkmcnt(0)")
    if part == 1:
        k.label(lnone)
        return
    e("v_lshrrev_b32 v9, 4, v3")
    e("v_and_b32 v8, 15, v3")
    e("v_lshlrev_b32 v8, 4, v8")
    e("v_mul_lo_u32 v10, v9, s87")
    e("v_add_u32 v10, v10, v8")
    e("v_lshl_add_u32 v10, v4, 9, v10")
    e("v_add_u32 v10, s88, v10")
    e("v_mul_lo_u32 v11, v9, s90")
    e("v_lshrrev_b32 v8, 1, v8")
    e("v_add_u32 v11, v11, v8")
    e("s_and_b32 s28, s92, 3"); e("s_lshl_b32 s28, s28, 8")
    e("s_lshr_b32 s29, s88, 1")
    e("s_add_u32 s28, s28, s29"); e("s_add_u32 s28, s28, s89")
    e("v_add_u32 v11, s28, v11")
    e("v_mov_b32 v12, 0"); e("v_mov_b32 v13, 0")
    e("s_mov_b32 s95, 0x%x" % ONES_BF16)
    for ks in range(8):
        e("s_lshl_b32 s28, s92, 3")
        e("s_add_u32 s28, s28, %d" % ks)
        e("s_mul_i32 s29, s28, 9363")
        e("s_lshr_b32 s29, s29, 16")
        e("s_mul_i32 s31, s29, 7")
        e("s_sub_u32 s31, s28, s31")
        e("s_lshl_b32 s31, s31, 4")
        e("s_add_u32 s31, s31, s29")
        e("s_cmp_eq_u32 s93, 1")
        e("s_cselect_b32 s28, s31, s28")
        e("s_lshl_b32 s28, s28, 10")
        e("s_add_u32 s28, s28, s86")
        e("s_add_u32 s29, s28, s91")
        if local:
            stores(k, ["buffer_store_dwordx4 v[%d:%d], v10, %s, s%d offen" % (B+8*ks+4*hh, B+8*ks+4*hh+3, SRD, 28+hh) for hh in range(2)])
        for hh in range(2):
            b = B + 8*ks + 4*hh
            if not local: e("buffer_store_dwordx4 v[%d:%d], v10, %s, s%d offen sc1" % (b, b+3, SRD, 28+hh))
            for j in range(4):
                e("v_dot2_f32_bf16 v%d, v%d, s95, v%d" % (12+hh, b+j, 12+hh))
    e("s_cmp_eq_u32 s89, 0x%x" % CS_DUM)
    e("s_cbranch_scc1 %s" % lnone)
    e("s_nop 2")
    e("v_mov_b32 v14, v12"); e("v_mov_b32 v15, v13")
    e("s_nop 1")
    e("v_permlane32_swap_b32 v12, v14"); e("v_permlane32_swap_b32 v13, v15")
    e("s_nop 1")
    e("v_add_f32 v12, v12, v14"); e("v_add_f32 v13, v13, v15")
    for hh in range(2):
        c = 12 + hh
        e("v_cvt_pk_bf16_f32 v14, v%d, v%d" % (c, c))
        e("v_lshlrev_b32 v14, 16, v14")
        e("v_sub_f32 v14, v%d, v14" % c)
        e("v_cvt_pk_bf16_f32 v%d, v%d, v14" % (112+2*hh, c))
        e("v_mov_b32 v%d, v%d" % (113+2*hh, 112+2*hh))
    e("s_mov_b32 exec_hi, 0")
    if local:
        stores(k, ["buffer_store_dwordx2 v[112:113], v11, %s, 0 offen" % SRD, "buffer_store_dwordx2 v[114:115], v11, %s, s94 offen" % SRD])
    else:
        e("buffer_store_dwordx2 v[112:113], v11, %s, 0 offen sc1" % SRD)
        e("buffer_store_dwordx2 v[114:115], v11, %s, s94 offen sc1" % SRD)
    e("s_mov_b64 exec, -1")
    k.label(lnone)

def xpoll(k, qkv, vt):
    if not qkv:
        poll(k, 13, 16, vt); return
    lskip = k.newlabel()
    k.e("s_cmp_eq_u32 s%d, 0" % S_LAYER)
    k.e("s_cbranch_scc1 %s" % lskip)
    keep = list(k.vm)
    poll(k, 13, 16, vt)
    k.label(lskip)
    k.vm = keep

def phase_rowgemm(k, kind):
    e = k.e
    k.vm = []; k.lg = []
    qkv = kind == "qkv"
    NT = 3 if qkv else 7
    NCH = NT*4
    NSTEP = 6 if qkv else 4 + NT - 2
    cstep = lambda ci: ci // 2 if (ci < 8 or qkv) else 4 + (ci - 8) // 4
    chunks_of = lambda n: [ci for ci in range(NCH) if cstep(ci) == n]
    ORDER = QKV_ORDER if qkv else GU_ORDER
    P1 = (1, 2) if qkv else (0, 1)
    REST = [0] if qkv else [2, 3, 4, 5, 6]
    if qkv:
        wslot = list(QMAP); wfree = [0]*12
    else:
        wslot = list(GUR); wfree = [0]*12
        free_at = {s_: -1 for s_ in [a_[4], a_[5], a_[6], w_[4], w_[5], w_[6]] + ([] if HOFF else [w_[7]])}
        for ci in range(12): free_at[wslot[ci]] = cstep(ci) + 1
        for ci in range(12, NCH):
            cand = [x for x in free_at if not (EARLYA and ci >= 20 and x in DN_A[:NA0])]
            s_ = min(cand, key=lambda x: (free_at[x], x))
            wslot.append(s_); wfree.append(free_at[s_] + 1)
            free_at[s_] = cstep(ci) + 1
    Lload, Ldone = k.newlabel("RL"), k.newlabel("RD")
    e("s_and_b32 s6, s%d, 1" % S_J)
    e("s_lshl_b32 s8, s%d, 1" % S_G)
    e("s_add_u32 s21, s6, s8")
    e("s_lshr_b32 s7, s%d, 1" % S_J)
    e("s_and_b32 s9, s%d, 3" % S_WAVE)
    e("s_lshl_b32 s6, s21, 2")
    e("s_add_u32 s6, s6, s9")
    e("s_and_b32 s22, s6, 7")
    e("s_lshl_b32 s13, s22, 6")
    e("s_add_u32 s13, s13, s%d" % S_FXIN)
    if not qkv: e("s_add_u32 s13, s13, 512")
    e("s_cmp_ge_u32 s%d, 4" % S_WAVE)
    e("s_cbranch_scc1 %s" % Lload)
    WF = 16; CSF = 96; MFR = 8; PKR = 80; RR = 64
    SC1, VAR, T0, T1 = 12, 13, 14, 15
    RSTD = 1
    VE = 124
    e("s_lshl_b32 s14, s9, 11")
    e("s_add_u32 s14, s14, %d" % EXCH)
    e("v_add_u32 v%d, s14, v5" % VE)
    e("s_mul_i32 s12, s7, %d" % (NT*1024))
    e("s_add_u32 s12, s12, 0x%x" % (CS_QKV if qkv else CS_GU))
    if qkv: e("s_add_u32 s12, s12, s%d" % S_GQ)
    e("v_lshlrev_b32 v%d, 3, v3" % T1)
    e("v_lshl_add_u32 v%d, v4, 9, v%d" % (T1, T1))
    for t in range(NT):
        if t == 4: e("s_add_u32 s12, s12, 4096")
        for q in range(2):
            k.vmem("buffer_load_dwordx2 v[%d:%d], v%d, %s, s12 offen offset:%d" % (CSF+4*t+2*q, CSF+4*t+2*q+1, T1, SRD, (t % 4)*1024 + q*256), "cs")
    e("s_lshl_b32 s8, s6, 15")
    e("s_add_u32 s8, s8, s%d" % S_XIN)
    VPT = 119 if qkv else RSTD
    if qkv:
        e("s_lshl_b32 s15, s7, 17"); e("s_lshl_b32 s14, s6, 10"); e("s_add_u32 s15, s15, s14"); e("s_add_u32 s15, s15, s%d" % S_LOFF)
        if PT:
            e("v_and_b32 v%d, 7, v2" % VPT); e("v_lshlrev_b32 v%d, 7, v%d" % (VPT, VPT))
            e("v_bfe_u32 v%d, v2, 3, 1" % T0); e("v_lshl_add_u32 v%d, v%d, 16, v%d" % (VPT, T0, VPT))
            e("v_bfe_u32 v%d, v2, 4, 1" % T0); e("v_lshl_add_u32 v%d, v%d, 21, v%d" % (VPT, T0, VPT))
            assert VF - KF == 1 << 21 and KH - KF == 1 << 22 and VH - KH == 1 << 21
        def pt():
            e("s_add_u32 s14, s15, 0x%x" % KH)
            set_exec(k, 32)
            k.vmem("buffer_load_dword v120, v%d, %s, s14 offen sc1" % (VPT, SRD), "pt")
            e("s_mov_b64 exec, -1")
    else:
        e("s_mul_i32 s16, s6, 112")
        e("s_add_u32 s16, s16, s7")
        e("s_lshl_b32 s16, s16, 10")
        e("s_add_u32 s16, s16, 0x%x" % HT)
        if PT:
            e("v_and_b32 v%d, 7, v2" % VPT); e("v_lshlrev_b32 v%d, 7, v%d" % (VPT, VPT))
            e("v_lshrrev_b32 v%d, 3, v2" % T0); e("v_lshl_add_u32 v%d, v%d, 14, v%d" % (VPT, T0, VPT))
        def pt():
            e("s_mov_b32 exec_hi, 0x00ffffff")
            k.vmem("buffer_load_dword v%d, v%d, %s, s16 offen sc1" % (T1, VPT, SRD), "pt")
            e("s_mov_b64 exec, -1")
    xpoll(k, qkv, T0)
    def mk_x(s):
        def f():
            if s % 4 == 0 and s > 0: e("s_add_u32 s8, s8, 4096")
            k.vmem("buffer_load_dwordx4 a[%d:%d], v5, %s, s8 offen offset:%d sc1" % (4*s, 4*s+3, SRD, (s % 4)*1024), ("x", s))
        return f
    k.stamp()
    def pth():
        e("s_mul_i32 s16, s6, 112")
        e("s_add_u32 s16, s16, s7")
        e("s_lshl_b32 s16, s16, 10")
        e("s_add_u32 s16, s16, 0x%x" % HT)
        e("v_and_b32 v119, 7, v2"); e("v_lshlrev_b32 v119, 7, v119")
        e("v_lshrrev_b32 v120, 3, v2"); e("v_lshl_add_u32 v119, v120, 14, v119")
        e("s_mov_b32 exec_hi, 0x00ffffff")
        k.vmem("buffer_load_dword v120, v119, %s, s16 offen sc1" % SRD, "pt")
        e("s_mov_b64 exec, -1")
    loads = [mk_x(s) for s in range(32)] + ([pt] if PTKV and qkv else []) + ([pth] if PTH and qkv else [])
    for f in loads[:NPRE_X]: f()
    loads = loads[NPRE_X:]
    sched = []
    for s in range(32):
        sched.append((P1[0], s)); sched.append((P1[1], s))
    for t in REST:
        for s in range(32): sched.append((t, s))
    cidx = {tc: i for i, tc in enumerate(ORDER)}
    PF = 3
    total = len(sched)
    side = []
    if qkv: ACCM = {1: 32, 2: 48, 0: 32}
    if qkv: ACCM = {1: 32, 2: 48, 0: 96+12-12+0}
    if qkv:
        ACCM = {1: 32, 2: 48, 0: 64}
        RR = 80; PKR = 16+16+0
    else:
        ACCM = {t: [32, 48, 64][t % 3] for t in range(7)}
    def rd(g):
        t, s = sched[g]
        if (g % 16 == 0 and (g <= 64 or qkv)) or g % 32 == 0:
            n = g // 16 if (g <= 64 or qkv) else 4 + (g - 64) // 32
            k.wait_lg_all()
            e("s_barrier")
            if n == 4:
                k.lds("ds_read_b128 v[%d:%d], v%d" % (MFR, MFR+3, VE), "ex")
                k.lds("ds_read_b64 v[%d:%d], v%d offset:1024" % (SC1, VAR, VE), "ex")
                if qkv:
                    k.lds("ds_read_b32 v%d, v%d offset:1032" % (RSTD, VE), "ex")
        ci = cidx[(t, s // 8)]
        ad = wslot[ci]*8192 + (s % 8)*1024
        b = WF + 4*(g % 4)
        va, off = lds_addr(ad)
        k.lds("ds_read_b128 v[%d:%d], v%d offset:%d" % (b, b+3, va, off), ("wf", g))
    def cost(x):
        if callable(x): return 2
        return 2 if x.startswith(("v_exp", "v_rcp", "v_rsq")) else 1
    def run_side(budget):
        while side and budget > 0:
            x = side.pop(0)
            budget -= cost(x)
            if callable(x): x()
            else: e(x)
    def epi_kv():
        ops = []
        aK, aV = ACCM[1], ACCM[2]
        def rr():
            e("s_lshl_b32 s14, s9, 11")
            e("s_add_u32 s14, s14, %d" % (EXCH + 1024 + 8))
            e("v_lshl_add_u32 v%d, v4, 6, s14" % T0)
            for r in range(16):
                row = (r & 3) + 8*(r >> 2)
                k.lds("ds_read_b32 v%d, v%d offset:%d" % (RR+r, T0, row*16), "rr")
        ops.append(rr)
        for r in range(16):
            ops.append("v_mul_f32 v%d, v%d, v%d" % (aK+r, RSTD, aK+r))
            if r % 2 == 1:
                ops.append("v_cvt_pk_bf16_f32 v%d, v%d, v%d" % (aK + r//2, aK+r-1, aK+r))
        def stk():
            e("s_add_u32 s13, s15, 0x%x" % KH)
            e("s_add_u32 s14, s13, 65536")
            k.vmem("buffer_store_dwordx4 v[%d:%d], v5, %s, s13 offen sc1" % (aK, aK+3, SRD), "st")
            k.vmem("buffer_store_dwordx4 v[%d:%d], v5, %s, s14 offen sc1" % (aK+4, aK+7, SRD), "st")
        ops.append(stk)
        ops.append(lambda: k.wait_lg("rr"))
        for r in range(16):
            ops.append("v_mul_f32 v%d, v%d, v%d" % (aV+r, RR+r, aV+r))
            if r % 2 == 1:
                ops.append("v_cvt_pk_bf16_f32 v%d, v%d, v%d" % (aV + r//2, aV+r-1, aV+r))
        ops += ["v_lshrrev_b32 v%d, 4, v3" % T0, "v_lshlrev_b32 v%d, 16, v%d" % (T0, T0), "v_and_b32 v%d, 15, v3" % T1,
                "v_lshl_add_u32 v%d, v%d, 4, v%d" % (T0, T1, T0), "v_lshl_add_u32 v%d, v4, 8, v%d" % (T0, T0)]
        def stv():
            e("s_add_u32 s13, s15, 0x%x" % VH)
            k.vmem("buffer_store_dwordx4 v[%d:%d], v%d, %s, s13 offen sc1" % (aV, aV+3, T0, SRD), "st")
            k.vmem("buffer_store_dwordx4 v[%d:%d], v%d, %s, s13 offen offset:512 sc1" % (aV+4, aV+7, T0, SRD), "st")
        def stl():
            e("s_add_u32 s13, s15, 0x%x" % KF)
            e("s_add_u32 s14, s13, 65536")
            e("s_add_u32 s16, s15, 0x%x" % VF)
            stores(k, ["buffer_store_dwordx4 v[%d:%d], v5, %s, s13 offen" % (aK, aK+3, SRD),
                       "buffer_store_dwordx4 v[%d:%d], v5, %s, s14 offen" % (aK+4, aK+7, SRD),
                       "buffer_store_dwordx4 v[%d:%d], v%d, %s, s16 offen" % (aV, aV+3, T0, SRD),
                       "buffer_store_dwordx4 v[%d:%d], v%d, %s, s16 offen offset:512" % (aV+4, aV+7, T0, SRD)], "st")
        def lw():
            e("s_lshl_b32 s13, s9, 10")
            e("v_add_u32 v%d, s13, v5" % T1)
            k.lds("ds_write_b128 v%d, v[%d:%d] offset:%d" % (T1, aK, aK+3, HB[0] + 8192), "kw")
            e("v_add_u32 v%d, 0x10000, v%d" % (T1, T1))
            k.lds("ds_write_b128 v%d, v[%d:%d] offset:%d" % (T1, aK+4, aK+7, HB[1] + 8192 - 65536), "kw")
            e("v_lshrrev_b32 v%d, 4, v3" % T1)
            e("s_mov_b32 s14, %d" % (HB[1] - HB[0]))
            e("v_mul_lo_u32 v%d, v%d, s14" % (T1, T1))
            e("v_and_b32 v%d, 0xffff, v%d" % (T0, T0))
            e("v_add_u32 v%d, v%d, v%d" % (T1, T1, T0))
            e("v_add_u32 v%d, s13, v%d" % (T1, T1))
            k.lds("ds_write_b128 v%d, v[%d:%d] offset:%d" % (T1, aV, aV+3, HB[0] + 12288 + 8192), "kw")
            k.lds("ds_write_b128 v%d, v[%d:%d] offset:%d" % (T1, aV+4, aV+7, HB[0] + 12288 + 8192 + 512), "kw")
        ops += [stv, stl, lw] if DUALKV else [stv, lw]
        return ops
    def kv_flags():
        e("s_lshl_b32 s13, s7, 5")
        e("s_lshl_b32 s14, s22, 2")
        e("s_add_u32 s13, s13, s14")
        e("s_add_u32 s13, s13, s%d" % S_FLL)
        e("s_add_u32 s14, s13, %d" % FL_KVH)
        k.wait_vm_all()
        if DUALKV:
            flag_store(k, 13, V_ONE, extra_sc1=14)
        else:
            e("s_mov_b64 exec, 1")
            k.vmem("buffer_store_dword v%d, v%d, %s, s14 offen sc1" % (V_ONE, V_ZERO, SRD), "flag")
            e("s_mov_b64 exec, -1")
    def epi_gu(t):
        pk = PKR + 4*(t % 2)
        ops = gu_math(ACCM[t], pk, PKR+8, SC1, VAR)
        def st():
            if t == 0:
                e("s_lshl_b32 s15, s22, 6")
                e("s_lshl_b32 s14, s7, 2")
                e("s_add_u32 s15, s15, s14")
                e("s_add_u32 s15, s15, s%d" % S_FLL)
                e("s_add_u32 s15, s15, %d" % FL_H)
                if HOFF:
                    e("s_lshl_b32 s14, s9, 10")
                    e("v_add_u32 v%d, s14, v7" % T1)
            else:
                e("s_add_u32 s16, s16, 16384")
                if t >= 2 and not HOFF:
                    k.wait_vm(("st", t-1))
                    flag_val(k, T0, t)
                    flag_store(k, 15, T0)
            if HOFF and t <= 4:
                if t == 2: k.lds("ds_write_b128 v%d, v[%d:%d]" % (VE, pk, pk+3), "hx")
                else: k.lds("ds_write_b128 v%d, v[%d:%d] offset:%d" % (T1, pk, pk+3, w_[7]*8192 - 131072 + (t % 3)*4096), "hx")
            else:
                stores(k, ["buffer_store_dwordx4 v[%d:%d], v5, %s, s16 offen" % (pk, pk+3, SRD)], ("st", t))
            if False:
                e("s_add_u32 s14, s16, 32768")
                set_exec(k, 8)
                k.vmem("buffer_load_dword v%d, v%d, %s, s14 offen sc1" % (T1, VPT, SRD), "pt")
                e("s_mov_b64 exec, -1")
        ops.append(st)
        return ops
    def mf(acc, wf, xf, c, t):
        if qkv and t == 2:
            e("v_mfma_f32_32x32x16_bf16 v[%d:%d], %s, %s, %s" % (acc, acc+15, xf, wf, c))
        else:
            e("v_mfma_f32_32x32x16_bf16 v[%d:%d], %s, %s, %s" % (acc, acc+15, wf, xf, c))
    def corr(t):
        acc = ACCM[t]
        mf(acc, "v[%d:%d]" % (CSF+4*t, CSF+4*t+3), "v[%d:%d]" % (MFR, MFR+3), "v[%d:%d]" % (acc, acc+15), t)
    for g in range(PF):
        rd(g)
    for g in range(total):
        t, s = sched[g]
        if g + PF < total: rd(g + PF)
        if g >= 64 and s == 3:
            if g < 96:
                side.extend(epi_kv() if qkv else epi_gu(0) + epi_gu(1))
            else:
                side.extend(epi_gu(t-1))
        if g < 64 and t == P1[0]: k.wait_vm(("x", s))
        k.wait_lg(("wf", g))
        acc = ACCM[t]
        mf(acc, "v[%d:%d]" % (WF+4*(g % 4), WF+4*(g % 4)+3), "a[%d:%d]" % (4*s, 4*s+3),
           "0" if s == 0 else "v[%d:%d]" % (acc, acc+15), t)
        if loads:
            loads.pop(0)()
        if qkv and g == 62: census_check(k, T0, T1)
        run_side(6 if qkv else (4 if g < 96 else 2))
        if qkv and g == KVFLAG_AT:
            run_side(1000)
            kv_flags()
        if g == 63:
            k.wait_lg("ex")
            corr(P1[0]); corr(P1[1])
            k.stamp()
        elif g > 63 and s == 31:
            run_side(1000)
            corr(t)
    if qkv:
        k.stamp()
        acc = ACCM[0]
        e("s_lshl_b32 s13, s9, 10")
        e("v_add_u32 v%d, s13, v7" % T1)
        e("s_nop 9")
        for r in range(16):
            e("v_mul_f32 v%d, v%d, v%d" % (acc+r, SC1, acc+r))
            if r % 2 == 1:
                e("v_cvt_pk_bf16_f32 v%d, v%d, v%d" % (acc + r//2, acc+r-1, acc+r))
        k.lds("ds_write_b128 v%d, v[%d:%d] offset:%d" % (T1, acc+4, acc+7, QX), "qw")
        for r in range(4):
            e("v_accvgpr_write_b32 a%d, v%d" % (r, acc+r))
        k.wait_lg_all()
    else:
        k.wait_lg_all()
        e("s_barrier")
        k.stamp()
        e("s_nop 9")
        side.extend(epi_gu(NT-1))
        run_side(1000)
        flag_val(k, T0, 7)
        k.wait_vm_all()
        flag_store(k, 15, T0)
    e("s_branch %s" % Ldone)
    k.label(Lload)
    k.vm = []; k.lg = []
    e("s_lshl_b32 s10, s9, 11")
    ST = 16; MEAN, RSTD, T0, T1, SC1, VAR, MFR = 8, 14, 10, 11, 12, 13, 116
    VE = 120
    e("s_add_u32 s14, s10, %d" % EXCH)
    e("v_add_u32 v%d, s14, v5" % VE)
    e("s_lshl_b32 s11, s6, 13")
    e("s_add_u32 s11, s11, s%d" % S_STIN)
    def stats_partials():
        for cq in range(8):
            if cq == 4: e("s_add_u32 s11, s11, 4096")
            k.vmem("buffer_load_dwordx4 v[%d:%d], v5, %s, s11 offen offset:%d sc1" % (ST+4*cq, ST+4*cq+3, SRD, (cq % 4)*1024), "stats")
    def stats_publish():
        for x in stats_reduce_ops(ST, MEAN, RSTD, T0, T1, VAR, MFR): e(x)
        e("v_mul_f32 v%d, 0x%x, v%d" % (SC1, f32bits(QSCALE if qkv else -LOG2E), RSTD))
        k.lds("ds_write_b128 v%d, v[%d:%d]" % (VE, MFR, MFR+3), "ex")
        k.lds("ds_write_b96 v%d, v[%d:%d] offset:1024" % (VE, SC1, RSTD), "ex")
    if qkv:
        xpoll(k, qkv, T0)
        stats_partials()
        for n in range(NSTEP):
            if n < 2: e("s_waitcnt vmcnt(%d)" % (24 - 4*(n+1) + 8))
            if n == 2:
                k.wait_vm("stats")
                stats_publish()
                k.wait_lg_all()
            if n == 4: census_check(k, T0, T1)
            e("s_barrier")
            if PTQ and n < 5:
                l6 = k.newlabel()
                e("s_cmp_lg_u32 s%d, 0" % S_LAYER)
                e("s_cbranch_scc1 %s" % l6)
                e("s_lshl_b32 s13, s%d, 5" % S_G)
                e("s_add_u32 s13, s13, s%d" % S_J)
                e("s_add_u32 s14, s10, %d" % (n*8192))
                e("s_mul_i32 s15, s13, %d" % (28*1024)); e("s_add_u32 s15, s15, s14"); e("s_add_u32 s15, s15, 0x%x" % HT)
                e("s_lshl_b32 s13, s13, 13"); e("s_add_u32 s13, s13, s14"); e("s_add_u32 s13, s13, 0x%x" % (OT - 14*2048))
                e("s_cmp_lt_u32 s14, %d" % (14*2048))
                e("s_cselect_b32 s15, s15, s13")
                e("s_cmp_ge_u32 s14, %d" % (18*2048))
                e("s_cbranch_scc1 %s" % l6)
                e("v_lshlrev_b32 v121, 7, v2")
                set_exec(k, 16)
                e("buffer_load_dword v122, v121, %s, s15 offen sc1" % SRD)
                e("s_mov_b64 exec, -1")
                k.label(l6)
        e("s_lshr_b32 s8, s9, 1")
        e("s_and_b32 s17, s9, 1")
        e("s_add_u32 s11, s21, s8")
        e("s_sub_i32 s11, s11, 2")
        e("s_mul_i32 s12, s17, %d" % (HB[1] - HB[0]))
        e("s_lshl_b32 s13, s8, 12")
        e("s_add_u32 s12, s12, s13")
        e("s_add_u32 s12, s12, %d" % HB[0])
        linv, lgo, lloc = k.newlabel(), k.newlabel(), k.newlabel()
        e("s_cmp_lt_i32 s11, 0")
        e("s_cbranch_scc1 %s" % linv)
        if DUALKV: e("s_mov_b32 s15, 0"); e("s_mov_b32 s16, 0")
        else: e("s_mov_b32 s15, 0x%x" % (KH - KF)); e("s_mov_b32 s16, %d" % FL_KVH)
        e("s_lshr_b32 s13, s11, 1")
        e("s_cmp_eq_u32 s13, s%d" % S_G)
        e("s_cbranch_scc1 %s" % lloc)
        e("s_mov_b32 s15, 0x%x" % (KH - KF)); e("s_mov_b32 s16, %d" % (FL_KVH - 8192))
        k.label(lloc)
        e("s_lshl_b32 s13, s7, 5")
        e("s_and_b32 s14, s11, 1")
        e("s_lshl_b32 s14, s14, 4")
        e("s_add_u32 s13, s13, s14")
        e("s_add_u32 s13, s13, s%d" % S_FLL)
        e("s_add_u32 s13, s13, s16")
        e("s_lshl_b32 s18, s7, 1"); e("s_add_u32 s17, s18, s17"); e("s_lshl_b32 s17, s17, 6")
        e("s_lshl_b32 s14, s11, 2"); e("s_add_u32 s17, s17, s14"); e("s_lshl_b32 s17, s17, 10")
        e("s_add_u32 s17, s17, s%d" % S_LOFF); e("s_add_u32 s17, s17, s15")
        e("s_add_u32 s18, s17, 0x%x" % VF)
        e("s_add_u32 s17, s17, 0x%x" % KF)
        poll(k, 13, 4, T0)
        e("s_mov_b32 m0, s12")
        e("s_nop 0")
        for q in range(4):
            e("buffer_load_dwordx4 v5, %s, s17 offen offset:%d sc1 lds" % (SRD, q*1024))
        e("s_add_u32 m0, s12, 12288")
        e("s_nop 0")
        for q in range(4):
            e("buffer_load_dwordx4 v5, %s, s18 offen offset:%d sc1 lds" % (SRD, q*1024))
        e("s_branch %s" % lgo)
        k.label(linv)
        e("s_mov_b32 m0, s12")
        e("s_nop 0")
        for q in range(4):
            e("buffer_load_dwordx4 v5, %s, 0 offen offset:%d lds" % (SRD_WQ, q*1024))
        e("s_add_u32 m0, s12, 12288")
        e("s_nop 0")
        for q in range(4):
            e("buffer_load_dwordx4 v5, %s, 0 offen offset:%d lds" % (SRD_WQ, q*1024))
        k.label(lgo)
    else:
        e("s_mul_i32 s19, s7, %d" % (NT*32768))
        e("s_add_u32 s19, s19, s10")
        e("s_add_u32 s19, s19, 0x%x" % WGU_F)
        poll(k, 13, 16, T0)
        stats_partials()
        def issue_w(ci):
            t, c = ORDER[ci]
            e("s_add_u32 m0, s10, %d" % (wslot[ci]*8192))
            e("s_add_u32 s14, s19, %d" % (t*32768 + c*8192))
            k.vmem("buffer_load_dwordx4 v5, %s, s14 offen lds" % SRD, ("w", ci))
            k.vmem("buffer_load_dwordx4 v5, %s, s14 offen offset:1024 lds" % SRD, ("w", ci))
        e("s_lshr_b32 s20, s%d, 2" % S_J)
        e("s_lshl_b32 s20, s20, 1")
        e("s_and_b32 s14, s9, 1")
        e("s_add_u32 s20, s20, s14")
        e("s_mul_i32 s20, s20, %d" % (112*1024))
        e("s_lshr_b32 s14, s9, 1")
        e("s_lshl_b32 s14, s14, 11")
        e("s_add_u32 s20, s20, s14")
        e("s_add_u32 s20, s20, 0x%x" % WD_F)
        ndw = 0
        nxt = GU_PRE
        if HPT:
            e("s_mul_i32 s16, s6, 112")
            e("s_add_u32 s16, s16, s7")
            e("s_lshl_b32 s16, s16, 10")
            e("s_add_u32 s16, s16, 0x%x" % HT)
            e("v_and_b32 v121, 7, v2"); e("v_lshlrev_b32 v121, 7, v121")
            e("v_lshrrev_b32 v122, 3, v2"); e("v_lshl_add_u32 v121, v122, 14, v121")
        if HOFF:
            e("s_mul_i32 s17, s6, 112")
            e("s_add_u32 s17, s17, s7")
            e("s_lshl_b32 s17, s17, 10")
            e("s_add_u32 s17, s17, 0x%x" % HT)
            e("s_lshl_b32 s18, s22, 6")
            e("s_lshl_b32 s14, s7, 2")
            e("s_add_u32 s18, s18, s14")
            e("s_add_u32 s18, s18, s%d" % S_FLL)
            e("s_add_u32 s18, s18, %d" % FL_H)
            e("s_lshl_b32 s14, s9, 10")
            e("v_add_u32 v123, s14, v7")
        def h_out(n):
            if not HOFF: return
            tiles = [0, 1] if n == 5 else ([n - 4] if 6 <= n <= 8 else [])
            if 6 <= n <= 8:
                done = n - 4
                k.wait_vm(("hst", done - 1))
                flag_val(k, T0, done)
                flag_store(k, 18, T0)
            for t in tiles:
                if t == 2: k.lds("ds_read_b128 v[%d:%d], v%d" % (48, 51, VE), ("hr", t))
                else: k.lds("ds_read_b128 v[%d:%d], v123 offset:%d" % (48+4*(t % 2), 51+4*(t % 2), w_[7]*8192 - 131072 + (t % 3)*4096), ("hr", t))
            for t in tiles:
                k.wait_lg(("hr", t))
                if t: e("s_add_u32 s17, s17, 16384")
                stores(k, ["buffer_store_dwordx4 v[%d:%d], v5, %s, s17 offen" % (48+4*(t % 2), 51+4*(t % 2), SRD)], ("hst", t))
        for n in range(NSTEP):
            if HPT and HPT0 <= n < HPT0 + 4:
                set_exec(k, 16 if n < HPT0 + 3 else 8)
                k.vmem("buffer_load_dword v122, v121, %s, s16 offen sc1" % SRD, "pt")
                e("s_mov_b64 exec, -1")
                e("s_add_u32 s16, s16, 32768")
            lim = {0: 11, 1: 11, 2: 11, 3: 13, 4: 15}.get(n, 1000)
            while nxt < NCH and nxt <= lim and wfree[nxt] <= n and cstep(nxt) <= n + 1:
                issue_w(nxt); nxt += 1
            if n >= 5:
                for _ in range(DW_PER_STEP):
                    if ndw < DN_PRE:
                        c, h = divmod(ndw, 2)
                        if h == 0: e("s_add_u32 s14, s20, %d" % (c*4096))
                        elif _ == 0: e("s_add_u32 s14, s20, %d" % (c*4096))
                        k.vmem("buffer_load_dwordx4 %s, v5, %s, s14 offen offset:%d" % (dn_wreg(ndw), SRD, h*1024), ("dw", ndw))
                        ndw += 1
            if n == 2:
                k.wait_vm("stats")
                stats_publish()
            for ci in chunks_of(n): k.wait_vm(("w", ci))
            k.wait_lg_all()
            e("s_barrier")
            h_out(n)
            if HOFF and n == NSTEP - 1:
                k.wait_vm(("hst", 4))
                flag_val(k, T0, 5)
                flag_store(k, 18, T0)
            if EARLYA and n == NSTEP - 1:
                assert all(free_at.get(x, 0) <= n for x in DN_A[:NA0]) and nxt == NCH
                e("s_and_b32 s13, s%d, 3" % S_J)
                e("s_lshl_b32 s14, s%d, 2" % S_G)
                e("s_add_u32 s14, s14, s13")
                e("s_lshl_b32 s13, s13, 7")
                e("s_add_u32 s13, s13, s%d" % S_FLL)
                e("s_add_u32 s13, s13, %d" % FL_H)
                e("s_lshl_b32 s14, s14, 1")
                e("s_lshr_b32 s15, s9, 1")
                e("s_add_u32 s14, s14, s15")
                e("s_mul_i32 s19, s14, %d" % (112*1024))
                e("s_and_b32 s14, s10, 2048")
                e("s_add_u32 s19, s19, s14"); e("s_add_u32 s19, s19, 0x%x" % HT)
                poll(k, 13, 32, T0, val=2)
                for c in range(NA0):
                    e("s_add_u32 m0, s10, %d" % (DN_A[c]*8192))
                    e("s_add_u32 s14, s19, %d" % (c*4096))
                    k.vmem("buffer_load_dwordx4 v5, %s, s14 offen sc1 lds" % SRD, ("a", c))
                    k.vmem("buffer_load_dwordx4 v5, %s, s14 offen offset:1024 sc1 lds" % SRD, ("a", c))
        assert nxt == NCH and ndw == DN_PRE
        e("s_barrier")
    k.label(Ldone)
    k.vm = []; k.lg = []

def phase_attn(k):
    e = k.e
    k.vm = []; k.lg = []
    e("s_and_b32 s6, s%d, 1" % S_J)
    e("s_lshl_b32 s8, s%d, 1" % S_G)
    e("s_add_u32 s6, s6, s8")
    e("s_lshl_b32 s6, s6, 2")
    e("s_and_b32 s8, s%d, 3" % S_WAVE)
    e("s_add_u32 s6, s6, s8")
    e("s_lshr_b32 s9, s%d, 2" % S_WAVE)
    e("s_and_b32 s7, s%d, 0xfe" % S_J)
    e("s_add_u32 s7, s7, s9")
    S = [8, 24]
    MF, MD, NM, NB = 40, 56, 72, 88
    P = [104, 112]
    M, T0, VK, VV = 120, 121, 122, 123
    AQ, AK, AV, AO = 0, 4, 40, 56
    e("v_lshlrev_b32 v%d, 2, v4" % M)
    e("v_sub_u32 v%d, v3, v%d" % (M, M))
    e("s_mov_b32 s13, 0x%x" % NEGBIG)
    e("v_mov_b32 v%d, s13" % T0)
    for r in range(16):
        a = (r & 3) + 8*(r >> 2)
        e("v_cmp_gt_i32 s[%d:%d], %d, v%d" % (64+2*r, 65+2*r, a, M))
    for r in range(16):
        e("v_cndmask_b32 v%d, v%d, 0, s[%d:%d]" % (MF+r, T0, 64+2*r, 65+2*r))
        e("v_cndmask_b32 v%d, 0, v%d, s[%d:%d]" % (MD+r, T0, 64+2*r, 65+2*r))
        e("v_mov_b32 v%d, v%d" % (NB+r, T0))
    e("v_cmp_eq_u32 s[64:65], 16, v3")
    e("v_cmp_eq_u32 s[66:67], 20, v3")
    e("s_mov_b32 s14, 0x%x" % ONES_BF16)
    e("v_mov_b32 v%d, s14" % T0)
    e("s_or_b64 s[64:65], s[64:65], s[66:67]")
    e("s_nop 0")
    e("v_cndmask_b32 v%d, 0, v%d, s[64:65]" % (T0, T0))
    for r in range(16):
        e("v_accvgpr_write_b32 a%d, v%d" % (AV+r, T0))
    e("s_mov_b32 s64, 0x0000ffff")
    e("s_mov_b32 s65, 0x0000ffff")
    e("s_mul_i32 s13, s9, %d" % (HB[1] - HB[0]))
    e("s_lshl_b32 s14, s8, 10")
    e("s_add_u32 s13, s13, s14")
    e("s_add_u32 s13, s13, %d" % HB[0])
    e("v_add_u32 v%d, s13, v5" % VK)
    e("v_and_b32 v%d, 15, v3" % VV)
    e("v_lshlrev_b32 v%d, 4, v%d" % (VV, VV))
    e("v_lshl_add_u32 v%d, v4, 8, v%d" % (VV, VV))
    e("v_add_u32 v%d, s13, v%d" % (VV, VV))
    e("v_add_u32 v%d, s14, v7" % M)
    k.stamp()
    e("s_waitcnt vmcnt(0)")
    if PT:
        e("s_lshl_b32 s13, s6, 5")
        e("s_add_u32 s13, s13, s7")
        e("s_lshl_b32 s13, s13, 10")
        e("s_add_u32 s13, s13, 0x%x" % OT)
        e("v_lshlrev_b32 v%d, 7, v2" % T0)
        set_exec(k, 8)
        e("buffer_load_dword v124, v%d, %s, s13 offen sc1" % (T0, SRD))
        e("s_mov_b64 exec, -1")
    e("s_barrier")
    k.stamp()
    lq = k.newlabel()
    e("s_cmp_lt_u32 s%d, 4" % S_WAVE)
    e("s_cbranch_scc1 %s" % lq)
    e("ds_read_b128 a[%d:%d], v%d offset:%d" % (AQ, AQ+3, M, QX))
    k.label(lq)
    for i in range(9):
        k.lds("ds_read_b128 a[%d:%d], v%d offset:%d" % (AK+4*i, AK+4*i+3, VK, i*1024), ("k", i))
    lt = k.newlabel()
    e("s_cmp_lg_u32 s%d, 0" % S_WAVE)
    e("s_cbranch_scc1 %s" % lt)
    touch_set(k, 'f', 0, T0, 124)
    k.label(lt)
    e("s_lshl_b32 s13, s%d, 10" % S_WAVE)
    e("s_lshr_b32 s19, s%d, 1" % S_J)
    e("s_mul_i32 s19, s19, %d" % (7*32768))
    e("s_add_u32 s19, s19, s13")
    e("s_add_u32 s19, s19, 0x%x" % WGU_F)
    pre = list(range(GU_PRE))
    def issue_pre():
        if not pre: return
        c = pre.pop(0)
        t, cc = GU_ORDER[c]
        e("s_add_u32 m0, s13, %d" % (GUR[c]*8192))
        e("s_add_u32 s14, s19, %d" % (t*32768 + cc*8192))
        k.vmem("buffer_load_dwordx4 v5, %s, s14 offen lds" % SRD, "pre")
    def rdv(i):
        b = AV + 8*(i % 2)
        e("s_mov_b64 exec, s[64:65]")
        k.lds("ds_read_b128 a[%d:%d], v%d offset:%d" % (b, b+3, VV, 12288 + i*1024), ("v", i))
        k.lds("ds_read_b128 a[%d:%d], v%d offset:%d" % (b+4, b+7, VV, 12288 + i*1024 + 512), ("v", i))
        e("s_mov_b64 exec, -1")
    def smfma(i, cval):
        d = S[i % 2]
        kf = "a[%d:%d]" % (AK+4*i, AK+4*i+3)
        q = "a[%d:%d]" % (AQ, AQ+3)
        if i < 8:
            la, lb = k.newlabel(), k.newlabel()
            e("s_cmp_lt_u32 s6, %d" % (8 - i))
            e("s_cbranch_scc1 %s" % la)
            e("v_mfma_f32_32x32x16_bf16 v[%d:%d], %s, %s, %s" % (d, d+15, kf, q, cval))
            e("s_branch %s" % lb)
            k.label(la)
            e("v_mfma_f32_32x32x16_bf16 v[%d:%d], %s, %s, v[%d:%d]" % (d, d+15, kf, q, NB, NB+15))
            k.label(lb)
        else:
            e("v_mfma_f32_32x32x16_bf16 v[%d:%d], %s, %s, %s" % (d, d+15, kf, q, cval))
    def c1(i):
        if i == 0: return "v[%d:%d]" % (MF, MF+15)
        if i == 8: return "v[%d:%d]" % (MD, MD+15)
        return "0"
    def c2(i):
        if i == 0: return "v[%d:%d]" % (MF, MF+15)
        if i == 8: return "v[%d:%d]" % (MD, MD+15)
        return "v[%d:%d]" % (NM, NM+15)
    k.wait_lg(("k", 0))
    smfma(0, c1(0))
    for i in range(9):
        if i + 1 < 9:
            k.wait_lg(("k", i+1))
            smfma(i+1, c1(i+1))
            if i == 0: e("s_nop 7")
        else:
            e("s_nop 3")
        d = S[i % 2]
        for j in range(8):
            if i == 0 and j == 0:
                e("v_max_f32 v%d, v%d, v%d" % (M, d, d+1))
            else:
                e("v_max3_f32 v%d, v%d, v%d, v%d" % (M, M, d+2*j, d+2*j+1))
        if i % 2 == 1: issue_pre()
    rdv(0)
    e("v_mov_b32 v%d, v%d" % (T0, M))
    e("s_nop 1")
    e("v_permlane32_swap_b32 v%d, v%d" % (M, T0))
    e("s_nop 1")
    e("v_max_f32 v%d, v%d, v%d" % (M, M, T0))
    for r in range(16):
        e("v_sub_f32 v%d, v%d, v%d" % (MF+r, MF+r, M))
    for r in range(16):
        e("v_sub_f32 v%d, 0, v%d" % (NM+r, M))
    smfma(0, c2(0))
    for r in range(16):
        e("v_sub_f32 v%d, v%d, v%d" % (MD+r, MD+r, M))
    for i in range(9):
        if i + 1 < 9:
            smfma(i+1, c2(i+1))
            rdv(i+1)
        d = S[i % 2]; p = P[i % 2]
        for r in range(16):
            e("v_exp_f32 v%d, v%d" % (d+r, d+r))
            if r % 2 == 1 and r >= 3:
                e("v_cvt_pk_bf16_f32 v%d, v%d, v%d" % (p + (r-3)//2, d+r-3, d+r-2))
            if r in (5, 11): issue_pre()
        k.wait_lg(("v", i))
        e("v_cvt_pk_bf16_f32 v%d, v%d, v%d" % (p + 7, d+14, d+15))
        b = AV + 8*(i % 2)
        c = "0" if i == 0 else "a[%d:%d]" % (AO, AO+15)
        e("v_mfma_f32_32x32x16_bf16 a[%d:%d], a[%d:%d], v[%d:%d], %s" % (AO, AO+15, b, b+3, p, p+3, c))
        e("s_nop 0")
        e("v_mfma_f32_32x32x16_bf16 a[%d:%d], a[%d:%d], v[%d:%d], a[%d:%d]" % (AO, AO+15, b+4, b+7, p+4, p+7, AO, AO+15))
    assert not pre
    k.stamp()
    e("s_lshl_b32 s13, s6, 5")
    e("s_add_u32 s13, s13, s7")
    e("s_and_b32 s14, s13, 255")
    e("s_lshl_b32 s14, s14, 2")
    e("s_lshl_b32 s13, s13, 10")
    e("s_add_u32 s13, s13, 0x%x" % OT)
    e("s_add_u32 s14, s14, s%d" % S_FLL)
    e("s_add_u32 s14, s14, %d" % FL_O)
    e("s_nop 6")
    for r in range(9):
        e("v_accvgpr_read_b32 v%d, a%d" % (S[0]+r, AO+r))
    e("v_rcp_f32 v%d, v%d" % (T0, S[0]+8))
    e("s_nop 0")
    for r in range(8):
        e("v_mul_f32 v%d, v%d, v%d" % (S[0]+r, T0, S[0]+r))
        if r % 2 == 1:
            e("v_cvt_pk_bf16_f32 v%d, v%d, v%d" % (P[0] + r//2, S[0]+r-1, S[0]+r))
    stores(k, ["buffer_store_dwordx4 v[%d:%d], v5, %s, s13 offen" % (P[0], P[0]+3, SRD)], "st")
    k.wait_vm_all()
    flag_store(k, 14)

def phase_ldsgemm(k, kind):
    e = k.e
    k.vm = []; k.lg = []
    wo = kind == "wo"
    KS = 32 if wo else 112
    NC = KS // 4
    NS = KS // 8
    AMAP = WOA if wo else DN_A
    NA = len(AMAP)
    ABASE, WBASE = (OT, WO_F) if wo else (HT, WD_F)
    POLLB = 4
    Lload, Ldone = k.newlabel("GL"), k.newlabel("GD")
    e("s_and_b32 s22, s%d, 3" % S_J)
    e("s_lshl_b32 s8, s%d, 2" % S_G)
    e("s_add_u32 s6, s22, s8")
    e("s_lshr_b32 s7, s%d, 2" % S_J)
    e("s_lshl_b32 s13, s22, %d" % (8 if wo else 7))
    e("s_add_u32 s13, s13, s%d" % S_FLL)
    e("s_add_u32 s13, s13, %d" % (FL_O if wo else FL_H))
    e("s_and_b32 s17, s%d, 3" % S_WAVE)
    e("s_cmp_ge_u32 s%d, 4" % S_WAVE)
    e("s_cbranch_scc%d %s" % (1 if wo else 0, Lload))
    e("s_lshr_b32 s8, s17, 1")
    e("s_and_b32 s9, s17, 1")
    e("s_lshl_b32 s10, s6, 1"); e("s_add_u32 s10, s10, s8")
    e("s_lshl_b32 s12, s7, 1"); e("s_add_u32 s12, s12, s9")
    e("s_mul_i32 s11, s12, %d" % (KS*1024))
    e("s_lshl_b32 s14, s8, 11")
    e("s_add_u32 s11, s11, s14")
    e("s_add_u32 s11, s11, 0x%x" % WBASE)
    NO = KS // 2
    def issue_w(i):
        c, h = divmod(i, 2)
        e("s_add_u32 s14, s11, %d" % (c*4096))
        k.vmem("buffer_load_dwordx4 %s, v5, %s, s14 offen offset:%d" % (dn_wreg(i), SRD, h*1024), ("w", i))
    RES = 8; ACC = [16, 32]; AF = 48; TMP = 122
    e("s_lshl_b32 s20, s10, 15")
    e("s_lshl_b32 s21, s12, 11")
    e("s_add_u32 s20, s20, s21")
    e("s_add_u32 s20, s20, s%d" % S_XIN)
    k.vmem("buffer_load_dwordx4 v[%d:%d], v5, %s, s20 offen sc1" % (RES, RES+3, SRD), "res")
    k.vmem("buffer_load_dwordx4 v[%d:%d], v5, %s, s20 offen offset:1024 sc1" % (RES+4, RES+7, SRD), "res")
    if not wo and not EARLYA:
        e("s_lshl_b32 s18, s17, 11")
        e("s_mul_i32 s19, s10, %d" % (KS*1024))
        e("s_lshl_b32 s14, s9, 11")
        e("s_add_u32 s19, s19, s14"); e("s_add_u32 s19, s19, 0x%x" % ABASE)
        poll(k, 13, 32, TMP, val=5)
        for c in range(NA0):
            e("s_add_u32 m0, s18, %d" % (AMAP[c]*8192))
            e("s_add_u32 s14, s19, %d" % (c*4096))
            k.vmem("buffer_load_dwordx4 v5, %s, s14 offen sc1 lds" % SRD, ("a", c))
            k.vmem("buffer_load_dwordx4 v5, %s, s14 offen offset:1024 sc1 lds" % SRD, ("a", c))
    nw = 0 if wo else DN_PRE
    while nw < min(NO, 42):
        issue_w(nw); nw += 1
    VA0, VA1 = 112, 116
    e("s_mul_i32 s14, s8, 6144")
    e("s_xor_b32 s15, s8, 1")
    e("s_lshl_b32 s15, s15, 12")
    e("s_lshl_b32 s16, s8, 11")
    e("s_add_u32 s15, s15, s16")
    for n in range(3):
        e("v_add_u32 v%d, s14, v%d" % (VA0+n, 5+n))
        e("v_add_u32 v%d, s15, v%d" % (VA1+n, 5+n))
    e("s_lshl_b32 s21, s10, 13")
    e("s_lshl_b32 s16, s7, 10")
    e("s_add_u32 s21, s21, s16")
    e("s_lshl_b32 s16, s9, 3")
    e("s_add_u32 s21, s21, s16")
    e("s_add_u32 s21, s21, s%d" % S_STIN)
    e("s_and_b32 s23, s10, 7")
    e("s_lshl_b32 s23, s23, 6")
    e("s_lshl_b32 s16, s12, 2")
    e("s_add_u32 s23, s23, s16")
    e("s_add_u32 s23, s23, s%d" % S_FXIN)
    e("s_add_u32 s23, s23, %d" % (512 if wo else 1024))
    e("s_xor_b32 s16, s17, 2")
    e("s_lshl_b32 s16, s16, 12")
    e("v_add_u32 v120, s16, v5")
    e("s_lshl_b32 s16, s17, 12")
    e("v_add_u32 v121, s16, v5")
    e("s_mov_b32 s16, 0x%x" % ONES_BF16)
    k.wait_vm("res")
    for j in range(8):
        e("v_lshlrev_b32 v%d, 16, v%d" % (ACC[0]+2*j, RES+j))
        e("v_and_b32 v%d, 0xffff0000, v%d" % (ACC[0]+2*j+1, RES+j))
    PF = 2
    if wo: e("s_barrier")
    def rd(i):
        c, h = divmod(i, 2)
        if i % 4 == 0:
            if not wo and i // 4 == POLLB:
                poll(k, 13, 32, TMP, val=7)
            k.wait_vm(("a", c)); k.wait_vm(("a", c+1))
            k.wait_lg_all()
            e("s_barrier")
        aa = AMAP[c % NA]*8192 + h*1024
        b = AF + 8*(i % 3)
        k.lds("ds_read_b128 v[%d:%d], v%d offset:%d" % (b, b+3, VA0 + aa // 65536, aa % 65536), ("f", i))
        k.lds("ds_read_b128 v[%d:%d], v%d offset:%d" % (b+4, b+7, VA1 + aa // 65536, aa % 65536), ("f", i))
    for i in range(PF):
        rd(i)
        if i == 0: k.stamp()
    for i in range(NO):
        if i + PF < NO: rd(i + PF)
        k.wait_vm(("w", i))
        k.wait_lg(("f", i))
        if FINE == 2 and not wo and i % 8 == 0 and i > 0: k.stamp()
        b = AF + 8*(i % 3)
        wf = dn_wreg(i)
        e("v_mfma_f32_32x32x16_bf16 v[%d:%d], %s, v[%d:%d], v[%d:%d]" % (ACC[0], ACC[0]+15, wf, b, b+3, ACC[0], ACC[0]+15))
        e("v_mfma_f32_32x32x16_bf16 v[%d:%d], %s, v[%d:%d], %s" % (ACC[1], ACC[1]+15, wf, b+4, b+7, "0" if i == 0 else "v[%d:%d]" % (ACC[1], ACC[1]+15)))
        if nw < NO and nw - 42 <= i: issue_w(nw); nw += 1
    assert nw == NO
    e("s_barrier")
    k.stamp()
    e("s_nop 11")
    for q in range(4):
        k.lds("ds_write_b128 v120, v[%d:%d] offset:%d" % (ACC[1]+4*q, ACC[1]+4*q+3, RED + q*1024), "rw")
    k.wait_lg_all()
    e("s_barrier")
    for q in range(4):
        k.lds("ds_read_b128 v[%d:%d], v121 offset:%d" % (ACC[1]+4*q, ACC[1]+4*q+3, RED + q*1024), ("rr", q))
    for q in range(4):
        k.wait_lg(("rr", q))
        for r in range(4*q, 4*q+4):
            e("v_add_f32 v%d, v%d, v%d" % (ACC[0]+r, ACC[0]+r, ACC[1]+r))
    e("s_barrier")
    for j in range(8):
        e("v_cvt_pk_bf16_f32 v%d, v%d, v%d" % (RES+j, ACC[0]+2*j, ACC[0]+2*j+1))
    lfin = k.newlabel()
    if not wo:
        e("s_cmp_eq_u32 s%d, 1" % S_LAYER)
        e("s_cbranch_scc1 %s" % lfin)
    stores(k, ["buffer_store_dwordx4 v[%d:%d], v5, %s, s20 offen" % (RES, RES+3, SRD),
               "buffer_store_dwordx4 v[%d:%d], v5, %s, s20 offen offset:1024" % (RES+4, RES+7, SRD)], "st")
    e("v_mov_b32 v%d, 0" % TMP); e("v_mov_b32 v%d, 0" % (TMP+1))
    for j in range(8):
        e("v_dot2_f32_bf16 v%d, v%d, s16, v%d" % (TMP, RES+j, TMP))
        e("v_dot2_f32_bf16 v%d, v%d, v%d, v%d" % (TMP+1, RES+j, RES+j, TMP+1))
    e("s_nop 2")
    stores(k, ["buffer_store_dwordx2 v[%d:%d], v5, %s, s21 offen" % (TMP, TMP+1, SRD)], "st")
    k.wait_vm_all()
    flag_store(k, 23)
    e("s_branch %s" % Ldone)
    if not wo:
        k.label(lfin)
        e("v_lshlrev_b32 v%d, 10, v3" % TMP)
        e("v_lshl_add_u32 v%d, v4, 4, v%d" % (TMP, TMP))
        e("s_lshl_b32 s21, s10, 15")
        e("s_lshl_b32 s16, s12, 6")
        e("s_add_u32 s21, s21, s16")
        for c in range(2):
            b = RES + 4*c
            e("v_permlane32_swap_b32 v%d, v%d" % (b, b+2))
            e("v_permlane32_swap_b32 v%d, v%d" % (b+1, b+3))
        e("s_nop 1")
        for c in range(2):
            b = RES + 4*c
            e("buffer_store_dwordx4 v[%d:%d], v%d, %s, s21 offen offset:%d" % (b, b+3, TMP, SRD_OUT, 32*c))
        e("s_branch %s" % Ldone)
    k.label(Lload)
    k.vm = []; k.lg = []
    e("s_mov_b32 s9, s17")
    e("s_lshr_b32 s8, s9, 1")
    e("s_and_b32 s12, s9, 1")
    e("s_lshl_b32 s10, s9, 11")
    e("s_lshl_b32 s12, s12, 11")
    e("s_lshl_b32 s11, s6, 1"); e("s_add_u32 s11, s11, s8"); e("s_mul_i32 s11, s11, %d" % (KS*1024))
    e("s_add_u32 s11, s11, s12"); e("s_add_u32 s11, s11, 0x%x" % ABASE)
    def issue_a(c):
        e("s_add_u32 m0, s10, %d" % (AMAP[c % NA]*8192))
        e("s_add_u32 s8, s11, %d" % (c*4096))
        k.vmem("buffer_load_dwordx4 v5, %s, s8 offen sc1 lds" % SRD, ("a", c))
        k.vmem("buffer_load_dwordx4 v5, %s, s8 offen offset:1024 sc1 lds" % SRD, ("a", c))
    na = 0 if wo else NA0
    if wo:
        e("s_barrier")
        poll(k, 13, 64, 8)
    else:
        qkv_w_base(k, 15, 10)
        poll(k, 13, 32, 8, val=5)
    def steps(n0, na, prefetch):
        nq = 0
        for n in range(n0, NS):
            while na < NC and (na < NA or (na - NA) // 2 <= n - 2) and (wo or na < 20 or n > POLLB):
                issue_a(na); na += 1
            if not wo and na == NC and prefetch is None:
                lno, lend = k.newlabel(), k.newlabel()
                keep = list(k.vm)
                e("s_cmp_eq_u32 s%d, 1" % S_LAYER)
                e("s_cbranch_scc1 %s" % lno)
                steps(n, na, True)
                e("s_branch %s" % lend)
                k.label(lno)
                k.vm = keep
                steps(n, na, False)
                k.label(lend)
                return
            if prefetch:
                cnt = 0
                while nq < 12 and cnt < 3 and (nq < 8 or (10 + (nq - 8)//2) + 1 <= n - 1):
                    issue_qkv_w(k, nq, 15, 10); nq += 1; cnt += 1
            for c in (2*n, 2*n+1):
                k.wait_vm(("a", c))
            e("s_barrier")
        assert na == NC
        e("s_barrier")
        if prefetch:
            while nq < 12:
                issue_qkv_w(k, nq, 15, 10); nq += 1
        e("s_barrier")
        e("s_barrier")
    steps(0, na, None)
    k.label(Ldone)
    k.vm = []; k.lg = []

def gen_main():
    k = PK(KNAME)
    e = k.e
    e("s_cmp_ge_u32 s2, 256")
    e("s_cbranch_scc1 L_main_end")
    e("s_load_dwordx4 s[64:67], s[0:1], 0")
    e("s_load_dwordx2 s[68:69], s[0:1], 56")
    e("s_load_dwordx4 s[72:75], s[0:1], 64")
    e("s_getreg_b32 s52, hwreg(HW_REG_XCC_ID)")
    e("v_lshrrev_b32 v1, 6, v0")
    e("v_and_b32 v2, 63, v0")
    e("v_and_b32 v3, 31, v0")
    e("v_readfirstlane_b32 s%d, v1" % S_WAVE)
    e("v_bfe_u32 v4, v0, 5, 1")
    e("v_lshlrev_b32 v5, 4, v2")
    e("v_add_u32 v6, 0x10000, v5")
    e("v_add_u32 v7, 0x20000, v5")
    e("v_lshlrev_b32 v%d, 2, v2" % V_L4)
    e("v_mov_b32 v%d, 1" % V_ONE)
    e("v_mov_b32 v%d, 0" % V_ZERO)
    e("s_and_b32 s%d, s2, 7" % S_G)
    e("s_lshr_b32 s%d, s2, 3" % S_J)
    e("s_and_b32 s52, s52, 15")
    e("s_add_u32 s52, s52, 1")
    e("s_mov_b32 s%d, 0" % S_MODE)
    e("s_mov_b32 s%d, 0" % S_GQ)
    e("s_mov_b32 s%d, 0" % S_LOFF)
    e("s_mov_b32 s%d, 0x%x" % (S_XIN, XT))
    e("s_lshl_b32 s%d, s%d, 13" % (S_FXIN, S_G))
    e("s_add_u32 s%d, s%d, 0x%x" % (S_FXIN, S_FXIN, FLAGS))
    e("s_add_u32 s%d, s%d, 2048" % (S_FLL, S_FXIN))
    e("s_mov_b32 s%d, 0" % S_LAYER)
    e("s_mov_b32 s%d, 0x%x" % (S_STIN, STATS))
    e("s_mov_b32 s%d, 0" % S_STI)
    e("s_waitcnt lgkmcnt(0)")
    ws_srd(k, 74, 36)
    e("s_mov_b32 s40, s68"); e("s_mov_b32 s41, s69"); e("s_mov_b32 s42, %d" % (2048*512*2)); e("s_mov_b32 s43, 0x20000")
    e("s_mov_b32 s56, s66"); e("s_mov_b32 s57, s67"); e("s_mov_b32 s58, %d" % (512*1536*2)); e("s_mov_b32 s59, 0x20000")
    e("s_mov_b32 s60, s64"); e("s_mov_b32 s61, s65"); e("s_mov_b32 s62, %d" % (2048*512*2)); e("s_mov_b32 s63, 0x20000")
    e("s_mov_b32 s96, s72"); e("s_mov_b32 s97, s73"); e("s_mov_b32 s98, 256"); e("s_mov_b32 s99, 0x20000")
    k.stamp()
    e("s_mov_b32 s%d, 0" % S_NONCE)
    ln, lc = k.newlabel(), k.newlabel()
    e("s_cmp_lt_u32 s%d, 4" % S_WAVE)
    e("s_cbranch_scc1 %s" % ln)
    e("s_cmp_lg_u32 s%d, 7" % S_WAVE)
    e("s_cbranch_scc1 %s" % lc)
    e("s_lshl_b32 s13, s%d, 9" % S_G)
    e("s_lshr_b32 s14, s%d, 3" % S_J)
    e("s_lshl_b32 s14, s14, 7")
    e("s_and_b32 s15, s%d, 7" % S_J)
    e("s_lshl_b32 s15, s15, 2")
    e("s_add_u32 s14, s14, s15")
    e("s_add_u32 s14, s14, s13")
    e("s_add_u32 s14, s14, 0x%x" % CENW)
    e("v_mov_b32 v9, s52")
    e("s_mov_b64 exec, 1")
    e("buffer_store_dword v9, v%d, %s, s14 offen sc1" % (V_ZERO, SRD))
    e("s_mov_b64 exec, -1")
    k.label(lc)
    e("s_sub_u32 s9, s%d, 4" % S_WAVE)
    e("s_lshl_b32 s10, s9, 11")
    qkv_w_base(k, 15, 10)
    for q in range(12): issue_qkv_w(k, q, 15, 10)
    k.label(ln)
    k.label("L_layer")
    phase_rowgemm(k, "qkv"); k.stamp()
    phase_attn(k); k.stamp()
    phase_ldsgemm(k, "wo"); k.stamp()
    phase_rowgemm(k, "gateup"); k.stamp()
    phase_ldsgemm(k, "down"); k.stamp()
    e("s_add_u32 s%d, s%d, 1" % (S_LAYER, S_LAYER))
    e("s_add_u32 s%d, s%d, 0x%x" % (S_LOFF, S_LOFF, LSTR))
    e("s_add_u32 s%d, s%d, %d" % (S_FLL, S_FLL, FL_LSTR))
    e("s_add_u32 s%d, s%d, 1024" % (S_FXIN, S_FXIN))
    e("s_cmp_lt_u32 s%d, 2" % S_LAYER)
    e("s_cbranch_scc1 L_layer")
    if STAMP:
        e("s_waitcnt vmcnt(0)")
        k.stamp()
        e("s_lshl_b32 s13, s2, 3")
        e("s_add_u32 s13, s13, s%d" % S_WAVE)
        e("s_lshl_b32 s13, s13, 8")
        e("s_add_u32 s13, s13, 0x%x" % STAMPS)
        e("buffer_store_dword v0, v%d, %s, s13 offen" % (V_L4, SRD))
    k.label("L_main_end")
    e("s_endpgm")
    return k.text(128, 128)

def main(out_path):
    import gen_prep2
    ptxt, nprep = gen_prep2.gen_prep(sys.modules[__name__])
    txt = HEADER
    txt += "; @launch kernel=prep_kernel grid=(%d,1,1) block=(64,1,1) lds=16384\n" % nprep
    txt += "; @launch kernel=%s grid=(256,1,1) block=(512,1,1) lds=163840\n" % KNAME
    txt += '.amdgcn_target "amdgcn-amd-amdhsa--gfx950"\n'
    txt += ptxt + gen_main()
    open(out_path, "w").write(txt)

if __name__ == "__main__":
    main(sys.argv[1] if len(sys.argv) > 1 else "p.s")
```

```python
import gen
from gen import Kern, ws_srd, ONES_BF16
def gen_prep(G):
    k = Kern("prep_kernel"); e = k.e
    NQ, NG, NO, ND = 24*4, 28*4, 8*4, 8*14
    if getattr(G, 'INKP', 0): NG = NO = ND = 0
    B_G = NQ; B_U = B_G + NG; B_O = B_U + NG; B_D = B_O + NO; B_X = B_D + ND
    NX = 256
    B_Z = B_X + NX
    NZ = G.FLAGS_BYTES // 1024
    B_T = B_Z + NZ
    assert B_T % 8 == 0
    NTCH = 256 if G.PREPT else 0
    NTOT = B_T + NTCH
    e("s_cmp_ge_u32 s2, %d" % NTOT)
    e("s_cbranch_scc1 L_prep_end")
    e("s_load_dwordx16 s[16:31], s[0:1], 0")
    e("s_load_dwordx2 s[32:33], s[0:1], 72")
    e("v_and_b32 v3, 31, v0")
    e("v_lshrrev_b32 v4, 5, v0")
    e("v_lshlrev_b32 v2, 4, v0")
    e("s_mov_b32 s53, 0x%x" % ONES_BF16)
    e("s_waitcnt lgkmcnt(0)")
    ws_srd(k, 32, 36)
    e("s_mov_b32 s43, 0x20000")
    e("s_cmp_ge_u32 s2, %d" % B_T)
    e("s_cbranch_scc1 L_prep_touch")
    e("s_cmp_ge_u32 s2, %d" % B_Z)
    e("s_cbranch_scc1 L_prep_zero")
    e("s_cmp_ge_u32 s2, %d" % B_X)
    e("s_cbranch_scc1 L_prep_x")
    e("s_mov_b32 s47, 256"); e("s_mov_b32 s48, 0"); e("s_mov_b32 s50, 128"); e("s_mov_b32 s59, 0")
    e("s_cmp_lt_u32 s2, %d" % B_G)
    e("s_cbranch_scc0 L_prep_n1")
    e("s_mov_b32 s40, s18"); e("s_mov_b32 s41, s19"); e("s_mov_b32 s42, %d" % (512*1536*2)); e("s_mov_b32 s44, 3072")
    e("s_lshr_b32 s45, s2, 2"); e("s_and_b32 s52, s2, 3")
    e("s_lshr_b32 s55, s45, 3")
    e("s_and_b32 s56, s45, 7")
    e("s_mul_i32 s56, s56, 6")
    e("s_add_u32 s56, s56, s55")
    e("s_lshl_b32 s46, s56, 15"); e("s_add_u32 s46, s46, 0x%x" % G.WQKV_F); e("s_mov_b32 s51, %d" % (3*32768))
    e("s_lshl_b32 s49, s56, 10"); e("s_add_u32 s49, s49, 0x%x" % G.CS_QKV); e("s_mov_b32 s54, 3072")
    e("s_branch L_prep_strip")
    k.label("L_prep_n1")
    e("s_cmp_lt_u32 s2, %d" % B_O)
    e("s_cbranch_scc0 L_prep_n2")
    e("s_mov_b32 s42, %d" % (512*1792*2)); e("s_mov_b32 s44, 3584")
    e("s_mov_b32 s47, 32768"); e("s_mov_b32 s50, 1024")
    e("s_sub_u32 s55, s2, %d" % B_G)
    e("s_mov_b32 s40, s24"); e("s_mov_b32 s41, s25")
    e("s_cmp_lt_u32 s2, %d" % B_U)
    e("s_cbranch_scc1 L_prep_gu")
    e("s_sub_u32 s55, s2, %d" % B_U)
    e("s_mov_b32 s40, s26"); e("s_mov_b32 s41, s27"); e("s_mov_b32 s48, 256")
    k.label("L_prep_gu")
    e("s_lshr_b32 s45, s55, 2"); e("s_and_b32 s52, s55, 3")
    e("s_lshl_b32 s46, s45, 17"); e("s_add_u32 s46, s46, 0x%x" % G.WGU_F); e("s_mov_b32 s51, 65536")
    e("s_lshl_b32 s49, s45, 12"); e("s_add_u32 s49, s49, 0x%x" % G.CS_GU); e("s_mov_b32 s54, 2048")
    e("s_branch L_prep_strip")
    k.label("L_prep_n2")
    e("s_mov_b32 s44, 1024"); e("s_mov_b32 s49, 0x%x" % G.CS_DUM); e("s_mov_b32 s54, 1024")
    e("s_cmp_lt_u32 s2, %d" % B_D)
    e("s_cbranch_scc0 L_prep_n3")
    e("s_mov_b32 s40, s20"); e("s_mov_b32 s41, s21"); e("s_mov_b32 s42, %d" % (512*512*2))
    e("s_sub_u32 s55, s2, %d" % B_O)
    e("s_lshr_b32 s45, s55, 2"); e("s_and_b32 s52, s55, 3")
    e("s_lshl_b32 s46, s45, 16"); e("s_add_u32 s46, s46, 0x%x" % G.WO_F); e("s_mov_b32 s51, 32768")
    e("s_branch L_prep_strip")
    k.label("L_prep_n3")
    e("s_mov_b32 s40, s28"); e("s_mov_b32 s41, s29"); e("s_mov_b32 s42, %d" % (1792*512*2))
    e("s_sub_u32 s55, s2, %d" % B_D)
    e("s_and_b32 s45, s55, 7"); e("s_lshr_b32 s52, s55, 3")
    if getattr(G, "H_TMAJOR", False): e("s_mov_b32 s59, 1")
    e("s_mul_i32 s46, s45, %d" % (2*112*1024)); e("s_add_u32 s46, s46, 0x%x" % G.WD_F); e("s_mov_b32 s51, %d" % (112*1024))
    k.label("L_prep_strip")
    e("v_lshrrev_b32 v5, 3, v0")
    e("v_mul_lo_u32 v5, v5, s44")
    e("v_and_b32 v6, 7, v0")
    e("v_lshl_add_u32 v5, v6, 4, v5")
    e("s_lshl_b32 s55, s52, 7"); e("s_mul_i32 s55, s55, s44")
    e("s_lshl_b32 s56, s45, 7"); e("s_add_u32 s55, s55, s56")
    e("s_lshl_b32 s56, s44, 3")
    for i in range(16):
        e("s_mov_b32 m0, %d" % (i*1024))
        if i: e("s_add_u32 s55, s55, s56")
        else: e("s_nop 0")
        k.vmem("buffer_load_dwordx4 v5, s[40:43], s55 offen lds", ("ld", i))
    if G.PWARM:
        e("s_mov_b64 exec, 1")
        k.vmem("buffer_load_dword v90, v2, s[36:39], s46 offen", "warm")
        k.vmem("buffer_load_dword v91, v2, s[36:39], s49 offen", "warm")
        e("s_mov_b64 exec, -1")
    e("v_bfe_u32 v7, v0, 2, 2")
    e("v_lshl_add_u32 v7, v4, 2, v7")
    e("v_lshlrev_b32 v7, 7, v7")
    e("v_bfe_u32 v8, v0, 4, 1")
    e("v_lshl_add_u32 v7, v8, 5, v7")
    e("v_and_b32 v8, 3, v0")
    e("v_lshl_add_u32 v7, v8, 3, v7")
    e("v_lshrrev_b32 v9, 4, v3")
    e("v_and_b32 v8, 15, v3")
    e("v_lshlrev_b32 v8, 4, v8")
    e("v_mul_lo_u32 v6, v9, s47")
    e("v_add_u32 v6, v6, v8")
    e("v_lshl_add_u32 v6, v4, 9, v6")
    e("v_add_u32 v6, s48, v6")
    e("v_mul_lo_u32 v10, v9, s50")
    e("v_lshrrev_b32 v8, 1, v8")
    e("v_add_u32 v10, v10, v8")
    e("s_and_b32 s57, s52, 3"); e("s_lshl_b32 s57, s57, 8")
    e("s_lshr_b32 s58, s48, 1")
    e("s_add_u32 s57, s57, s58"); e("s_add_u32 s57, s57, s49")
    e("v_add_u32 v10, s57, v10")
    e("v_mov_b32 v11, 0"); e("v_mov_b32 v12, 0")
    KPERM = getattr(G, "kstep_dest", None)
    for ks in range(8):
        e("s_lshl_b32 s57, s52, 3")
        e("s_add_u32 s57, s57, %d" % ks)
        e("s_mul_i32 s58, s57, 9363")
        e("s_lshr_b32 s58, s58, 16")
        e("s_mul_i32 s60, s58, 7")
        e("s_sub_u32 s60, s57, s60")
        e("s_lshl_b32 s60, s60, 4")
        e("s_add_u32 s60, s60, s58")
        e("s_cmp_eq_u32 s59, 1")
        e("s_cselect_b32 s57, s60, s57")
        e("s_lshl_b32 s57, s57, 10")
        e("s_add_u32 s%d, s57, s46" % (64+2*ks))
        e("s_add_u32 s%d, s%d, s51" % (65+2*ks, 64+2*ks))
    for ks in range(8):
        k.wait_vm(("ld", 2*ks+1))
        for hh in range(2):
            b = 16 + 8*ks + 4*hh
            k.lds("ds_read_b64_tr_b16 v[%d:%d], v7 offset:%d" % (b, b+1, ks*2048 + hh*64), ("t", ks))
            k.lds("ds_read_b64_tr_b16 v[%d:%d], v7 offset:%d" % (b+2, b+3, ks*2048 + 1024 + hh*64), ("t", ks))
    for ks in range(8):
        k.wait_lg(("t", ks))
        for hh in range(2):
            b = 16 + 8*ks + 4*hh
            k.vmem("buffer_store_dwordx4 v[%d:%d], v6, s[36:39], s%d offen" % (b, b+3, 64+2*ks+hh), "st")
            for j in range(4):
                e("v_dot2_f32_bf16 v%d, v%d, s53, v%d" % (11+hh, b+j, 11+hh))
    e("s_nop 2")
    e("v_mov_b32 v13, v11"); e("v_mov_b32 v14, v12")
    e("s_nop 1")
    e("v_permlane32_swap_b32 v11, v13"); e("v_permlane32_swap_b32 v12, v14")
    e("s_nop 1")
    e("v_add_f32 v11, v11, v13"); e("v_add_f32 v12, v12, v14")
    for hh in range(2):
        c = 11 + hh
        e("v_cvt_pk_bf16_f32 v13, v%d, v%d" % (c, c))
        e("v_lshlrev_b32 v13, 16, v13")
        e("v_sub_f32 v13, v%d, v13" % c)
        e("v_cvt_pk_bf16_f32 v%d, v%d, v13" % (80+2*hh, c))
        e("v_mov_b32 v%d, v%d" % (81+2*hh, 80+2*hh))
    e("s_mov_b32 exec_hi, 0")
    e("buffer_store_dwordx2 v[80:81], v10, s[36:39], 0 offen")
    e("buffer_store_dwordx2 v[82:83], v10, s[36:39], s54 offen")
    e("s_endpgm")
    k.label("L_prep_x")
    k.vm = []; k.lg = []
    e("s_mov_b32 s40, s16"); e("s_mov_b32 s41, s17"); e("s_mov_b32 s42, %d" % (2048*512*2))
    e("s_sub_u32 s54, s2, %d" % B_X)
    e("s_lshr_b32 s55, s54, 2")
    e("s_and_b32 s56, s54, 3")
    e("s_lshl_b32 s57, s55, 15")
    e("s_lshl_b32 s58, s56, 8")
    e("s_add_u32 s58, s58, s57")
    e("v_lshlrev_b32 v5, 10, v3")
    e("v_lshl_add_u32 v5, v4, 4, v5")
    for ks in range(8):
        k.vmem("buffer_load_dwordx4 v[%d:%d], v5, s[40:43], s58 offen offset:%d" % (16+4*ks, 19+4*ks, 32*ks), ("x", ks))
    e("s_lshl_b32 s59, s56, 13")
    e("s_add_u32 s59, s59, s57")
    e("s_add_u32 s59, s59, 0x%x" % G.XT)
    e("s_lshl_b32 s60, s55, 13")
    e("s_lshl_b32 s61, s56, 11")
    e("s_add_u32 s60, s60, s61")
    e("s_add_u32 s60, s60, 0x%x" % G.STATS)
    if G.PWARM:
        e("s_mov_b64 exec, 1")
        k.vmem("buffer_load_dword v90, v2, s[36:39], s59 offen", "warm")
        k.vmem("buffer_load_dword v91, v2, s[36:39], s60 offen", "warm")
        e("s_mov_b64 exec, -1")
    for r in range(8): e("v_mov_b32 v%d, 0" % (64+r))
    for ks in range(8):
        k.wait_vm(("x", ks))
        b = 16 + 4*ks
        e("v_permlane32_swap_b32 v%d, v%d" % (b, b+2))
        e("v_permlane32_swap_b32 v%d, v%d" % (b+1, b+3))
        if ks == 4: e("s_add_u32 s59, s59, 4096")
        else: e("s_nop 0")
        e("s_nop 0")
        k.vmem("buffer_store_dwordx4 v[%d:%d], v2, s[36:39], s59 offen offset:%d" % (b, b+3, (ks % 4)*1024), "st")
        ct = ks // 2
        for j in range(4):
            e("v_dot2_f32_bf16 v%d, v%d, s53, v%d" % (64+2*ct, b+j, 64+2*ct))
            e("v_dot2_f32_bf16 v%d, v%d, v%d, v%d" % (65+2*ct, b+j, b+j, 65+2*ct))
    e("s_nop 3")
    e("buffer_store_dwordx4 v[64:67], v2, s[36:39], s60 offen")
    e("buffer_store_dwordx4 v[68:71], v2, s[36:39], s60 offen offset:1024")
    e("s_endpgm")
    k.label("L_prep_zero")
    e("s_sub_u32 s4, s2, %d" % B_Z)
    e("s_lshl_b32 s4, s4, 10")
    e("s_add_u32 s4, s4, 0x%x" % G.ZBASE)
    for r in range(4): e("v_mov_b32 v%d, 0" % (4+r))
    e("buffer_store_dwordx4 v[4:7], v2, s[36:39], s4 offen")
    e("s_endpgm")
    k.label("L_prep_touch")
    e("s_sub_u32 s4, s2, %d" % B_T)
    e("s_and_b32 s5, s4, 7"); e("s_lshr_b32 s6, s4, 3")
    e("s_lshl_b32 s7, s5, 5"); e("s_add_u32 s7, s7, s6")
    e("v_lshlrev_b32 v8, 7, v0")
    e("s_mul_i32 s8, s7, %d" % (28*1024)); e("s_add_u32 s8, s8, 0x%x" % G.HT)
    for q in range(4):
        e("s_add_u32 s9, s8, %d" % min(q*8192, 20*1024))
        e("buffer_load_dword v9, v8, s[36:39], s9 offen")
    e("s_lshl_b32 s8, s7, 13"); e("s_add_u32 s9, s8, 0x%x" % G.OT)
    e("buffer_load_dword v9, v8, s[36:39], s9 offen")
    if G.PREPT > 1:
        e("s_lshl_b32 s8, s6, 16"); e("s_lshl_b32 s9, s5, 13"); e("s_add_u32 s8, s8, s9")
        for base in (G.KH, G.VH, G.KH+G.LSTR, G.VH+G.LSTR):
            e("s_add_u32 s9, s8, 0x%x" % base)
            e("buffer_load_dword v9, v8, s[36:39], s9 offen")
    k.label("L_prep_end")
    e("s_endpgm")
    return k.text(96, 0), NTOT
```

```python
import gen
from gen import Kern, ws_srd, ONES_BF16
def gen_prep(G):
    k = Kern("prep_kernel"); e = k.e
    NQ, NG, NO, ND = 6*4, 7*4, 2*4, 2*14
    B_G = NQ; B_U = B_G + NG; B_O = B_U + NG; B_D = B_O + NO; B_X = B_D + ND
    NX = 64
    B_Z = B_X + NX
    NZ = G.FLAGS_BYTES // 4096
    NTOT = B_Z + NZ
    e("s_cmp_ge_u32 s2, %d" % NTOT)
    e("s_cbranch_scc1 L_prep_end")
    e("s_load_dwordx16 s[16:31], s[0:1], 0")
    e("s_load_dwordx2 s[32:33], s[0:1], 72")
    e("v_lshrrev_b32 v1, 6, v0")
    e("v_and_b32 v15, 63, v0")
    e("v_and_b32 v3, 31, v0")
    e("v_readfirstlane_b32 s3, v1")
    e("v_bfe_u32 v4, v0, 5, 1")
    e("v_lshlrev_b32 v2, 4, v15")
    e("s_mov_b32 s53, 0x%x" % ONES_BF16)
    e("s_waitcnt lgkmcnt(0)")
    ws_srd(k, 32, 36)
    e("s_mov_b32 s43, 0x20000")
    e("s_cmp_ge_u32 s2, %d" % B_Z)
    e("s_cbranch_scc1 L_prep_zero")
    e("s_cmp_ge_u32 s2, %d" % B_X)
    e("s_cbranch_scc1 L_prep_x")
    e("s_mov_b32 s47, 256"); e("s_mov_b32 s48, 0"); e("s_mov_b32 s50, 128"); e("s_mov_b32 s59, 0")
    e("s_cmp_lt_u32 s2, %d" % B_G)
    e("s_cbranch_scc0 L_prep_n1")
    e("s_mov_b32 s40, s18"); e("s_mov_b32 s41, s19"); e("s_mov_b32 s42, %d" % (512*1536*2)); e("s_mov_b32 s44, 3072")
    e("s_lshr_b32 s45, s2, 2"); e("s_and_b32 s52, s2, 3")
    e("s_lshr_b32 s55, s45, 1")
    e("s_and_b32 s56, s45, 1")
    e("s_mul_i32 s56, s56, 24")
    e("s_add_u32 s56, s56, s55")
    e("s_lshl_b32 s46, s56, 15"); e("s_add_u32 s46, s46, 0x%x" % G.WQKV_F); e("s_mov_b32 s51, %d" % (3*32768))
    e("s_lshl_b32 s49, s56, 10"); e("s_add_u32 s49, s49, 0x%x" % G.CS_QKV); e("s_mov_b32 s54, 3072")
    e("s_branch L_prep_strip")
    k.label("L_prep_n1")
    e("s_cmp_lt_u32 s2, %d" % B_O)
    e("s_cbranch_scc0 L_prep_n2")
    e("s_mov_b32 s42, %d" % (512*1792*2)); e("s_mov_b32 s44, 3584")
    e("s_mov_b32 s47, 32768"); e("s_mov_b32 s50, 1024")
    e("s_sub_u32 s55, s2, %d" % B_G)
    e("s_mov_b32 s40, s24"); e("s_mov_b32 s41, s25")
    e("s_cmp_lt_u32 s2, %d" % B_U)
    e("s_cbranch_scc1 L_prep_gu")
    e("s_sub_u32 s55, s2, %d" % B_U)
    e("s_mov_b32 s40, s26"); e("s_mov_b32 s41, s27"); e("s_mov_b32 s48, 256")
    k.label("L_prep_gu")
    e("s_lshr_b32 s45, s55, 2"); e("s_and_b32 s52, s55, 3")
    e("s_lshl_b32 s46, s45, 19"); e("s_add_u32 s46, s46, 0x%x" % G.WGU_F); e("s_mov_b32 s51, 65536")
    e("s_lshl_b32 s49, s45, 14"); e("s_add_u32 s49, s49, 0x%x" % G.CS_GU); e("s_mov_b32 s54, 2048")
    e("s_branch L_prep_strip")
    k.label("L_prep_n2")
    e("s_mov_b32 s44, 1024"); e("s_mov_b32 s49, 0"); e("s_mov_b32 s54, 0")
    e("s_cmp_lt_u32 s2, %d" % B_D)
    e("s_cbranch_scc0 L_prep_n3")
    e("s_mov_b32 s40, s20"); e("s_mov_b32 s41, s21"); e("s_mov_b32 s42, %d" % (512*512*2))
    e("s_sub_u32 s55, s2, %d" % B_O)
    e("s_lshr_b32 s45, s55, 2"); e("s_and_b32 s52, s55, 3")
    e("s_lshl_b32 s46, s45, 18"); e("s_add_u32 s46, s46, 0x%x" % G.WO_F); e("s_mov_b32 s51, 32768")
    e("s_branch L_prep_strip")
    k.label("L_prep_n3")
    e("s_mov_b32 s40, s28"); e("s_mov_b32 s41, s29"); e("s_mov_b32 s42, %d" % (1792*512*2))
    e("s_sub_u32 s55, s2, %d" % B_D)
    e("s_and_b32 s45, s55, 1"); e("s_lshr_b32 s52, s55, 1"); e("s_mov_b32 s59, 1")
    e("s_mul_i32 s46, s45, %d" % (8*112*1024)); e("s_add_u32 s46, s46, 0x%x" % G.WD_F); e("s_mov_b32 s51, %d" % (112*1024))
    k.label("L_prep_strip")
    e("v_mul_lo_u32 v5, v4, s44")
    e("v_lshl_add_u32 v5, v3, 4, v5")
    e("s_lshl_b32 s55, s52, 7"); e("s_lshl_b32 s56, s3, 5"); e("s_add_u32 s55, s55, s56"); e("s_mul_i32 s55, s55, s44")
    e("s_lshl_b32 s56, s45, 9"); e("s_add_u32 s55, s55, s56")
    e("s_lshl_b32 s56, s44, 1")
    e("s_lshl_b32 s60, s3, 14")
    for i in range(16):
        e("s_add_u32 m0, s60, %d" % (i*1024))
        if i: e("s_add_u32 s55, s55, s56")
        else: e("s_nop 0")
        k.vmem("buffer_load_dwordx4 v5, s[40:43], s55 offen lds", ("ld", i))
    e("v_bfe_u32 v7, v15, 2, 2")
    e("v_lshl_add_u32 v7, v4, 2, v7")
    e("v_lshlrev_b32 v7, 9, v7")
    e("v_bfe_u32 v8, v15, 4, 1")
    e("v_lshl_add_u32 v7, v8, 5, v7")
    e("v_and_b32 v8, 3, v15")
    e("v_lshl_add_u32 v7, v8, 3, v7")
    e("v_add_u32 v7, s60, v7")
    e("v_lshrrev_b32 v9, 4, v3")
    e("v_and_b32 v8, 15, v3")
    e("v_lshlrev_b32 v8, 4, v8")
    e("v_mul_lo_u32 v6, v9, s47")
    e("v_add_u32 v6, v6, v8")
    e("v_lshl_add_u32 v6, v4, 9, v6")
    e("v_add_u32 v6, s48, v6")
    e("v_mul_lo_u32 v10, v9, s50")
    e("v_lshrrev_b32 v8, 1, v8")
    e("v_add_u32 v10, v10, v8")
    e("s_and_b32 s57, s52, 3"); e("s_lshl_b32 s57, s57, 8")
    e("s_lshr_b32 s58, s48, 1")
    e("s_add_u32 s57, s57, s58"); e("s_add_u32 s57, s57, s49")
    e("v_add_u32 v10, s57, v10")
    for hh in range(8): e("v_mov_b32 v%d, 0" % (88+hh))
    for ks in range(2):
        e("s_lshl_b32 s57, s52, 3")
        e("s_lshl_b32 s58, s3, 1")
        e("s_add_u32 s57, s57, s58")
        e("s_add_u32 s57, s57, %d" % ks)
        e("s_mul_i32 s58, s57, 9363")
        e("s_lshr_b32 s58, s58, 16")
        e("s_mul_i32 s61, s58, 7")
        e("s_sub_u32 s61, s57, s61")
        e("s_lshl_b32 s61, s61, 4")
        e("s_add_u32 s61, s61, s58")
        e("s_cmp_eq_u32 s59, 1")
        e("s_cselect_b32 s57, s61, s57")
        e("s_lshl_b32 s57, s57, 10")
        e("s_add_u32 s%d, s57, s46" % (64+ks))
    for ks in range(2):
        k.wait_vm(("ld", 8*ks+7))
        for hh in range(8):
            b = 16 + 32*ks + 4*hh
            k.lds("ds_read_b64_tr_b16 v[%d:%d], v7 offset:%d" % (b, b+1, ks*8192 + hh*64), ("t", ks, hh))
            k.lds("ds_read_b64_tr_b16 v[%d:%d], v7 offset:%d" % (b+2, b+3, ks*8192 + 4096 + hh*64), ("t", ks, hh))
        for hh in range(8):
            b = 16 + 32*ks + 4*hh
            k.wait_lg(("t", ks, hh))
            k.vmem("buffer_store_dwordx4 v[%d:%d], v6, s[36:39], s%d offen" % (b, b+3, 64+ks), "st")
            e("s_add_u32 s%d, s%d, s51" % (64+ks, 64+ks))
            for j in range(4):
                e("v_dot2_f32_bf16 v%d, v%d, s53, v%d" % (88+hh, b+j, 88+hh))
    e("s_cmp_eq_u32 s49, 0")
    e("s_cbranch_scc1 L_prep_end")
    e("s_nop 2")
    e("v_lshl_add_u32 v11, v15, 2, s60")
    for hh in range(8):
        e("ds_write_b32 v11, v%d offset:%d" % (88+hh, hh*256))
    e("s_waitcnt lgkmcnt(0)")
    e("s_barrier")
    e("s_lshl_b32 s57, s3, 9")
    e("v_lshl_add_u32 v11, v3, 2, s57")
    for q in range(2):
        for w in range(4):
            e("ds_read2_b32 v[%d:%d], v11 offset0:%d offset1:%d" % (16+8*q+2*w, 17+8*q+2*w, 0, 32)) if False else None
    for q in range(2):
        for w in range(4):
            for h in range(2):
                e("ds_read_b32 v%d, v11 offset:%d" % (16+8*q+2*w+h, w*16384 + q*256 + h*128))
    e("s_waitcnt lgkmcnt(0)")
    e("s_lshl_b32 s57, s3, 1")
    e("s_mul_i32 s57, s57, s54")
    e("s_add_u32 s58, s57, s54")
    for q in range(2):
        b = 16 + 8*q
        for st in (1, 2, 4):
            for c in range(0, 8, 2*st):
                e("v_add_f32 v%d, v%d, v%d" % (b+c, b+c, b+c+st))
        e("v_cvt_pk_bf16_f32 v13, v%d, v%d" % (b, b))
        e("v_lshlrev_b32 v13, 16, v13")
        e("v_sub_f32 v13, v%d, v13" % b)
        e("v_cvt_pk_bf16_f32 v%d, v%d, v13" % (80+2*q, b))
        e("v_mov_b32 v%d, v%d" % (81+2*q, 80+2*q))
    e("s_mov_b32 exec_hi, 0")
    e("buffer_store_dwordx2 v[80:81], v10, s[36:39], s57 offen")
    e("buffer_store_dwordx2 v[82:83], v10, s[36:39], s58 offen")
    e("s_endpgm")
    k.label("L_prep_x")
    k.vm = []; k.lg = []
    e("s_mov_b32 s40, s16"); e("s_mov_b32 s41, s17"); e("s_mov_b32 s42, %d" % (2048*512*2))
    e("s_sub_u32 s55, s2, %d" % B_X)
    e("s_mov_b32 s56, s3")
    e("s_lshl_b32 s57, s55, 15")
    e("s_lshl_b32 s58, s56, 8")
    e("s_add_u32 s58, s58, s57")
    e("v_lshlrev_b32 v5, 10, v3")
    e("v_lshl_add_u32 v5, v4, 4, v5")
    for ks in range(8):
        k.vmem("buffer_load_dwordx4 v[%d:%d], v5, s[40:43], s58 offen offset:%d" % (16+4*ks, 19+4*ks, 32*ks), ("x", ks))
    e("s_lshl_b32 s59, s56, 13")
    e("s_add_u32 s59, s59, s57")
    e("s_add_u32 s59, s59, 0x%x" % G.XT)
    e("s_lshl_b32 s60, s55, 13")
    e("s_lshl_b32 s61, s56, 11")
    e("s_add_u32 s60, s60, s61")
    e("s_add_u32 s60, s60, 0x%x" % G.STATS)
    for r in range(8): e("v_mov_b32 v%d, 0" % (64+r))
    for ks in range(8):
        k.wait_vm(("x", ks))
        b = 16 + 4*ks
        e("v_permlane32_swap_b32 v%d, v%d" % (b, b+2))
        e("v_permlane32_swap_b32 v%d, v%d" % (b+1, b+3))
        if ks == 4: e("s_add_u32 s59, s59, 4096")
        else: e("s_nop 0")
        e("s_nop 0")
        k.vmem("buffer_store_dwordx4 v[%d:%d], v2, s[36:39], s59 offen offset:%d" % (b, b+3, (ks % 4)*1024), "st")
        ct = ks // 2
        for j in range(4):
            e("v_dot2_f32_bf16 v%d, v%d, s53, v%d" % (64+2*ct, b+j, 64+2*ct))
            e("v_dot2_f32_bf16 v%d, v%d, v%d, v%d" % (65+2*ct, b+j, b+j, 65+2*ct))
    e("s_nop 3")
    e("buffer_store_dwordx4 v[64:67], v2, s[36:39], s60 offen")
    e("buffer_store_dwordx4 v[68:71], v2, s[36:39], s60 offen offset:1024")
    e("s_endpgm")
    k.label("L_prep_zero")
    e("s_sub_u32 s4, s2, %d" % B_Z)
    e("s_lshl_b32 s4, s4, 12")
    e("s_add_u32 s4, s4, 0x%x" % G.ZBASE)
    e("v_lshlrev_b32 v1, 4, v0")
    for r in range(4): e("v_mov_b32 v%d, 0" % (4+r))
    e("buffer_store_dwordx4 v[4:7], v1, s[36:39], s4 offen")
    k.label("L_prep_end")
    e("s_endpgm")
    return k.text(96, 0), NTOT
```

```python
import sys, struct, os
import gen
from gen import Kern, f32bits, ws_srd, ONES_BF16, LOG2E, QSCALE, NEGBIG, stats_reduce_ops, HEADER

KNAME = "main_kernel"
STAMP = int(os.environ.get('STAMP', '0'))
FORCE_SLOW = int(os.environ.get('FORCE_SLOW', '0'))
FINE = int(os.environ.get('FINE', '0'))
NPRE_X = int(os.environ.get('NPRE_X', '16'))
GU_LA = int(os.environ.get('GU_LA', '3'))
KVFLAG_AT = int(os.environ.get('KVFLAG_AT', '92'))
WO_F   = 0x000000
WGU_F  = 0x080000
WD_F   = 0x400000
CS_GU  = 0x5C0000
CS_DUM = 0x5DC000
FLAGS  = 0x5F0000
CENW   = 0x5E2000
PDW    = 0x5E0000
XT     = 0x0800000
STATS  = 0x1000000
LSTR   = 0x1100000
KF     = 0x1200000
VF     = 0x1400000
KH     = 0x1600000
VH     = 0x1800000
OT     = 0x1A00000
HT     = 0x1C00000
WQKV_F = 0x3400000
CS_QKV = WQKV_F + 0x180000
STAMPS = 0x6000000
H_TMAJOR = True
FL_KV, FL_KVH, FL_O, FL_H = 0, 512, 1024, 2048
FL_LSTR = 2560
FLAGS_BYTES = 0x20000
ZBASE = 0x5E0000

S_WAVE, S_G, S_J = 3, 4, 5
S_MODE, S_LOFF, S_XIN, S_FLL, S_LAYER, S_STIN, S_FXIN, S_STI = 44, 45, 46, 47, 48, 49, 50, 51
S_NONCE, S_GQ = 54, 55
SRD = "s[36:39]"
SRD_OUT = "s[40:43]"
SRD_WQ = "s[56:59]"
SRD_X = "s[60:63]"
SRD_DBG = "s[96:99]"
V_L4, V_ONE, V_ZERO = 125, 126, 127

a_ = list(range(10)); w_ = list(range(10, 20))
QMAP = [a_[8], a_[9], w_[0], w_[1], w_[2], w_[3], w_[8], w_[9], a_[0], a_[1], a_[2], a_[3]]
HB = [a_[4]*8192, w_[4]*8192]
EXCH = a_[7]*8192
CSX = w_[7]*8192
QX = w_[7]*8192 + 4096 - 131072
WOA = [a_[4], a_[5], a_[6], a_[7], w_[4], w_[5], w_[6], w_[7]]
GU_PRE = 12
GUR = list(QMAP)
DN_A = [a_[4], a_[5], a_[6], a_[7], w_[4], w_[5], w_[6], w_[7], a_[0], a_[1], a_[2], a_[3]]
RED = a_[4]*8192

DN_PRE = int(os.environ.get('DN_PRE', '30'))
DW_PER_STEP = (DN_PRE + 3) // 4
def dn_wreg(i):
    if i >= 42: i -= 42
    return "a[%d:%d]" % (4*i, 4*i+3) if i < 32 else "v[%d:%d]" % (72 + 4*(i-32), 75 + 4*(i-32))

class PK(Kern):
    def stamp(self):
        if not STAMP: return
        self.e("s_memrealtime s[100:101]" if STAMP == 1 else "s_memtime s[100:101]")
        self.e("s_waitcnt lgkmcnt(0)")
        self.lg = []
        self.e("s_mov_b32 m0, s%d" % S_STI)
        self.e("s_nop 0")
        self.e("v_writelane_b32 v0, s100, m0")
        self.e("s_add_u32 s%d, s%d, 1" % (S_STI, S_STI))

def stores(k, inss, tag=None):
    la, lb = k.newlabel(), k.newlabel()
    k.e("s_cmp_eq_u32 s%d, 1" % S_MODE)
    k.e("s_cbranch_scc1 %s" % la)
    for ins in inss: k.e(ins + " sc1")
    k.e("s_branch %s" % lb)
    k.label(la)
    for ins in inss: k.e(ins)
    k.label(lb)
    for ins in inss: k.vm.append(tag)

SPIN_LIMIT = 400000
DEFER = int(os.environ.get('DEFER', '0'))
GSLEEP = int(os.environ.get('GSLEEP', '12'))
def set_exec(k, nlanes):
    if nlanes >= 64: return
    assert nlanes <= 32
    k.e("s_mov_b32 exec_lo, 0x%x" % ((1 << nlanes) - 1))
    k.e("s_mov_b32 exec_hi, 0")

def spin(k, load, test, sleep=0):
    lp, ld = k.newlabel(), k.newlabel()
    k.e("s_mov_b32 s53, 0")
    k.label(lp)
    k.e(load)
    k.e("s_add_u32 s53, s53, 1")
    k.e("s_waitcnt vmcnt(0)")
    for t in test: k.e(t)
    k.e("s_cbranch_vccz %s" % ld)
    if sleep: k.e("s_sleep %d" % sleep)
    k.e("s_cmp_lt_u32 s53, %d" % SPIN_LIMIT)
    k.e("s_cbranch_scc1 %s" % lp)
    k.label(ld)

def poll(k, s_addr, nlanes, vtmp, val=1):
    set_exec(k, nlanes)
    k.e("s_add_u32 s31, s%d, %d" % (S_NONCE, val))
    spin(k, "buffer_load_dword v%d, v%d, %s, s%d offen sc1" % (vtmp, V_L4, SRD, s_addr),
         ["v_subrev_u32 v%d, s31, v%d" % (vtmp, vtmp), "v_cmp_lt_u32 vcc, 15, v%d" % vtmp])
    if nlanes < 64: k.e("s_mov_b64 exec, -1")
    k.vm = []

def flag_val(k, vdst, val):
    k.e("s_add_u32 s31, s%d, %d" % (S_NONCE, val))
    k.e("v_mov_b32 v%d, s31" % vdst)

def flag_store(k, s_addr, v_val=V_ONE, extra_sc1=None):
    k.e("s_mov_b64 exec, 1")
    if extra_sc1 is not None:
        k.vmem("buffer_store_dword v%d, v%d, %s, s%d offen sc1" % (v_val, V_ZERO, SRD, extra_sc1), "flag")
    stores(k, ["buffer_store_dword v%d, v%d, %s, s%d offen" % (v_val, V_ZERO, SRD, s_addr)], "flag")
    k.e("s_mov_b64 exec, -1")

def census_check(k, vt, vt2):
    e = k.e
    lskip = k.newlabel()
    e("s_cmp_lg_u32 s%d, 0" % S_LAYER)
    e("s_cbranch_scc1 %s" % lskip)
    e("s_lshl_b32 s13, s%d, 9" % S_G)
    e("s_add_u32 s13, s13, 0x%x" % CENW)
    e("v_lshrrev_b32 v%d, 3, v2" % vt2)
    e("v_lshlrev_b32 v%d, 7, v%d" % (vt2, vt2))
    e("v_and_b32 v%d, 7, v2" % vt)
    e("v_lshl_add_u32 v%d, v%d, 2, v%d" % (vt2, vt, vt2))
    set_exec(k, 32)
    spin(k, "buffer_load_dword v%d, v%d, %s, s13 offen sc1" % (vt, vt2, SRD), ["v_cmp_eq_u32 vcc, 0, v%d" % vt])
    e("v_cmp_ne_u32 vcc, s52, v%d" % vt)
    e("s_mov_b64 exec, -1")
    e("s_cmp_eq_u64 vcc, 0")
    e("s_cselect_b32 s%d, %d, 0" % (S_MODE, 0 if FORCE_SLOW else 1))
    k.label(lskip)

def prep_wait(k, vt):
    e = k.e
    lskip = k.newlabel()
    e("s_cmp_lg_u32 s%d, 0" % S_LAYER)
    e("s_cbranch_scc1 %s" % lskip)
    e("v_lshrrev_b32 v%d, 1, v2" % (vt+4))
    e("v_lshlrev_b32 v%d, 7, v%d" % (vt+4, vt+4))
    e("v_and_b32 v%d, 1, v2" % vt)
    e("v_lshl_add_u32 v%d, v%d, 4, v%d" % (vt+4, vt, vt+4))
    e("s_and_b32 s13, s%d, 1" % S_WAVE)
    e("s_lshl_b32 s13, s13, 12")
    e("s_add_u32 s13, s13, 0x%x" % PDW)
    e("s_add_u32 s31, s%d, 16" % S_NONCE)
    t = []
    for q in range(4): t.append("v_subrev_u32 v%d, s31, v%d" % (vt+q, vt+q))
    t += ["v_max_u32 v%d, v%d, v%d" % (vt, vt, vt+1), "v_max_u32 v%d, v%d, v%d" % (vt+2, vt+2, vt+3), "v_max_u32 v%d, v%d, v%d" % (vt, vt, vt+2),
          "v_cmp_lt_u32 vcc, 15, v%d" % vt]
    spin(k, "buffer_load_dwordx4 v[%d:%d], v%d, %s, s13 offen sc1" % (vt, vt+3, vt+4, SRD), t, sleep=2)
    k.label(lskip)

TOUCH = int(os.environ.get('TOUCH', '0'))
PT = int(os.environ.get('PT', '1'))
INPLACE = 1
PWARM = 0
PREP3 = int(os.environ.get('PREP3', '0'))
SBQ = int(os.environ.get('SBQ', '6'))
SB1 = int(os.environ.get('SB1', '4'))
SB2 = int(os.environ.get('SB2', '2'))
NOEPI = int(os.environ.get('NOEPI', '0'))
DWS = dict(zip((5, 6, 7, 8), [int(x) for x in os.environ.get('DWS', '4,4,5,9').split(',')]))
ATCH = int(os.environ.get('ATCH', '0'))
PRIO = int(os.environ.get('PRIO', '0'))
APRIO = int(os.environ.get('APRIO', '0'))
HOFF = int(os.environ.get('HOFF', '0'))
PTH = int(os.environ.get('PTH', '0'))
EARLYA = int(os.environ.get('EARLYA', '1'))
NA0 = int(os.environ.get('NA0', '6'))
HPT = int(os.environ.get('HPT', '1'))
HPT0 = int(os.environ.get('HPT0', '5'))
PREPT = int(os.environ.get('PREPT', '0'))
DUALKV = int(os.environ.get('DUALKV', '0'))
PT0 = int(os.environ.get('PT0', '0'))
PTQ = 0
PTKV = int(os.environ.get('PTKV', '0'))
LATEDEF = int(os.environ.get('LATEDEF', '1'))
SPLITFIN = int(os.environ.get('SPLITFIN', '1'))
def touch_set(k, which, nxt, vaddr, vdst):
    if not TOUCH: return
    e = k.e
    e("v_lshlrev_b32 v%d, 7, v2" % vaddr)
    e("s_lshl_b32 s13, s%d, 5" % S_G)
    e("s_add_u32 s13, s13, s%d" % S_J)
    def t(sreg):
        k.vmem("buffer_load_dword v%d, v%d, %s, s%d offen sc1" % (vdst, vaddr, SRD, sreg), "touch")
    lo = LSTR*nxt; xo = 0x400000*nxt; so = 0x100000*nxt
    if which == 'a':
        e("s_lshl_b32 s14, s%d, 16" % S_J); e("s_lshl_b32 s15, s%d, 13" % S_G); e("s_add_u32 s14, s14, s15"); e("s_add_u32 s14, s14, s%d" % S_LOFF)
        e("s_add_u32 s15, s14, 0x%x" % (KF + lo)); t(15)
        e("s_add_u32 s15, s14, 0x%x" % (VF + lo)); t(15)
        e("s_lshl_b32 s14, s13, 13")
        e("s_add_u32 s15, s14, s%d" % S_LOFF); e("s_add_u32 s15, s15, 0x%x" % (OT + lo)); t(15)
        e("s_add_u32 s15, s14, s%d" % S_XIN); e("s_add_u32 s15, s15, 0x%x" % (0x200000 + xo)); t(15)
        e("s_and_b32 s14, s%d, 7" % S_J); e("s_lshl_b32 s14, s14, 13"); e("s_lshl_b32 s15, s%d, 16" % S_G); e("s_add_u32 s14, s14, s15")
        e("s_add_u32 s15, s14, s%d" % S_STIN); e("s_add_u32 s15, s15, 0x%x" % (0x80000 + so)); t(15)
    else:
        e("s_mul_i32 s14, s13, %d" % (28*1024)); e("s_add_u32 s14, s14, s%d" % S_LOFF); e("s_add_u32 s14, s14, 0x%x" % (HT + lo))
        for q in range(4):
            e("s_add_u32 s15, s14, %d" % min(q*8192, 20*1024)); t(15)
        e("s_lshl_b32 s14, s13, 13")
        e("s_add_u32 s15, s14, s%d" % S_XIN); e("s_add_u32 s15, s15, 0x%x" % (0x400000 + xo)); t(15)
        e("s_and_b32 s14, s%d, 7" % S_J); e("s_lshl_b32 s14, s14, 13"); e("s_lshl_b32 s15, s%d, 16" % S_G); e("s_add_u32 s14, s14, s15")
        e("s_add_u32 s15, s14, s%d" % S_STIN); e("s_add_u32 s15, s15, 0x%x" % (0x100000 + so)); t(15)

def lds_addr(a):
    return 5 + a // 65536, a % 65536

QKV_ORDER = []
for c in range(4): QKV_ORDER += [(1, c), (2, c)]
for c in range(4): QKV_ORDER.append((0, c))
GU_ORDER = []
for c in range(4): GU_ORDER += [(0, c), (1, c)]
for t in range(2, 7):
    for c in range(4): GU_ORDER.append((t, c))

def qkv_w_base(k, s_dst, s_lw2k):
    k.e("s_lshr_b32 s%d, s%d, 1" % (s_dst, S_J))
    k.e("s_mul_i32 s%d, s%d, %d" % (s_dst, s_dst, 3*32768))
    k.e("s_add_u32 s%d, s%d, s%d" % (s_dst, s_dst, s_lw2k))
    k.e("s_add_u32 s%d, s%d, 0x%x" % (s_dst, s_dst, WQKV_F))
    k.e("s_add_u32 s%d, s%d, s%d" % (s_dst, s_dst, S_GQ))

def issue_qkv_w(k, ci, s_base, s_lw2k):
    t, c = QKV_ORDER[ci]
    k.e("s_add_u32 m0, s%d, %d" % (s_lw2k, QMAP[ci]*8192))
    k.e("s_add_u32 s14, s%d, %d" % (s_base, t*32768 + c*8192))
    k.vmem("buffer_load_dwordx4 v5, %s, s14 offen lds" % SRD, ("w", ci))
    k.vmem("buffer_load_dwordx4 v5, %s, s14 offen offset:1024 lds" % SRD, ("w", ci))

def gu_math(acc, pk, tm, SC1, VAR):
    ops = []
    for r in range(8):
        ops.append("v_mul_f32 v%d, v%d, v%d" % (tm+r, SC1, acc+r))
    for r in range(8):
        ops.append("v_exp_f32 v%d, v%d" % (tm+r, tm+r))
        ops.append("v_mul_f32 v%d, v%d, v%d" % (acc+r, acc+r, acc+8+r))
    for r in range(8):
        ops.append("v_fma_f32 v%d, v%d, v%d, v%d" % (tm+r, tm+r, VAR, VAR))
    for r in range(8):
        ops.append("v_rcp_f32 v%d, v%d" % (tm+r, tm+r))
    ops.append("s_nop 0")
    for r in range(8):
        ops.append("v_mul_f32 v%d, v%d, v%d" % (acc+r, acc+r, tm+r))
        if r % 2 == 1:
            ops.append("v_cvt_pk_bf16_f32 v%d, v%d, v%d" % (pk + r//2, acc+r-1, acc+r))
    return ops

def tr_addr(k, vdst, vtmp, rowstride_shift):
    e = k.e
    e("v_bfe_u32 v%d, v2, 2, 2" % vdst)
    e("v_lshl_add_u32 v%d, v4, 2, v%d" % (vdst, vdst))
    e("v_lshlrev_b32 v%d, %d, v%d" % (vdst, rowstride_shift, vdst))
    e("v_bfe_u32 v%d, v2, 4, 1" % vtmp)
    e("v_lshl_add_u32 v%d, v%d, 5, v%d" % (vdst, vtmp, vdst))
    e("v_and_b32 v%d, 3, v2" % vtmp)
    e("v_lshl_add_u32 v%d, v%d, 3, v%d" % (vdst, vtmp, vdst))

def prep_unit_issue(k, lds_base_sgpr):
    e = k.e
    ln1, ln2, ln3, lgo, lgu, lnone = [k.newlabel() for _ in range(6)]
    e("s_mov_b32 s30, 0")
    e("s_cmp_ge_u32 s28, 464")
    e("s_cbranch_scc1 %s" % lnone)
    e("s_mov_b32 s30, 1")
    e("s_load_dwordx16 s[64:79], s[0:1], 0")
    e("s_mov_b32 s27, 0x20000")
    e("s_mov_b32 s87, 256"); e("s_mov_b32 s88, 0"); e("s_mov_b32 s90, 128"); e("s_mov_b32 s93, 0")
    e("s_waitcnt lgkmcnt(0)")
    e("s_cmp_lt_u32 s28, 368")
    e("s_cbranch_scc1 %s" % ln1)
    e("s_mov_b32 s24, s66"); e("s_mov_b32 s25, s67"); e("s_mov_b32 s26, %d" % (512*1536*2)); e("s_mov_b32 s84, 3072")
    e("s_sub_u32 s29, s28, 368")
    e("s_lshr_b32 s85, s29, 2"); e("s_and_b32 s92, s29, 3")
    e("s_lshr_b32 s29, s85, 3")
    e("s_and_b32 s31, s85, 7")
    e("s_mul_i32 s31, s31, 6")
    e("s_add_u32 s31, s31, s29")
    e("s_lshl_b32 s86, s31, 15"); e("s_add_u32 s86, s86, 0x%x" % WQKV_F); e("s_add_u32 s86, s86, s%d" % S_GQ); e("s_mov_b32 s91, %d" % (3*32768))
    e("s_lshl_b32 s89, s31, 10"); e("s_add_u32 s89, s89, 0x%x" % CS_QKV); e("s_add_u32 s89, s89, s%d" % S_GQ); e("s_mov_b32 s94, 3072")
    e("s_branch %s" % lgo)
    k.label(ln1)
    e("s_cmp_lt_u32 s28, 224")
    e("s_cbranch_scc0 %s" % ln2)
    e("s_mov_b32 s26, %d" % (512*1792*2)); e("s_mov_b32 s84, 3584")
    e("s_mov_b32 s87, 32768"); e("s_mov_b32 s90, 1024")
    e("s_mov_b32 s29, s28")
    e("s_mov_b32 s24, s72"); e("s_mov_b32 s25, s73")
    e("s_cmp_lt_u32 s28, 112")
    e("s_cbranch_scc1 %s" % lgu)
    e("s_sub_u32 s29, s28, 112")
    e("s_mov_b32 s24, s74"); e("s_mov_b32 s25, s75"); e("s_mov_b32 s88, 256")
    k.label(lgu)
    e("s_lshr_b32 s85, s29, 2"); e("s_and_b32 s92, s29, 3")
    e("s_lshl_b32 s86, s85, 17"); e("s_add_u32 s86, s86, 0x%x" % WGU_F); e("s_mov_b32 s91, 65536")
    e("s_lshl_b32 s89, s85, 12"); e("s_add_u32 s89, s89, 0x%x" % CS_GU); e("s_mov_b32 s94, 2048")
    e("s_branch %s" % lgo)
    k.label(ln2)
    e("s_mov_b32 s84, 1024"); e("s_mov_b32 s89, 0x%x" % CS_DUM); e("s_mov_b32 s94, 1024")
    e("s_cmp_lt_u32 s28, 256")
    e("s_cbranch_scc0 %s" % ln3)
    e("s_mov_b32 s24, s68"); e("s_mov_b32 s25, s69"); e("s_mov_b32 s26, %d" % (512*512*2))
    e("s_sub_u32 s29, s28, 224")
    e("s_lshr_b32 s85, s29, 2"); e("s_and_b32 s92, s29, 3")
    e("s_lshl_b32 s86, s85, 16"); e("s_add_u32 s86, s86, 0x%x" % WO_F); e("s_mov_b32 s91, 32768")
    e("s_branch %s" % lgo)
    k.label(ln3)
    e("s_mov_b32 s24, s76"); e("s_mov_b32 s25, s77"); e("s_mov_b32 s26, %d" % (1792*512*2))
    e("s_sub_u32 s29, s28, 256")
    e("s_and_b32 s85, s29, 7"); e("s_lshr_b32 s92, s29, 3"); e("s_mov_b32 s93, 1")
    e("s_mul_i32 s86, s85, %d" % (2*112*1024)); e("s_add_u32 s86, s86, 0x%x" % WD_F); e("s_mov_b32 s91, %d" % (112*1024))
    k.label(lgo)
    e("v_lshrrev_b32 v9, 3, v2")
    e("v_mul_lo_u32 v9, v9, s84")
    e("v_and_b32 v8, 7, v2")
    e("v_lshl_add_u32 v9, v8, 4, v9")
    e("s_lshl_b32 s29, s92, 7"); e("s_mul_i32 s29, s29, s84")
    e("s_lshl_b32 s28, s85, 7"); e("s_add_u32 s29, s29, s28")
    e("s_lshl_b32 s28, s84, 3")
    for i in range(16):
        e("s_add_u32 m0, s%d, %d" % (lds_base_sgpr, i*1024))
        if i: e("s_add_u32 s29, s29, s28")
        else: e("s_nop 0")
        e("buffer_load_dwordx4 v9, s[24:27], s29 offen lds")
    k.label(lnone)

def prep_unit_finish(k, lds_base_sgpr, local=False, part=0):
    e = k.e
    lnone = k.newlabel()
    e("s_cmp_eq_u32 s30, 0")
    e("s_cbranch_scc1 %s" % lnone)
    B = 48
    if part in (0, 1):
        tr_addr(k, 8, 9, 7)
        e("v_add_u32 v8, s%d, v8" % lds_base_sgpr)
        for ks in range(8):
            for hh in range(2):
                b = B + 8*ks + 4*hh
                e("ds_read_b64_tr_b16 v[%d:%d], v8 offset:%d" % (b, b+1, ks*2048 + hh*64))
                e("ds_read_b64_tr_b16 v[%d:%d], v8 offset:%d" % (b+2, b+3, ks*2048 + 1024 + hh*64))
            if ks % 2 == 1: e("s_waitcnt lgkmcnt(0)")
    if part == 1:
        k.label(lnone)
        return
    e("v_lshrrev_b32 v9, 4, v3")
    e("v_and_b32 v8, 15, v3")
    e("v_lshlrev_b32 v8, 4, v8")
    e("v_mul_lo_u32 v10, v9, s87")
    e("v_add_u32 v10, v10, v8")
    e("v_lshl_add_u32 v10, v4, 9, v10")
    e("v_add_u32 v10, s88, v10")
    e("v_mul_lo_u32 v11, v9, s90")
    e("v_lshrrev_b32 v8, 1, v8")
    e("v_add_u32 v11, v11, v8")
    e("s_and_b32 s28, s92, 3"); e("s_lshl_b32 s28, s28, 8")
    e("s_lshr_b32 s29, s88, 1")
    e("s_add_u32 s28, s28, s29"); e("s_add_u32 s28, s28, s89")
    e("v_add_u32 v11, s28, v11")
    e("v_mov_b32 v12, 0"); e("v_mov_b32 v13, 0")
    e("s_mov_b32 s95, 0x%x" % ONES_BF16)
    for ks in range(8):
        e("s_lshl_b32 s28, s92, 3")
        e("s_add_u32 s28, s28, %d" % ks)
        e("s_mul_i32 s29, s28, 9363")
        e("s_lshr_b32 s29, s29, 16")
        e("s_mul_i32 s31, s29, 7")
        e("s_sub_u32 s31, s28, s31")
        e("s_lshl_b32 s31, s31, 4")
        e("s_add_u32 s31, s31, s29")
        e("s_cmp_eq_u32 s93, 1")
        e("s_cselect_b32 s28, s31, s28")
        e("s_lshl_b32 s28, s28, 10")
        e("s_add_u32 s28, s28, s86")
        e("s_add_u32 s29, s28, s91")
        if local:
            stores(k, ["buffer_store_dwordx4 v[%d:%d], v10, %s, s%d offen" % (B+8*ks+4*hh, B+8*ks+4*hh+3, SRD, 28+hh) for hh in range(2)])
        for hh in range(2):
            b = B + 8*ks + 4*hh
            if not local: e("buffer_store_dwordx4 v[%d:%d], v10, %s, s%d offen sc1" % (b, b+3, SRD, 28+hh))
            for j in range(4):
                e("v_dot2_f32_bf16 v%d, v%d, s95, v%d" % (12+hh, b+j, 12+hh))
    e("s_cmp_eq_u32 s89, 0x%x" % CS_DUM)
    e("s_cbranch_scc1 %s" % lnone)
    e("s_nop 2")
    e("v_mov_b32 v14, v12"); e("v_mov_b32 v15, v13")
    e("s_nop 1")
    e("v_permlane32_swap_b32 v12, v14"); e("v_permlane32_swap_b32 v13, v15")
    e("s_nop 1")
    e("v_add_f32 v12, v12, v14"); e("v_add_f32 v13, v13, v15")
    for hh in range(2):
        c = 12 + hh
        e("v_cvt_pk_bf16_f32 v14, v%d, v%d" % (c, c))
        e("v_lshlrev_b32 v14, 16, v14")
        e("v_sub_f32 v14, v%d, v14" % c)
        e("v_cvt_pk_bf16_f32 v%d, v%d, v14" % (112+2*hh, c))
        e("v_mov_b32 v%d, v%d" % (113+2*hh, 112+2*hh))
    e("s_mov_b32 exec_hi, 0")
    if local:
        stores(k, ["buffer_store_dwordx2 v[112:113], v11, %s, 0 offen" % SRD, "buffer_store_dwordx2 v[114:115], v11, %s, s94 offen" % SRD])
    else:
        e("buffer_store_dwordx2 v[112:113], v11, %s, 0 offen sc1" % SRD)
        e("buffer_store_dwordx2 v[114:115], v11, %s, s94 offen sc1" % SRD)
    e("s_mov_b64 exec, -1")
    k.label(lnone)

def xpoll(k, qkv, vt):
    if not qkv:
        poll(k, 13, 16, vt); return
    lskip = k.newlabel()
    k.e("s_cmp_eq_u32 s%d, 0" % S_LAYER)
    k.e("s_cbranch_scc1 %s" % lskip)
    keep = list(k.vm)
    poll(k, 13, 16, vt)
    k.label(lskip)
    k.vm = keep

def phase_rowgemm(k, kind):
    e = k.e
    k.vm = []; k.lg = []
    qkv = kind == "qkv"
    NT = 3 if qkv else 7
    NCH = NT*4
    NSTEP = 6 if qkv else 4 + NT - 2
    cstep = lambda ci: ci // 2 if (ci < 8 or qkv) else 4 + (ci - 8) // 4
    chunks_of = lambda n: [ci for ci in range(NCH) if cstep(ci) == n]
    ORDER = QKV_ORDER if qkv else GU_ORDER
    P1 = (1, 2) if qkv else (0, 1)
    REST = [0] if qkv else [2, 3, 4, 5, 6]
    if qkv:
        wslot = list(QMAP); wfree = [0]*12
    else:
        wslot = list(GUR); wfree = [0]*12
        free_at = {s_: -1 for s_ in [a_[4], a_[5], a_[6], w_[4], w_[5], w_[6]] + ([] if HOFF else [w_[7]])}
        for ci in range(12): free_at[wslot[ci]] = cstep(ci) + 1
        for ci in range(12, NCH):
            cand = [x for x in free_at if not (EARLYA and ci >= 20 and x in DN_A[:NA0])]
            s_ = min(cand, key=lambda x: (free_at[x], x))
            wslot.append(s_); wfree.append(free_at[s_] + 1)
            free_at[s_] = cstep(ci) + 1
    Lload, Ldone = k.newlabel("RL"), k.newlabel("RD")
    e("s_and_b32 s6, s%d, 1" % S_J)
    e("s_lshl_b32 s8, s%d, 1" % S_G)
    e("s_add_u32 s21, s6, s8")
    e("s_lshr_b32 s7, s%d, 1" % S_J)
    e("s_and_b32 s9, s%d, 3" % S_WAVE)
    e("s_lshl_b32 s6, s21, 2")
    e("s_add_u32 s6, s6, s9")
    e("s_and_b32 s22, s6, 7")
    e("s_lshl_b32 s13, s22, 6")
    e("s_add_u32 s13, s13, s%d" % S_FXIN)
    if not qkv: e("s_add_u32 s13, s13, 512")
    e("s_cmp_ge_u32 s%d, 4" % S_WAVE)
    e("s_cbranch_scc1 %s" % Lload)
    if PRIO: e("s_setprio %d" % PRIO)
    WF = 16; CSF = 96; MFR = 8; PKR = 80; RR = 64
    SC1, VAR, T0, T1 = 12, 13, 14, 15
    RSTD = 1
    VE = 124
    e("s_lshl_b32 s14, s9, 11")
    e("s_add_u32 s14, s14, %d" % EXCH)
    e("v_add_u32 v%d, s14, v5" % VE)
    e("s_mul_i32 s12, s7, %d" % (NT*1024))
    e("s_add_u32 s12, s12, 0x%x" % (CS_QKV if qkv else CS_GU))
    if qkv: e("s_add_u32 s12, s12, s%d" % S_GQ)
    e("v_lshlrev_b32 v%d, 3, v3" % T1)
    e("v_lshl_add_u32 v%d, v4, 9, v%d" % (T1, T1))
    for t in range(NT):
        if t == 4: e("s_add_u32 s12, s12, 4096")
        for q in range(2):
            k.vmem("buffer_load_dwordx2 v[%d:%d], v%d, %s, s12 offen offset:%d" % (CSF+4*t+2*q, CSF+4*t+2*q+1, T1, SRD, (t % 4)*1024 + q*256), "cs")
    e("s_lshl_b32 s8, s6, 15")
    e("s_add_u32 s8, s8, s%d" % S_XIN)
    VPT = 119 if qkv else RSTD
    if qkv:
        e("s_lshl_b32 s15, s7, 17"); e("s_lshl_b32 s14, s6, 10"); e("s_add_u32 s15, s15, s14"); e("s_add_u32 s15, s15, s%d" % S_LOFF)
        if PT:
            e("v_and_b32 v%d, 7, v2" % VPT); e("v_lshlrev_b32 v%d, 7, v%d" % (VPT, VPT))
            e("v_bfe_u32 v%d, v2, 3, 1" % T0); e("v_lshl_add_u32 v%d, v%d, 16, v%d" % (VPT, T0, VPT))
            e("v_bfe_u32 v%d, v2, 4, 1" % T0); e("v_lshl_add_u32 v%d, v%d, 21, v%d" % (VPT, T0, VPT))
            assert VF - KF == 1 << 21 and KH - KF == 1 << 22 and VH - KH == 1 << 21
        def pt():
            e("s_add_u32 s14, s15, 0x%x" % KH)
            set_exec(k, 32)
            k.vmem("buffer_load_dword v120, v%d, %s, s14 offen sc1" % (VPT, SRD), "pt")
            e("s_mov_b64 exec, -1")
    else:
        e("s_mul_i32 s16, s6, 112")
        e("s_add_u32 s16, s16, s7")
        e("s_lshl_b32 s16, s16, 10")
        e("s_add_u32 s16, s16, 0x%x" % HT)
        if PT:
            e("v_and_b32 v%d, 7, v2" % VPT); e("v_lshlrev_b32 v%d, 7, v%d" % (VPT, VPT))
            e("v_lshrrev_b32 v%d, 3, v2" % T0); e("v_lshl_add_u32 v%d, v%d, 14, v%d" % (VPT, T0, VPT))
        def pt():
            e("s_mov_b32 exec_hi, 0x00ffffff")
            k.vmem("buffer_load_dword v%d, v%d, %s, s16 offen sc1" % (T1, VPT, SRD), "pt")
            e("s_mov_b64 exec, -1")
    xpoll(k, qkv, T0)
    def mk_x(s):
        def f():
            if s % 4 == 0 and s > 0: e("s_add_u32 s8, s8, 4096")
            k.vmem("buffer_load_dwordx4 a[%d:%d], v5, %s, s8 offen offset:%d sc1" % (4*s, 4*s+3, SRD, (s % 4)*1024), ("x", s))
        return f
    k.stamp()
    def pth():
        e("s_mul_i32 s16, s6, 112")
        e("s_add_u32 s16, s16, s7")
        e("s_lshl_b32 s16, s16, 10")
        e("s_add_u32 s16, s16, 0x%x" % HT)
        e("v_and_b32 v119, 7, v2"); e("v_lshlrev_b32 v119, 7, v119")
        e("v_lshrrev_b32 v120, 3, v2"); e("v_lshl_add_u32 v119, v120, 14, v119")
        e("s_mov_b32 exec_hi, 0x00ffffff")
        k.vmem("buffer_load_dword v120, v119, %s, s16 offen sc1" % SRD, "pt")
        e("s_mov_b64 exec, -1")
    loads = [mk_x(s) for s in range(32)] + ([pt] if PTKV and qkv else []) + ([pth] if PTH and qkv else [])
    for f in loads[:NPRE_X]: f()
    loads = loads[NPRE_X:]
    sched = []
    for s in range(32):
        sched.append((P1[0], s)); sched.append((P1[1], s))
    for t in REST:
        for s in range(32): sched.append((t, s))
    cidx = {tc: i for i, tc in enumerate(ORDER)}
    PF = 3
    total = len(sched)
    side = []
    if qkv: ACCM = {1: 32, 2: 48, 0: 32}
    if qkv: ACCM = {1: 32, 2: 48, 0: 96+12-12+0}
    if qkv:
        ACCM = {1: 32, 2: 48, 0: 64}
        RR = 80; PKR = 16+16+0
    else:
        ACCM = {t: [32, 48, 64][t % 3] for t in range(7)}
    def rd(g):
        t, s = sched[g]
        if (g % 16 == 0 and (g <= 64 or qkv)) or g % 32 == 0:
            n = g // 16 if (g <= 64 or qkv) else 4 + (g - 64) // 32
            k.wait_lg_all()
            e("s_barrier")
            if n == 4:
                k.lds("ds_read_b128 v[%d:%d], v%d" % (MFR, MFR+3, VE), "ex")
                k.lds("ds_read_b64 v[%d:%d], v%d offset:1024" % (SC1, VAR, VE), "ex")
                if qkv:
                    k.lds("ds_read_b32 v%d, v%d offset:1032" % (RSTD, VE), "ex")
        ci = cidx[(t, s // 8)]
        ad = wslot[ci]*8192 + (s % 8)*1024
        b = WF + 4*(g % 4)
        va, off = lds_addr(ad)
        k.lds("ds_read_b128 v[%d:%d], v%d offset:%d" % (b, b+3, va, off), ("wf", g))
    def cost(x):
        if callable(x): return 2
        return 2 if x.startswith(("v_exp", "v_rcp", "v_rsq")) else 1
    def run_side(budget):
        while side and budget > 0:
            x = side.pop(0)
            budget -= cost(x)
            if callable(x): x()
            else: e(x)
    def epi_kv():
        ops = []
        aK, aV = ACCM[1], ACCM[2]
        def rr():
            e("s_lshl_b32 s14, s9, 11")
            e("s_add_u32 s14, s14, %d" % (EXCH + 1024 + 8))
            e("v_lshl_add_u32 v%d, v4, 6, s14" % T0)
            for r in range(16):
                row = (r & 3) + 8*(r >> 2)
                k.lds("ds_read_b32 v%d, v%d offset:%d" % (RR+r, T0, row*16), "rr")
        ops.append(rr)
        for r in range(16):
            ops.append("v_mul_f32 v%d, v%d, v%d" % (aK+r, RSTD, aK+r))
            if r % 2 == 1:
                ops.append("v_cvt_pk_bf16_f32 v%d, v%d, v%d" % (aK + r//2, aK+r-1, aK+r))
        def stk():
            e("s_add_u32 s13, s15, 0x%x" % KH)
            e("s_add_u32 s14, s13, 65536")
            k.vmem("buffer_store_dwordx4 v[%d:%d], v5, %s, s13 offen sc1" % (aK, aK+3, SRD), "st")
            k.vmem("buffer_store_dwordx4 v[%d:%d], v5, %s, s14 offen sc1" % (aK+4, aK+7, SRD), "st")
        ops.append(stk)
        ops.append(lambda: k.wait_lg("rr"))
        for r in range(16):
            ops.append("v_mul_f32 v%d, v%d, v%d" % (aV+r, RR+r, aV+r))
            if r % 2 == 1:
                ops.append("v_cvt_pk_bf16_f32 v%d, v%d, v%d" % (aV + r//2, aV+r-1, aV+r))
        ops += ["v_lshrrev_b32 v%d, 4, v3" % T0, "v_lshlrev_b32 v%d, 16, v%d" % (T0, T0), "v_and_b32 v%d, 15, v3" % T1,
                "v_lshl_add_u32 v%d, v%d, 4, v%d" % (T0, T1, T0), "v_lshl_add_u32 v%d, v4, 8, v%d" % (T0, T0)]
        def stv():
            e("s_add_u32 s13, s15, 0x%x" % VH)
            k.vmem("buffer_store_dwordx4 v[%d:%d], v%d, %s, s13 offen sc1" % (aV, aV+3, T0, SRD), "st")
            k.vmem("buffer_store_dwordx4 v[%d:%d], v%d, %s, s13 offen offset:512 sc1" % (aV+4, aV+7, T0, SRD), "st")
        def stl():
            e("s_add_u32 s13, s15, 0x%x" % KF)
            e("s_add_u32 s14, s13, 65536")
            e("s_add_u32 s16, s15, 0x%x" % VF)
            stores(k, ["buffer_store_dwordx4 v[%d:%d], v5, %s, s13 offen" % (aK, aK+3, SRD),
                       "buffer_store_dwordx4 v[%d:%d], v5, %s, s14 offen" % (aK+4, aK+7, SRD),
                       "buffer_store_dwordx4 v[%d:%d], v%d, %s, s16 offen" % (aV, aV+3, T0, SRD),
                       "buffer_store_dwordx4 v[%d:%d], v%d, %s, s16 offen offset:512" % (aV+4, aV+7, T0, SRD)], "st")
        def lw():
            e("s_lshl_b32 s13, s9, 10")
            e("v_add_u32 v%d, s13, v5" % T1)
            k.lds("ds_write_b128 v%d, v[%d:%d] offset:%d" % (T1, aK, aK+3, HB[0] + 8192), "kw")
            e("v_add_u32 v%d, 0x10000, v%d" % (T1, T1))
            k.lds("ds_write_b128 v%d, v[%d:%d] offset:%d" % (T1, aK+4, aK+7, HB[1] + 8192 - 65536), "kw")
            e("v_lshrrev_b32 v%d, 4, v3" % T1)
            e("s_mov_b32 s14, %d" % (HB[1] - HB[0]))
            e("v_mul_lo_u32 v%d, v%d, s14" % (T1, T1))
            e("v_and_b32 v%d, 0xffff, v%d" % (T0, T0))
            e("v_add_u32 v%d, v%d, v%d" % (T1, T1, T0))
            e("v_add_u32 v%d, s13, v%d" % (T1, T1))
            k.lds("ds_write_b128 v%d, v[%d:%d] offset:%d" % (T1, aV, aV+3, HB[0] + 12288 + 8192), "kw")
            k.lds("ds_write_b128 v%d, v[%d:%d] offset:%d" % (T1, aV+4, aV+7, HB[0] + 12288 + 8192 + 512), "kw")
        ops += [stv, stl, lw] if DUALKV else [stv, lw]
        return ops
    def kv_flags():
        e("s_lshl_b32 s13, s7, 5")
        e("s_lshl_b32 s14, s22, 2")
        e("s_add_u32 s13, s13, s14")
        e("s_add_u32 s13, s13, s%d" % S_FLL)
        e("s_add_u32 s14, s13, %d" % FL_KVH)
        k.wait_vm_all()
        if DUALKV:
            flag_store(k, 13, V_ONE, extra_sc1=14)
        else:
            e("s_mov_b64 exec, 1")
            k.vmem("buffer_store_dword v%d, v%d, %s, s14 offen sc1" % (V_ONE, V_ZERO, SRD), "flag")
            e("s_mov_b64 exec, -1")
    def epi_gu(t):
        pk = PKR + 4*(t % 2)
        ops = gu_math(ACCM[t], pk, PKR+8, SC1, VAR) if not NOEPI else []
        def st():
            if t == 0:
                e("s_lshl_b32 s15, s22, 6")
                e("s_lshl_b32 s14, s7, 2")
                e("s_add_u32 s15, s15, s14")
                e("s_add_u32 s15, s15, s%d" % S_FLL)
                e("s_add_u32 s15, s15, %d" % FL_H)
                if HOFF:
                    e("s_lshl_b32 s14, s9, 10")
                    e("v_add_u32 v%d, s14, v7" % T1)
            else:
                e("s_add_u32 s16, s16, 16384")
                if t >= 2 and not HOFF:
                    k.wait_vm(("st", t-1))
                    flag_val(k, T0, t)
                    flag_store(k, 15, T0)
            if HOFF and t <= 4:
                if t == 2: k.lds("ds_write_b128 v%d, v[%d:%d]" % (VE, pk, pk+3), "hx")
                else: k.lds("ds_write_b128 v%d, v[%d:%d] offset:%d" % (T1, pk, pk+3, w_[7]*8192 - 131072 + (t % 3)*4096), "hx")
            else:
                stores(k, ["buffer_store_dwordx4 v[%d:%d], v5, %s, s16 offen" % (pk, pk+3, SRD)], ("st", t))
            if False:
                e("s_add_u32 s14, s16, 32768")
                set_exec(k, 8)
                k.vmem("buffer_load_dword v%d, v%d, %s, s14 offen sc1" % (T1, VPT, SRD), "pt")
                e("s_mov_b64 exec, -1")
        ops.append(st)
        return ops
    def mf(acc, wf, xf, c, t):
        if qkv and t == 2:
            e("v_mfma_f32_32x32x16_bf16 v[%d:%d], %s, %s, %s" % (acc, acc+15, xf, wf, c))
        else:
            e("v_mfma_f32_32x32x16_bf16 v[%d:%d], %s, %s, %s" % (acc, acc+15, wf, xf, c))
    def corr(t):
        acc = ACCM[t]
        mf(acc, "v[%d:%d]" % (CSF+4*t, CSF+4*t+3), "v[%d:%d]" % (MFR, MFR+3), "v[%d:%d]" % (acc, acc+15), t)
    for g in range(PF):
        rd(g)
    for g in range(total):
        t, s = sched[g]
        if g + PF < total: rd(g + PF)
        if g >= 64 and s == 3:
            if g < 96:
                side.extend(epi_kv() if qkv else epi_gu(0) + epi_gu(1))
            else:
                side.extend(epi_gu(t-1))
        if g < 64 and t == P1[0]: k.wait_vm(("x", s))
        k.wait_lg(("wf", g))
        acc = ACCM[t]
        mf(acc, "v[%d:%d]" % (WF+4*(g % 4), WF+4*(g % 4)+3), "a[%d:%d]" % (4*s, 4*s+3),
           "0" if s == 0 else "v[%d:%d]" % (acc, acc+15), t)
        if loads:
            loads.pop(0)()
        if qkv and g == 62: census_check(k, T0, T1)
        run_side(SBQ if qkv else (SB1 if g < 96 else SB2))
        if qkv and g == KVFLAG_AT:
            run_side(1000)
            kv_flags()
        if g == 63:
            k.wait_lg("ex")
            corr(P1[0]); corr(P1[1])
            k.stamp()
        elif g > 63 and s == 31:
            run_side(1000)
            corr(t)
            if FINE == 3 and not qkv: k.stamp()
    if qkv:
        k.stamp()
        acc = ACCM[0]
        e("s_lshl_b32 s13, s9, 10")
        e("v_add_u32 v%d, s13, v7" % T1)
        e("s_nop 9")
        for r in range(16):
            e("v_mul_f32 v%d, v%d, v%d" % (acc+r, SC1, acc+r))
            if r % 2 == 1:
                e("v_cvt_pk_bf16_f32 v%d, v%d, v%d" % (acc + r//2, acc+r-1, acc+r))
        k.lds("ds_write_b128 v%d, v[%d:%d] offset:%d" % (T1, acc+4, acc+7, QX), "qw")
        for r in range(4):
            e("v_accvgpr_write_b32 a%d, v%d" % (r, acc+r))
        k.wait_lg_all()
    else:
        k.wait_lg_all()
        e("s_barrier")
        k.stamp()
        e("s_nop 9")
        side.extend(epi_gu(NT-1))
        run_side(1000)
        flag_val(k, T0, 7)
        k.wait_vm_all()
        flag_store(k, 15, T0)
    e("s_branch %s" % Ldone)
    k.label(Lload)
    if PRIO or APRIO: e("s_setprio 0")
    k.vm = []; k.lg = []
    e("s_lshl_b32 s10, s9, 11")
    ST = 16; MEAN, RSTD, T0, T1, SC1, VAR, MFR = 8, 14, 10, 11, 12, 13, 116
    VE = 120
    e("s_add_u32 s14, s10, %d" % EXCH)
    e("v_add_u32 v%d, s14, v5" % VE)
    e("s_lshl_b32 s11, s6, 13")
    e("s_add_u32 s11, s11, s%d" % S_STIN)
    def stats_partials():
        for cq in range(8):
            if cq == 4: e("s_add_u32 s11, s11, 4096")
            k.vmem("buffer_load_dwordx4 v[%d:%d], v5, %s, s11 offen offset:%d sc1" % (ST+4*cq, ST+4*cq+3, SRD, (cq % 4)*1024), "stats")
    def stats_publish():
        for x in stats_reduce_ops(ST, MEAN, RSTD, T0, T1, VAR, MFR): e(x)
        e("v_mul_f32 v%d, 0x%x, v%d" % (SC1, f32bits(QSCALE if qkv else -LOG2E), RSTD))
        k.lds("ds_write_b128 v%d, v[%d:%d]" % (VE, MFR, MFR+3), "ex")
        k.lds("ds_write_b96 v%d, v[%d:%d] offset:1024" % (VE, SC1, RSTD), "ex")
    if qkv:
        xpoll(k, qkv, T0)
        stats_partials()
        for n in range(NSTEP):
            if n < 2: e("s_waitcnt vmcnt(%d)" % (24 - 4*(n+1) + 8))
            if n == 2:
                k.wait_vm("stats")
                stats_publish()
                k.wait_lg_all()
            if n == 4: census_check(k, T0, T1)
            e("s_barrier")
            if PTQ and n < 5:
                l6 = k.newlabel()
                e("s_cmp_lg_u32 s%d, 0" % S_LAYER)
                e("s_cbranch_scc1 %s" % l6)
                e("s_lshl_b32 s13, s%d, 5" % S_G)
                e("s_add_u32 s13, s13, s%d" % S_J)
                e("s_add_u32 s14, s10, %d" % (n*8192))
                e("s_mul_i32 s15, s13, %d" % (28*1024)); e("s_add_u32 s15, s15, s14"); e("s_add_u32 s15, s15, 0x%x" % HT)
                e("s_lshl_b32 s13, s13, 13"); e("s_add_u32 s13, s13, s14"); e("s_add_u32 s13, s13, 0x%x" % (OT - 14*2048))
                e("s_cmp_lt_u32 s14, %d" % (14*2048))
                e("s_cselect_b32 s15, s15, s13")
                e("s_cmp_ge_u32 s14, %d" % (18*2048))
                e("s_cbranch_scc1 %s" % l6)
                e("v_lshlrev_b32 v121, 7, v2")
                set_exec(k, 16)
                e("buffer_load_dword v122, v121, %s, s15 offen sc1" % SRD)
                e("s_mov_b64 exec, -1")
                k.label(l6)
        e("s_lshr_b32 s8, s9, 1")
        e("s_and_b32 s17, s9, 1")
        e("s_add_u32 s11, s21, s8")
        e("s_sub_i32 s11, s11, 2")
        e("s_mul_i32 s12, s17, %d" % (HB[1] - HB[0]))
        e("s_lshl_b32 s13, s8, 12")
        e("s_add_u32 s12, s12, s13")
        e("s_add_u32 s12, s12, %d" % HB[0])
        linv, lgo, lloc = k.newlabel(), k.newlabel(), k.newlabel()
        e("s_cmp_lt_i32 s11, 0")
        e("s_cbranch_scc1 %s" % linv)
        if DUALKV: e("s_mov_b32 s15, 0"); e("s_mov_b32 s16, 0")
        else: e("s_mov_b32 s15, 0x%x" % (KH - KF)); e("s_mov_b32 s16, %d" % FL_KVH)
        e("s_lshr_b32 s13, s11, 1")
        e("s_cmp_eq_u32 s13, s%d" % S_G)
        e("s_cbranch_scc1 %s" % lloc)
        e("s_mov_b32 s15, 0x%x" % (KH - KF)); e("s_mov_b32 s16, %d" % (FL_KVH - 8192))
        k.label(lloc)
        e("s_lshl_b32 s13, s7, 5")
        e("s_and_b32 s14, s11, 1")
        e("s_lshl_b32 s14, s14, 4")
        e("s_add_u32 s13, s13, s14")
        e("s_add_u32 s13, s13, s%d" % S_FLL)
        e("s_add_u32 s13, s13, s16")
        e("s_lshl_b32 s18, s7, 1"); e("s_add_u32 s17, s18, s17"); e("s_lshl_b32 s17, s17, 6")
        e("s_lshl_b32 s14, s11, 2"); e("s_add_u32 s17, s17, s14"); e("s_lshl_b32 s17, s17, 10")
        e("s_add_u32 s17, s17, s%d" % S_LOFF); e("s_add_u32 s17, s17, s15")
        e("s_add_u32 s18, s17, 0x%x" % VF)
        e("s_add_u32 s17, s17, 0x%x" % KF)
        poll(k, 13, 4, T0)
        e("s_mov_b32 m0, s12")
        e("s_nop 0")
        for q in range(4):
            e("buffer_load_dwordx4 v5, %s, s17 offen offset:%d sc1 lds" % (SRD, q*1024))
        e("s_add_u32 m0, s12, 12288")
        e("s_nop 0")
        for q in range(4):
            e("buffer_load_dwordx4 v5, %s, s18 offen offset:%d sc1 lds" % (SRD, q*1024))
        e("s_branch %s" % lgo)
        k.label(linv)
        e("s_mov_b32 m0, s12")
        e("s_nop 0")
        for q in range(4):
            e("buffer_load_dwordx4 v5, %s, 0 offen offset:%d lds" % (SRD_WQ, q*1024))
        e("s_add_u32 m0, s12, 12288")
        e("s_nop 0")
        for q in range(4):
            e("buffer_load_dwordx4 v5, %s, 0 offen offset:%d lds" % (SRD_WQ, q*1024))
        k.label(lgo)
    else:
        e("s_mul_i32 s19, s7, %d" % (NT*32768))
        e("s_add_u32 s19, s19, s10")
        e("s_add_u32 s19, s19, 0x%x" % WGU_F)
        poll(k, 13, 16, T0)
        stats_partials()
        def issue_w(ci):
            t, c = ORDER[ci]
            e("s_add_u32 m0, s10, %d" % (wslot[ci]*8192))
            e("s_add_u32 s14, s19, %d" % (t*32768 + c*8192))
            k.vmem("buffer_load_dwordx4 v5, %s, s14 offen lds" % SRD, ("w", ci))
            k.vmem("buffer_load_dwordx4 v5, %s, s14 offen offset:1024 lds" % SRD, ("w", ci))
        e("s_lshr_b32 s20, s%d, 2" % S_J)
        e("s_lshl_b32 s20, s20, 1")
        e("s_and_b32 s14, s9, 1")
        e("s_add_u32 s20, s20, s14")
        e("s_mul_i32 s20, s20, %d" % (112*1024))
        e("s_lshr_b32 s14, s9, 1")
        e("s_lshl_b32 s14, s14, 11")
        e("s_add_u32 s20, s20, s14")
        e("s_add_u32 s20, s20, 0x%x" % WD_F)
        dwst = {"n": 0}
        def issue_dw(cnt):
            for _ in range(cnt):
                ndw = dwst["n"]
                if ndw >= DN_PRE: return
                c, h = divmod(ndw, 2)
                if h == 0 or _ == 0: e("s_add_u32 s14, s20, %d" % (c*4096))
                k.vmem("buffer_load_dwordx4 %s, v5, %s, s14 offen offset:%d" % (dn_wreg(ndw), SRD, h*1024), ("dw", ndw))
                dwst["n"] += 1
        nxt = GU_PRE
        if HPT:
            e("s_mul_i32 s16, s6, 112")
            e("s_add_u32 s16, s16, s7")
            e("s_lshl_b32 s16, s16, 10")
            e("s_add_u32 s16, s16, 0x%x" % HT)
            e("v_and_b32 v121, 7, v2"); e("v_lshlrev_b32 v121, 7, v121")
            e("v_lshrrev_b32 v122, 3, v2"); e("v_lshl_add_u32 v121, v122, 14, v121")
        if HOFF:
            e("s_mul_i32 s17, s6, 112")
            e("s_add_u32 s17, s17, s7")
            e("s_lshl_b32 s17, s17, 10")
            e("s_add_u32 s17, s17, 0x%x" % HT)
            e("s_lshl_b32 s18, s22, 6")
            e("s_lshl_b32 s14, s7, 2")
            e("s_add_u32 s18, s18, s14")
            e("s_add_u32 s18, s18, s%d" % S_FLL)
            e("s_add_u32 s18, s18, %d" % FL_H)
            e("s_lshl_b32 s14, s9, 10")
            e("v_add_u32 v123, s14, v7")
        def h_out(n):
            if not HOFF: return
            tiles = [0, 1] if n == 5 else ([n - 4] if 6 <= n <= 8 else [])
            if 6 <= n <= 8:
                done = n - 4
                k.wait_vm(("hst", done - 1))
                flag_val(k, T0, done)
                flag_store(k, 18, T0)
            for t in tiles:
                if t == 2: k.lds("ds_read_b128 v[%d:%d], v%d" % (48, 51, VE), ("hr", t))
                else: k.lds("ds_read_b128 v[%d:%d], v123 offset:%d" % (48+4*(t % 2), 51+4*(t % 2), w_[7]*8192 - 131072 + (t % 3)*4096), ("hr", t))
            for t in tiles:
                k.wait_lg(("hr", t))
                if t: e("s_add_u32 s17, s17, 16384")
                stores(k, ["buffer_store_dwordx4 v[%d:%d], v5, %s, s17 offen" % (48+4*(t % 2), 51+4*(t % 2), SRD)], ("hst", t))
        for n in range(NSTEP):
            if HPT and HPT0 <= n < HPT0 + 4:
                set_exec(k, 16 if n < HPT0 + 3 else 8)
                k.vmem("buffer_load_dword v122, v121, %s, s16 offen sc1" % SRD, "pt")
                e("s_mov_b64 exec, -1")
                e("s_add_u32 s16, s16, 32768")
            lim = {0: 11, 1: 11, 2: 11, 3: 13, 4: 15}.get(n, 1000)
            while nxt < NCH and nxt <= lim and wfree[nxt] <= n and cstep(nxt) <= n + 1:
                issue_w(nxt); nxt += 1
            issue_dw(DWS.get(n, 0))
            if n == 2:
                k.wait_vm("stats")
                stats_publish()
            for ci in chunks_of(n): k.wait_vm(("w", ci))
            k.wait_lg_all()
            e("s_barrier")
            h_out(n)
            if HOFF and n == NSTEP - 1:
                k.wait_vm(("hst", 4))
                flag_val(k, T0, 5)
                flag_store(k, 18, T0)
            if EARLYA and n == NSTEP - 1:
                assert all(free_at.get(x, 0) <= n for x in DN_A[:NA0]) and nxt == NCH
                e("s_and_b32 s13, s%d, 3" % S_J)
                e("s_lshl_b32 s14, s%d, 2" % S_G)
                e("s_add_u32 s14, s14, s13")
                e("s_lshl_b32 s13, s13, 7")
                e("s_add_u32 s13, s13, s%d" % S_FLL)
                e("s_add_u32 s13, s13, %d" % FL_H)
                e("s_lshl_b32 s14, s14, 1")
                e("s_lshr_b32 s15, s9, 1")
                e("s_add_u32 s14, s14, s15")
                e("s_mul_i32 s19, s14, %d" % (112*1024))
                e("s_and_b32 s14, s10, 2048")
                e("s_add_u32 s19, s19, s14"); e("s_add_u32 s19, s19, 0x%x" % HT)
                poll(k, 13, 32, T0, val=2)
                for c in range(NA0):
                    e("s_add_u32 m0, s10, %d" % (DN_A[c]*8192))
                    e("s_add_u32 s14, s19, %d" % (c*4096))
                    k.vmem("buffer_load_dwordx4 v5, %s, s14 offen sc1 lds" % SRD, ("a", c))
                    k.vmem("buffer_load_dwordx4 v5, %s, s14 offen offset:1024 sc1 lds" % SRD, ("a", c))
        issue_dw(100)
        assert nxt == NCH
        e("s_barrier")
    k.label(Ldone)
    k.vm = []; k.lg = []

def phase_attn(k):
    e = k.e
    k.vm = []; k.lg = []
    e("s_and_b32 s6, s%d, 1" % S_J)
    e("s_lshl_b32 s8, s%d, 1" % S_G)
    e("s_add_u32 s6, s6, s8")
    e("s_lshl_b32 s6, s6, 2")
    e("s_and_b32 s8, s%d, 3" % S_WAVE)
    e("s_add_u32 s6, s6, s8")
    e("s_lshr_b32 s9, s%d, 2" % S_WAVE)
    e("s_and_b32 s7, s%d, 0xfe" % S_J)
    e("s_add_u32 s7, s7, s9")
    S = [8, 24]
    MF, MD, NM, NB = 40, 56, 72, 88
    P = [104, 112]
    M, T0, VK, VV = 120, 121, 122, 123
    AQ, AK, AV, AO = 0, 4, 40, 56
    e("v_lshlrev_b32 v%d, 2, v4" % M)
    e("v_sub_u32 v%d, v3, v%d" % (M, M))
    e("s_mov_b32 s13, 0x%x" % NEGBIG)
    e("v_mov_b32 v%d, s13" % T0)
    for r in range(16):
        a = (r & 3) + 8*(r >> 2)
        e("v_cmp_gt_i32 s[%d:%d], %d, v%d" % (64+2*r, 65+2*r, a, M))
    for r in range(16):
        e("v_cndmask_b32 v%d, v%d, 0, s[%d:%d]" % (MF+r, T0, 64+2*r, 65+2*r))
        e("v_cndmask_b32 v%d, 0, v%d, s[%d:%d]" % (MD+r, T0, 64+2*r, 65+2*r))
        e("v_mov_b32 v%d, v%d" % (NB+r, T0))
    e("v_cmp_eq_u32 s[64:65], 16, v3")
    e("v_cmp_eq_u32 s[66:67], 20, v3")
    e("s_mov_b32 s14, 0x%x" % ONES_BF16)
    e("v_mov_b32 v%d, s14" % T0)
    e("s_or_b64 s[64:65], s[64:65], s[66:67]")
    e("s_nop 0")
    e("v_cndmask_b32 v%d, 0, v%d, s[64:65]" % (T0, T0))
    for r in range(16):
        e("v_accvgpr_write_b32 a%d, v%d" % (AV+r, T0))
    e("s_mov_b32 s64, 0x0000ffff")
    e("s_mov_b32 s65, 0x0000ffff")
    e("s_mul_i32 s13, s9, %d" % (HB[1] - HB[0]))
    e("s_lshl_b32 s14, s8, 10")
    e("s_add_u32 s13, s13, s14")
    e("s_add_u32 s13, s13, %d" % HB[0])
    e("v_add_u32 v%d, s13, v5" % VK)
    e("v_and_b32 v%d, 15, v3" % VV)
    e("v_lshlrev_b32 v%d, 4, v%d" % (VV, VV))
    e("v_lshl_add_u32 v%d, v4, 8, v%d" % (VV, VV))
    e("v_add_u32 v%d, s13, v%d" % (VV, VV))
    e("v_add_u32 v%d, s14, v7" % M)
    k.stamp()
    e("s_waitcnt vmcnt(0)")
    if PT:
        e("s_lshl_b32 s13, s6, 5")
        e("s_add_u32 s13, s13, s7")
        e("s_lshl_b32 s13, s13, 10")
        e("s_add_u32 s13, s13, 0x%x" % OT)
        e("v_lshlrev_b32 v%d, 7, v2" % T0)
        set_exec(k, 8)
        e("buffer_load_dword v124, v%d, %s, s13 offen sc1" % (T0, SRD))
        e("s_mov_b64 exec, -1")
    e("s_barrier")
    k.stamp()
    lq = k.newlabel()
    if PRIO or APRIO: e("s_setprio 0")
    e("s_cmp_lt_u32 s%d, 4" % S_WAVE)
    e("s_cbranch_scc1 %s" % lq)
    if APRIO: e("s_setprio %d" % APRIO)
    e("ds_read_b128 a[%d:%d], v%d offset:%d" % (AQ, AQ+3, M, QX))
    k.label(lq)
    for i in range(9):
        k.lds("ds_read_b128 a[%d:%d], v%d offset:%d" % (AK+4*i, AK+4*i+3, VK, i*1024), ("k", i))
    lt = k.newlabel()
    e("s_cmp_lg_u32 s%d, 0" % S_WAVE)
    e("s_cbranch_scc1 %s" % lt)
    touch_set(k, 'f', 0, T0, 124)
    k.label(lt)
    e("s_lshl_b32 s13, s%d, 10" % S_WAVE)
    e("s_lshr_b32 s19, s%d, 1" % S_J)
    e("s_mul_i32 s19, s19, %d" % (7*32768))
    e("s_add_u32 s19, s19, s13")
    e("s_add_u32 s19, s19, 0x%x" % WGU_F)
    pre = list(range(GU_PRE))
    if ATCH == 1: pre = pre + ["t"]
    if ATCH == 2: pre = ["t"] + pre
    def issue_pre():
        if not pre: return
        c = pre.pop(0)
        if c == "t":
            e("s_and_b32 s14, s%d, 1" % S_J)
            e("s_lshl_b32 s14, s14, 16")
            e("s_add_u32 s14, s14, s19")
            e("s_mul_i32 s15, s13, 7")
            e("s_add_u32 s14, s14, s15")
            e("s_add_u32 s14, s14, %d" % (3*32768))
            e("v_lshlrev_b32 v124, 7, v2")
            k.vmem("buffer_load_dword v124, v124, %s, s14 offen" % SRD, "pre")
            return
        t, cc = GU_ORDER[c]
        e("s_add_u32 m0, s13, %d" % (GUR[c]*8192))
        e("s_add_u32 s14, s19, %d" % (t*32768 + cc*8192))
        k.vmem("buffer_load_dwordx4 v5, %s, s14 offen lds" % SRD, "pre")
    def rdv(i):
        b = AV + 8*(i % 2)
        e("s_mov_b64 exec, s[64:65]")
        k.lds("ds_read_b128 a[%d:%d], v%d offset:%d" % (b, b+3, VV, 12288 + i*1024), ("v", i))
        k.lds("ds_read_b128 a[%d:%d], v%d offset:%d" % (b+4, b+7, VV, 12288 + i*1024 + 512), ("v", i))
        e("s_mov_b64 exec, -1")
    def smfma(i, cval):
        d = S[i % 2]
        kf = "a[%d:%d]" % (AK+4*i, AK+4*i+3)
        q = "a[%d:%d]" % (AQ, AQ+3)
        if i < 8:
            la, lb = k.newlabel(), k.newlabel()
            e("s_cmp_lt_u32 s6, %d" % (8 - i))
            e("s_cbranch_scc1 %s" % la)
            e("v_mfma_f32_32x32x16_bf16 v[%d:%d], %s, %s, %s" % (d, d+15, kf, q, cval))
            e("s_branch %s" % lb)
            k.label(la)
            e("v_mfma_f32_32x32x16_bf16 v[%d:%d], %s, %s, v[%d:%d]" % (d, d+15, kf, q, NB, NB+15))
            k.label(lb)
        else:
            e("v_mfma_f32_32x32x16_bf16 v[%d:%d], %s, %s, %s" % (d, d+15, kf, q, cval))
    def c1(i):
        if i == 0: return "v[%d:%d]" % (MF, MF+15)
        if i == 8: return "v[%d:%d]" % (MD, MD+15)
        return "0"
    def c2(i):
        if i == 0: return "v[%d:%d]" % (MF, MF+15)
        if i == 8: return "v[%d:%d]" % (MD, MD+15)
        return "v[%d:%d]" % (NM, NM+15)
    k.wait_lg(("k", 0))
    smfma(0, c1(0))
    for i in range(9):
        if i + 1 < 9:
            k.wait_lg(("k", i+1))
            smfma(i+1, c1(i+1))
            if i == 0: e("s_nop 7")
        else:
            e("s_nop 3")
        d = S[i % 2]
        for j in range(8):
            if i == 0 and j == 0:
                e("v_max_f32 v%d, v%d, v%d" % (M, d, d+1))
            else:
                e("v_max3_f32 v%d, v%d, v%d, v%d" % (M, M, d+2*j, d+2*j+1))
        if i % 2 == 1: issue_pre()
    rdv(0)
    e("v_mov_b32 v%d, v%d" % (T0, M))
    e("s_nop 1")
    e("v_permlane32_swap_b32 v%d, v%d" % (M, T0))
    e("s_nop 1")
    e("v_max_f32 v%d, v%d, v%d" % (M, M, T0))
    for r in range(16):
        e("v_sub_f32 v%d, v%d, v%d" % (MF+r, MF+r, M))
    for r in range(16):
        e("v_sub_f32 v%d, 0, v%d" % (NM+r, M))
    smfma(0, c2(0))
    for r in range(16):
        e("v_sub_f32 v%d, v%d, v%d" % (MD+r, MD+r, M))
    for i in range(9):
        if i + 1 < 9:
            smfma(i+1, c2(i+1))
            rdv(i+1)
        d = S[i % 2]; p = P[i % 2]
        for r in range(16):
            e("v_exp_f32 v%d, v%d" % (d+r, d+r))
            if r % 2 == 1 and r >= 3:
                e("v_cvt_pk_bf16_f32 v%d, v%d, v%d" % (p + (r-3)//2, d+r-3, d+r-2))
            if r in (5, 11): issue_pre()
        k.wait_lg(("v", i))
        e("v_cvt_pk_bf16_f32 v%d, v%d, v%d" % (p + 7, d+14, d+15))
        b = AV + 8*(i % 2)
        c = "0" if i == 0 else "a[%d:%d]" % (AO, AO+15)
        e("v_mfma_f32_32x32x16_bf16 a[%d:%d], a[%d:%d], v[%d:%d], %s" % (AO, AO+15, b, b+3, p, p+3, c))
        e("s_nop 0")
        e("v_mfma_f32_32x32x16_bf16 a[%d:%d], a[%d:%d], v[%d:%d], a[%d:%d]" % (AO, AO+15, b+4, b+7, p+4, p+7, AO, AO+15))
    assert not pre
    k.stamp()
    e("s_lshl_b32 s13, s6, 5")
    e("s_add_u32 s13, s13, s7")
    e("s_and_b32 s14, s13, 255")
    e("s_lshl_b32 s14, s14, 2")
    e("s_lshl_b32 s13, s13, 10")
    e("s_add_u32 s13, s13, 0x%x" % OT)
    e("s_add_u32 s14, s14, s%d" % S_FLL)
    e("s_add_u32 s14, s14, %d" % FL_O)
    e("s_nop 6")
    for r in range(9):
        e("v_accvgpr_read_b32 v%d, a%d" % (S[0]+r, AO+r))
    e("v_rcp_f32 v%d, v%d" % (T0, S[0]+8))
    e("s_nop 0")
    for r in range(8):
        e("v_mul_f32 v%d, v%d, v%d" % (S[0]+r, T0, S[0]+r))
        if r % 2 == 1:
            e("v_cvt_pk_bf16_f32 v%d, v%d, v%d" % (P[0] + r//2, S[0]+r-1, S[0]+r))
    stores(k, ["buffer_store_dwordx4 v[%d:%d], v5, %s, s13 offen" % (P[0], P[0]+3, SRD)], "st")
    k.wait_vm_all()
    flag_store(k, 14)

def phase_ldsgemm(k, kind):
    e = k.e
    k.vm = []; k.lg = []
    wo = kind == "wo"
    KS = 32 if wo else 112
    NC = KS // 4
    NS = KS // 8
    AMAP = WOA if wo else DN_A
    NA = len(AMAP)
    ABASE, WBASE = (OT, WO_F) if wo else (HT, WD_F)
    POLLB = 4
    Lload, Ldone = k.newlabel("GL"), k.newlabel("GD")
    e("s_and_b32 s22, s%d, 3" % S_J)
    e("s_lshl_b32 s8, s%d, 2" % S_G)
    e("s_add_u32 s6, s22, s8")
    e("s_lshr_b32 s7, s%d, 2" % S_J)
    e("s_lshl_b32 s13, s22, %d" % (8 if wo else 7))
    e("s_add_u32 s13, s13, s%d" % S_FLL)
    e("s_add_u32 s13, s13, %d" % (FL_O if wo else FL_H))
    e("s_and_b32 s17, s%d, 3" % S_WAVE)
    e("s_cmp_ge_u32 s%d, 4" % S_WAVE)
    e("s_cbranch_scc%d %s" % (1 if wo else 0, Lload))
    if PRIO: e("s_setprio %d" % PRIO)
    elif APRIO: e("s_setprio 0")
    e("s_lshr_b32 s8, s17, 1")
    e("s_and_b32 s9, s17, 1")
    e("s_lshl_b32 s10, s6, 1"); e("s_add_u32 s10, s10, s8")
    e("s_lshl_b32 s12, s7, 1"); e("s_add_u32 s12, s12, s9")
    e("s_mul_i32 s11, s12, %d" % (KS*1024))
    e("s_lshl_b32 s14, s8, 11")
    e("s_add_u32 s11, s11, s14")
    e("s_add_u32 s11, s11, 0x%x" % WBASE)
    NO = KS // 2
    def issue_w(i):
        c, h = divmod(i, 2)
        e("s_add_u32 s14, s11, %d" % (c*4096))
        k.vmem("buffer_load_dwordx4 %s, v5, %s, s14 offen offset:%d" % (dn_wreg(i), SRD, h*1024), ("w", i))
    RES = 8; ACC = [16, 32]; AF = 48; TMP = 122
    e("s_lshl_b32 s20, s10, 15")
    e("s_lshl_b32 s21, s12, 11")
    e("s_add_u32 s20, s20, s21")
    e("s_add_u32 s20, s20, s%d" % S_XIN)
    k.vmem("buffer_load_dwordx4 v[%d:%d], v5, %s, s20 offen sc1" % (RES, RES+3, SRD), "res")
    k.vmem("buffer_load_dwordx4 v[%d:%d], v5, %s, s20 offen offset:1024 sc1" % (RES+4, RES+7, SRD), "res")
    if not wo and not EARLYA:
        e("s_lshl_b32 s18, s17, 11")
        e("s_mul_i32 s19, s10, %d" % (KS*1024))
        e("s_lshl_b32 s14, s9, 11")
        e("s_add_u32 s19, s19, s14"); e("s_add_u32 s19, s19, 0x%x" % ABASE)
        poll(k, 13, 32, TMP, val=5)
        for c in range(NA0):
            e("s_add_u32 m0, s18, %d" % (AMAP[c]*8192))
            e("s_add_u32 s14, s19, %d" % (c*4096))
            k.vmem("buffer_load_dwordx4 v5, %s, s14 offen sc1 lds" % SRD, ("a", c))
            k.vmem("buffer_load_dwordx4 v5, %s, s14 offen offset:1024 sc1 lds" % SRD, ("a", c))
    nw = 0 if wo else DN_PRE
    while nw < min(NO, 42):
        issue_w(nw); nw += 1
    VA0, VA1 = 112, 116
    e("s_mul_i32 s14, s8, 6144")
    e("s_xor_b32 s15, s8, 1")
    e("s_lshl_b32 s15, s15, 12")
    e("s_lshl_b32 s16, s8, 11")
    e("s_add_u32 s15, s15, s16")
    for n in range(3):
        e("v_add_u32 v%d, s14, v%d" % (VA0+n, 5+n))
        e("v_add_u32 v%d, s15, v%d" % (VA1+n, 5+n))
    e("s_lshl_b32 s21, s10, 13")
    e("s_lshl_b32 s16, s7, 10")
    e("s_add_u32 s21, s21, s16")
    e("s_lshl_b32 s16, s9, 3")
    e("s_add_u32 s21, s21, s16")
    e("s_add_u32 s21, s21, s%d" % S_STIN)
    e("s_and_b32 s23, s10, 7")
    e("s_lshl_b32 s23, s23, 6")
    e("s_lshl_b32 s16, s12, 2")
    e("s_add_u32 s23, s23, s16")
    e("s_add_u32 s23, s23, s%d" % S_FXIN)
    e("s_add_u32 s23, s23, %d" % (512 if wo else 1024))
    e("s_xor_b32 s16, s17, 2")
    e("s_lshl_b32 s16, s16, 12")
    e("v_add_u32 v120, s16, v5")
    e("s_lshl_b32 s16, s17, 12")
    e("v_add_u32 v121, s16, v5")
    e("s_mov_b32 s16, 0x%x" % ONES_BF16)
    k.wait_vm("res")
    for j in range(8):
        e("v_lshlrev_b32 v%d, 16, v%d" % (ACC[0]+2*j, RES+j))
        e("v_and_b32 v%d, 0xffff0000, v%d" % (ACC[0]+2*j+1, RES+j))
    PF = 2
    if wo: e("s_barrier")
    def rd(i):
        c, h = divmod(i, 2)
        if i % 4 == 0:
            if not wo and i // 4 == POLLB:
                poll(k, 13, 32, TMP, val=7)
            k.wait_vm(("a", c)); k.wait_vm(("a", c+1))
            k.wait_lg_all()
            e("s_barrier")
        aa = AMAP[c % NA]*8192 + h*1024
        b = AF + 8*(i % 3)
        k.lds("ds_read_b128 v[%d:%d], v%d offset:%d" % (b, b+3, VA0 + aa // 65536, aa % 65536), ("f", i))
        k.lds("ds_read_b128 v[%d:%d], v%d offset:%d" % (b+4, b+7, VA1 + aa // 65536, aa % 65536), ("f", i))
    for i in range(PF):
        rd(i)
        if i == 0: k.stamp()
    for i in range(NO):
        if i + PF < NO: rd(i + PF)
        k.wait_vm(("w", i))
        k.wait_lg(("f", i))
        if FINE == 2 and not wo and i % 8 == 0 and i > 0: k.stamp()
        b = AF + 8*(i % 3)
        wf = dn_wreg(i)
        e("v_mfma_f32_32x32x16_bf16 v[%d:%d], %s, v[%d:%d], v[%d:%d]" % (ACC[0], ACC[0]+15, wf, b, b+3, ACC[0], ACC[0]+15))
        e("v_mfma_f32_32x32x16_bf16 v[%d:%d], %s, v[%d:%d], %s" % (ACC[1], ACC[1]+15, wf, b+4, b+7, "0" if i == 0 else "v[%d:%d]" % (ACC[1], ACC[1]+15)))
        if nw < NO and nw - 42 <= i: issue_w(nw); nw += 1
    assert nw == NO
    e("s_barrier")
    k.stamp()
    e("s_nop 11")
    for q in range(4):
        k.lds("ds_write_b128 v120, v[%d:%d] offset:%d" % (ACC[1]+4*q, ACC[1]+4*q+3, RED + q*1024), "rw")
    k.wait_lg_all()
    e("s_barrier")
    for q in range(4):
        k.lds("ds_read_b128 v[%d:%d], v121 offset:%d" % (ACC[1]+4*q, ACC[1]+4*q+3, RED + q*1024), ("rr", q))
    for q in range(4):
        k.wait_lg(("rr", q))
        for r in range(4*q, 4*q+4):
            e("v_add_f32 v%d, v%d, v%d" % (ACC[0]+r, ACC[0]+r, ACC[1]+r))
    e("s_barrier")
    for j in range(8):
        e("v_cvt_pk_bf16_f32 v%d, v%d, v%d" % (RES+j, ACC[0]+2*j, ACC[0]+2*j+1))
    lfin = k.newlabel()
    if not wo:
        e("s_cmp_eq_u32 s%d, 1" % S_LAYER)
        e("s_cbranch_scc1 %s" % lfin)
    stores(k, ["buffer_store_dwordx4 v[%d:%d], v5, %s, s20 offen" % (RES, RES+3, SRD),
               "buffer_store_dwordx4 v[%d:%d], v5, %s, s20 offen offset:1024" % (RES+4, RES+7, SRD)], "st")
    e("v_mov_b32 v%d, 0" % TMP); e("v_mov_b32 v%d, 0" % (TMP+1))
    for j in range(8):
        e("v_dot2_f32_bf16 v%d, v%d, s16, v%d" % (TMP, RES+j, TMP))
        e("v_dot2_f32_bf16 v%d, v%d, v%d, v%d" % (TMP+1, RES+j, RES+j, TMP+1))
    e("s_nop 2")
    stores(k, ["buffer_store_dwordx2 v[%d:%d], v5, %s, s21 offen" % (TMP, TMP+1, SRD)], "st")
    k.wait_vm_all()
    flag_store(k, 23)
    e("s_branch %s" % Ldone)
    if not wo:
        k.label(lfin)
        e("v_lshlrev_b32 v%d, 10, v3" % TMP)
        e("v_lshl_add_u32 v%d, v4, 4, v%d" % (TMP, TMP))
        e("s_lshl_b32 s21, s10, 15")
        e("s_lshl_b32 s16, s12, 6")
        e("s_add_u32 s21, s21, s16")
        for c in range(2):
            b = RES + 4*c
            e("v_permlane32_swap_b32 v%d, v%d" % (b, b+2))
            e("v_permlane32_swap_b32 v%d, v%d" % (b+1, b+3))
        e("s_nop 1")
        for c in range(2):
            b = RES + 4*c
            e("buffer_store_dwordx4 v[%d:%d], v%d, %s, s21 offen offset:%d" % (b, b+3, TMP, SRD_OUT, 32*c))
        e("s_branch %s" % Ldone)
    k.label(Lload)
    if PRIO or APRIO: e("s_setprio 0")
    k.vm = []; k.lg = []
    e("s_mov_b32 s9, s17")
    e("s_lshr_b32 s8, s9, 1")
    e("s_and_b32 s12, s9, 1")
    e("s_lshl_b32 s10, s9, 11")
    e("s_lshl_b32 s12, s12, 11")
    e("s_lshl_b32 s11, s6, 1"); e("s_add_u32 s11, s11, s8"); e("s_mul_i32 s11, s11, %d" % (KS*1024))
    e("s_add_u32 s11, s11, s12"); e("s_add_u32 s11, s11, 0x%x" % ABASE)
    def issue_a(c):
        e("s_add_u32 m0, s10, %d" % (AMAP[c % NA]*8192))
        e("s_add_u32 s8, s11, %d" % (c*4096))
        k.vmem("buffer_load_dwordx4 v5, %s, s8 offen sc1 lds" % SRD, ("a", c))
        k.vmem("buffer_load_dwordx4 v5, %s, s8 offen offset:1024 sc1 lds" % SRD, ("a", c))
    na = 0 if wo else NA0
    if wo:
        e("s_barrier")
        poll(k, 13, 64, 8)
    else:
        qkv_w_base(k, 15, 10)
        poll(k, 13, 32, 8, val=5)
    def steps(n0, na, prefetch):
        nq = 0
        for n in range(n0, NS):
            while na < NC and (na < NA or (na - NA) // 2 <= n - 2) and (wo or na < 20 or n > POLLB):
                issue_a(na); na += 1
            if not wo and na == NC and prefetch is None:
                lno, lend = k.newlabel(), k.newlabel()
                keep = list(k.vm)
                e("s_cmp_eq_u32 s%d, 1" % S_LAYER)
                e("s_cbranch_scc1 %s" % lno)
                steps(n, na, True)
                e("s_branch %s" % lend)
                k.label(lno)
                k.vm = keep
                steps(n, na, False)
                k.label(lend)
                return
            if prefetch:
                cnt = 0
                while nq < 12 and cnt < 3 and (nq < 8 or (10 + (nq - 8)//2) + 1 <= n - 1):
                    issue_qkv_w(k, nq, 15, 10); nq += 1; cnt += 1
            for c in (2*n, 2*n+1):
                k.wait_vm(("a", c))
            e("s_barrier")
        assert na == NC
        e("s_barrier")
        if prefetch:
            while nq < 12:
                issue_qkv_w(k, nq, 15, 10); nq += 1
        e("s_barrier")
        e("s_barrier")
    steps(0, na, None)
    k.label(Ldone)
    k.vm = []; k.lg = []

def gen_main():
    k = PK(KNAME)
    e = k.e
    e("s_cmp_ge_u32 s2, 256")
    e("s_cbranch_scc1 L_main_end")
    e("s_load_dwordx4 s[64:67], s[0:1], 0")
    e("s_load_dwordx2 s[68:69], s[0:1], 56")
    e("s_load_dwordx4 s[72:75], s[0:1], 64")
    e("s_getreg_b32 s52, hwreg(HW_REG_XCC_ID)")
    e("v_lshrrev_b32 v1, 6, v0")
    e("v_and_b32 v2, 63, v0")
    e("v_and_b32 v3, 31, v0")
    e("v_readfirstlane_b32 s%d, v1" % S_WAVE)
    e("v_bfe_u32 v4, v0, 5, 1")
    e("v_lshlrev_b32 v5, 4, v2")
    e("v_add_u32 v6, 0x10000, v5")
    e("v_add_u32 v7, 0x20000, v5")
    e("v_lshlrev_b32 v%d, 2, v2" % V_L4)
    e("v_mov_b32 v%d, 1" % V_ONE)
    e("v_mov_b32 v%d, 0" % V_ZERO)
    e("s_and_b32 s%d, s2, 7" % S_G)
    e("s_lshr_b32 s%d, s2, 3" % S_J)
    e("s_and_b32 s52, s52, 15")
    e("s_add_u32 s52, s52, 1")
    e("s_mov_b32 s%d, 0" % S_MODE)
    e("s_mov_b32 s%d, 0" % S_GQ)
    e("s_mov_b32 s%d, 0" % S_LOFF)
    e("s_mov_b32 s%d, 0x%x" % (S_XIN, XT))
    e("s_lshl_b32 s%d, s%d, 13" % (S_FXIN, S_G))
    e("s_add_u32 s%d, s%d, 0x%x" % (S_FXIN, S_FXIN, FLAGS))
    e("s_add_u32 s%d, s%d, 2048" % (S_FLL, S_FXIN))
    e("s_mov_b32 s%d, 0" % S_LAYER)
    e("s_mov_b32 s%d, 0x%x" % (S_STIN, STATS))
    e("s_mov_b32 s%d, 0" % S_STI)
    e("s_waitcnt lgkmcnt(0)")
    ws_srd(k, 74, 36)
    e("s_mov_b32 s40, s68"); e("s_mov_b32 s41, s69"); e("s_mov_b32 s42, %d" % (2048*512*2)); e("s_mov_b32 s43, 0x20000")
    e("s_mov_b32 s56, s66"); e("s_mov_b32 s57, s67"); e("s_mov_b32 s58, %d" % (512*1536*2)); e("s_mov_b32 s59, 0x20000")
    e("s_mov_b32 s60, s64"); e("s_mov_b32 s61, s65"); e("s_mov_b32 s62, %d" % (2048*512*2)); e("s_mov_b32 s63, 0x20000")
    e("s_mov_b32 s96, s72"); e("s_mov_b32 s97, s73"); e("s_mov_b32 s98, 256"); e("s_mov_b32 s99, 0x20000")
    k.stamp()
    e("s_mov_b32 s%d, 0" % S_NONCE)
    ln, lc = k.newlabel(), k.newlabel()
    e("s_cmp_lt_u32 s%d, 4" % S_WAVE)
    e("s_cbranch_scc1 %s" % ln)
    e("s_cmp_lg_u32 s%d, 7" % S_WAVE)
    e("s_cbranch_scc1 %s" % lc)
    e("s_lshl_b32 s13, s%d, 9" % S_G)
    e("s_lshr_b32 s14, s%d, 3" % S_J)
    e("s_lshl_b32 s14, s14, 7")
    e("s_and_b32 s15, s%d, 7" % S_J)
    e("s_lshl_b32 s15, s15, 2")
    e("s_add_u32 s14, s14, s15")
    e("s_add_u32 s14, s14, s13")
    e("s_add_u32 s14, s14, 0x%x" % CENW)
    e("v_mov_b32 v9, s52")
    e("s_mov_b64 exec, 1")
    e("buffer_store_dword v9, v%d, %s, s14 offen sc1" % (V_ZERO, SRD))
    e("s_mov_b64 exec, -1")
    k.label(lc)
    e("s_sub_u32 s9, s%d, 4" % S_WAVE)
    e("s_lshl_b32 s10, s9, 11")
    qkv_w_base(k, 15, 10)
    for q in range(12): issue_qkv_w(k, q, 15, 10)
    k.label(ln)
    k.label("L_layer")
    phase_rowgemm(k, "qkv"); k.stamp()
    phase_attn(k); k.stamp()
    phase_ldsgemm(k, "wo"); k.stamp()
    phase_rowgemm(k, "gateup"); k.stamp()
    phase_ldsgemm(k, "down"); k.stamp()
    e("s_add_u32 s%d, s%d, 1" % (S_LAYER, S_LAYER))
    e("s_add_u32 s%d, s%d, 0x%x" % (S_LOFF, S_LOFF, LSTR))
    e("s_add_u32 s%d, s%d, %d" % (S_FLL, S_FLL, FL_LSTR))
    e("s_add_u32 s%d, s%d, 1024" % (S_FXIN, S_FXIN))
    e("s_cmp_lt_u32 s%d, 2" % S_LAYER)
    e("s_cbranch_scc1 L_layer")
    if STAMP:
        e("s_waitcnt vmcnt(0)")
        k.stamp()
        e("s_lshl_b32 s13, s2, 3")
        e("s_add_u32 s13, s13, s%d" % S_WAVE)
        e("s_lshl_b32 s13, s13, 8")
        e("s_add_u32 s13, s13, 0x%x" % STAMPS)
        e("buffer_store_dword v0, v%d, %s, s13 offen" % (V_L4, SRD))
    k.label("L_main_end")
    e("s_endpgm")
    return k.text(128, 128)

def main(out_path):
    import gen_prep2, gen_prep3
    ptxt, nprep = (gen_prep3 if PREP3 else gen_prep2).gen_prep(sys.modules[__name__])
    txt = HEADER
    txt += "; @launch kernel=prep_kernel grid=(%d,1,1) block=(%d,1,1) lds=%d\n" % ((nprep, 256, 65536) if PREP3 else (nprep, 64, 16384))
    txt += "; @launch kernel=%s grid=(256,1,1) block=(512,1,1) lds=163840\n" % KNAME
    txt += '.amdgcn_target "amdgcn-amd-amdhsa--gfx950"\n'
    txt += ptxt + gen_main()
    open(out_path, "w").write(txt)

if __name__ == "__main__":
    main(sys.argv[1] if len(sys.argv) > 1 else "p.s")
```
